```python
import torch

def _softmax(x, axis=-1):
    return torch.softmax(x, dim=axis)
def _gelu(x):
    return torch.nn.functional.gelu(x, approximate="tanh")
def _silu(x):
    return torch.nn.functional.silu(x)
def _sigmoid(x):
    return torch.sigmoid(x)
def _layernorm(x, axis=-1, eps=1e-5):
    m = x.mean(dim=axis, keepdim=True)
    v = x.var(dim=axis, keepdim=True, unbiased=False)
    return (x - m) / torch.sqrt(v + eps)
def _scatter_add(tgt, idx, src, axis=0):
    return tgt.clone().index_add_(axis, idx, src)
def _segment_sum(src, seg, n):
    out = torch.zeros((n,) + src.shape[1:], dtype=src.dtype)
    return out.index_add_(0, seg, src)
def _pad(x, pw):
    flat = tuple(v for pair in reversed(pw) for v in pair)
    return torch.nn.functional.pad(x, flat)

kernel_name = 'sequential_preLN__compressed_kv_cla__glu_gated_swiglu__decode'

def setup_inputs():

    _w = (lambda a: (lambda t: t.to(torch.bfloat16) if t.is_floating_point() else t)(torch.as_tensor(a)))
    def _A_setup():
        B, H, Sq, Sk, D, M = 2, 32, 1, 8192, 128, 640
        Dc = 4 * D
        return {
            "x": _w((lambda *s: torch.randn(*s, dtype=torch.bfloat16) * 0.05)(B, Sq, M)),
            "c_kv": _w((lambda *s: torch.randn(*s, dtype=torch.bfloat16) * 0.8)(B, Sk, Dc)),
            "w_q": _w((lambda *s: torch.randn(*s, dtype=torch.bfloat16) * 1.6)(M, H, D) * (M ** -0.5)),
            "w_uk": _w((lambda *s: torch.randn(*s, dtype=torch.bfloat16) * 1.6)(Dc, H, D) * (Dc ** -0.5)),
            "w_uv": _w((lambda *s: torch.randn(*s, dtype=torch.bfloat16) * 0.8)(Dc, H, D) * (Dc ** -0.5)),
            "w_o": _w((lambda *s: torch.randn(*s, dtype=torch.bfloat16) * 0.8)(H, D, M) * ((H * D) ** -0.5)),
        }
    _A_in = _A_setup()

    def _B_setup():
        B, S, D, F = 2, 1, 640, 1728
        return {
            "x": _w((lambda *s: torch.randn(*s, dtype=torch.bfloat16) * 0.05)(B, S, D)),
            "w1": _w((lambda *s: torch.randn(*s, dtype=torch.bfloat16) * 0.2)(D, F) * (2.0 / D) ** 0.5),
            "w3": _w((lambda *s: torch.randn(*s, dtype=torch.bfloat16) * 0.2)(D, F) * (2.0 / D) ** 0.5),
            "w2": _w((lambda *s: torch.randn(*s, dtype=torch.bfloat16) * 0.2)(F, D) * (2.0 / F) ** 0.5),
        }
    _B_in = _B_setup()

    return {
        "A_x": _A_in["x"],
        "A_c_kv": _A_in["c_kv"],
        "A_w_q": _A_in["w_q"],
        "A_w_uk": _A_in["w_uk"],
        "A_w_uv": _A_in["w_uv"],
        "A_w_o": _A_in["w_o"],
        "B_x": _B_in["x"],
        "B_w1": _B_in["w1"],
        "B_w3": _B_in["w3"],
        "B_w2": _B_in["w2"],
    }

def reference(A_x, A_c_kv, A_w_q, A_w_uk, A_w_uv, A_w_o, B_x, B_w1, B_w3, B_w2):
    def _A_ref(x, c_kv, w_q, w_uk, w_uv, w_o):
        B, Sq, M = x.shape[0], x.shape[1], x.shape[2]
        Sk = c_kv.shape[1]
        H, D = w_q.shape[1], w_q.shape[2]
        q = torch.einsum("bqm,mhd->bhqd", x, w_q)
        k = torch.einsum("bkc,chd->bhkd", c_kv, w_uk)
        v = torch.einsum("bkc,chd->bhkd", c_kv, w_uv)
        scores = torch.einsum("bhqd,bhkd->bhqk", q, k) * (D ** -0.5)
        off = Sk - Sq
        qi = torch.arange(Sq)[:, None]
        kj = torch.arange(Sk)[None, :]
        cmask = kj <= (qi + off)
        scores = torch.where(cmask[None, None], scores, -1e9)
        p = _softmax(scores, axis=-1)
        ctx = torch.einsum("bhqk,bhkd->bhqd", p, v)
        return torch.einsum("bhqd,hdm->bqm", ctx, w_o)

    def _B_ref(x, w1, w3, w2):
        gate = torch.einsum("bsd,df->bsf", x, w1)
        up = torch.einsum("bsd,df->bsf", x, w3)
        h = _silu(gate) * up
        out = torch.einsum("bsf,fd->bsd", h, w2)
        return out

    x = A_x
    h = x + _A_ref(_layernorm(x, axis=-1), A_c_kv, A_w_q, A_w_uk, A_w_uv, A_w_o)
    h2 = h + _B_ref(_layernorm(h, axis=-1), B_w1, B_w3, B_w2)
    return h2
```

```python
import sys, struct

KNAME = "sequential_preLN__compressed_kv_cla__glu_gated_swiglu__decode_kernel"

FLAGS = 0x000000
XA    = 0x010000
XB    = 0x040000
XC1M  = 0x080000
XC2D  = 0x100000
XC2M  = 0x140000
XD1   = 0x180000
XD2   = 0x300000
XE    = 0x310000
TS    = 0x320000
XC1D  = 0x400000
C1J   = 33024
WS_BYTES = 0x1000000
OOB = 0x7FFFFF00

CPITCH = 1040
L_MISC = 0
L_XN  = L_MISC
L_HB  = L_MISC
L_CTRL = L_MISC + 3840
L_STAT = L_MISC + 3904
L_WQ  = 6656
L_CKV = 27136
L_QA  = 93696
L_WUV = 126976
L_WO  = 143360
LDS_BYTES = 163840
L_MB  = L_WQ
L_LB  = L_WQ + 512
L_PB  = L_WQ + 1024
L_DR  = L_WQ + 5120
L_UR  = L_WQ + 6144
L_W1  = L_CKV
L_W3  = L_CKV + 10240 + 128
L_W2  = L_CKV

POLL_LIMIT = 60000


def f2u(f):
    return struct.unpack("<I", struct.pack("<f", f))[0]


class Gen:
    def __init__(self, diag=False, P=None):
        self.L = []
        self.diag = diag
        self.lab = 0
        self.P = dict(d_a=6, d_b=10, d_c1=2, d_c2=10, d_d1=2, d_d2=10, d_e=10, backoff=1,
                      nt="nt", nt_sh="nt")
        if P:
            self.P.update(P)

    def I(self, s):
        for line in s.strip().split("\n"):
            self.L.append("  " + line.strip())

    def label(self, name):
        self.L.append(name + ":")

    def newlab(self, p="L"):
        self.lab += 1
        return f"{p}_{self.lab}"

    def nop(self, n):
        while n > 0:
            k = min(n, 16)
            self.I(f"s_nop {k-1}")
            n -= k

    def sleep(self, n):
        while n > 0:
            k = min(n, 127)
            self.I(f"s_sleep {k}")
            n -= k

    def stamp(self, idx, wave=None):
        if not self.diag:
            return
        self.I(f"""
        s_memrealtime s[96:97]
        s_waitcnt lgkmcnt(0)
        v_mov_b32 v164, s96
        v_mov_b32 v165, s97
        s_lshl_b32 s96, s2, 8
        s_add_u32 s96, s96, {TS + idx*8}
        v_mov_b32 v163, {OOB}
        s_mov_b32 s97, {64*(wave or 0)}
        v_cmp_eq_u32 vcc, s97, v0
        s_nop 1
        v_cndmask_b32 v163, v163, 0, vcc
        buffer_store_dwordx2 v[164:165], v163, s[60:63], s96 offen
        """)

    def poll(self, loads, regs, delay=0, tmp="v4"):
        if delay:
            self.sleep(delay)
        lp = self.newlab("Lp")
        dn = self.newlab("Ld")
        self.I("s_mov_b32 s92, 0")
        self.label(lp)
        for l in loads:
            self.I(l)
        self.I("s_waitcnt vmcnt(0)")
        r = list(regs)
        if len(r) == 1:
            self.I(f"v_mov_b32 {tmp}, v{r[0]}")
            r = []
        else:
            self.I(f"v_max_u32 {tmp}, v{r[0]}, v{r[1]}")
            r = r[2:]
        while len(r) >= 2:
            self.I(f"v_max3_u32 {tmp}, {tmp}, v{r[0]}, v{r[1]}")
            r = r[2:]
        if r:
            self.I(f"v_max_u32 {tmp}, {tmp}, v{r[0]}")
        self.I(f"""
        v_cmp_ne_u32 vcc, -1, {tmp}
        s_add_u32 s92, s92, 1
        s_cmp_eq_u64 vcc, exec
        s_cbranch_scc1 {dn}
        s_sleep {self.P['backoff']}
        s_cmp_lt_u32 s92, {POLL_LIMIT}
        s_cbranch_scc1 {lp}
        """)
        self.label(dn)

    def wave_allreduce(self, v, t, op="v_add_f32", rors=(8, 4, 2, 1)):
        for r in rors:
            self.I(f"s_nop 1\n{op}_dpp v{v}, v{v}, v{v} row_ror:{r} row_mask:0xf bank_mask:0xf")
        self.I(f"""
        v_mov_b32 v{t}, v{v}
        s_nop 1
        v_permlane16_swap_b32 v{v}, v{t}
        {op} v{v}, v{v}, v{t}
        v_mov_b32 v{t}, v{v}
        s_nop 1
        v_permlane32_swap_b32 v{v}, v{t}
        {op} v{v}, v{v}, v{t}
        """)

    def dma(self, srd, voff, soff_sgpr, m0_expr, flag):
        self.I(f"s_mov_b32 m0, {m0_expr}")
        self.I("s_nop 0")
        self.I(f"buffer_load_dwordx4 {voff}, {srd}, {soff_sgpr} offen {flag} lds")


def build(diag=False, P=None):
    g = Gen(diag, P)
    I = g.I
    P = g.P
    NT = P["nt"]
    NTS = P["nt_sh"]
    S_X, S_CKV, S_WQ, S_WUK, S_WUV, S_WO, S_W1, S_W3, S_W2, S_OUT, S_DBG, S_WS = [
        f"s[{16+4*i}:{19+4*i}]" for i in range(12)]
    sWV, sX, sS, sH, sSUB, sB, sKEY, sFC, sUP = "s3", "s4", "s5", "s6", "s7", "s8", "s9", "s10", "s11"
    hdr = []
    hdr.append(f"; @launch grid=(256,1,1) block=(640,1,1) lds={LDS_BYTES}")
    hdr.append('.amdgcn_target "amdgcn-amd-amdhsa--gfx950"')
    hdr.append(".text")
    hdr.append(f".globl {KNAME}")
    hdr.append(".p2align 8")
    hdr.append(f".type {KNAME},@function")
    hdr.append(f"{KNAME}:")

    I(f"""
    s_cmp_ge_u32 s2, 256
    s_cbranch_scc1 L_end
    s_load_dwordx16 s[64:79], s[0:1], 0
    s_load_dwordx8 s[80:87], s[0:1], 64
    s_load_dwordx2 s[88:89], s[0:1], 96
    v_lshrrev_b32 v4, 6, v0
    v_and_b32 v1, 63, v0
    v_readfirstlane_b32 {sWV}, v4
    v_lshrrev_b32 v2, 4, v1
    v_and_b32 v3, 15, v1
    s_and_b32 {sX}, s2, 7
    s_lshr_b32 {sS}, s2, 3
    s_and_b32 s12, {sS}, 3
    s_lshl_b32 s12, s12, 3
    s_add_u32 {sH}, {sX}, s12
    s_lshr_b32 {sSUB}, {sS}, 2
    s_lshr_b32 {sB}, {sX}, 2
    s_and_b32 s12, {sX}, 3
    s_lshl_b32 s12, s12, 11
    s_lshl_b32 s13, {sS}, 6
    s_add_u32 {sKEY}, s12, s13
    s_lshr_b32 s12, {sS}, 3
    s_lshl_b32 s12, s12, 3
    s_add_u32 s12, s12, {sX}
    s_cmp_lt_u32 s12, 27
    s_cselect_b32 {sUP}, 1, 0
    s_lshl_b32 s12, s12, 3
    s_and_b32 s13, {sS}, 7
    s_add_u32 s12, s12, s13
    s_sub_u32 s14, {sX}, 3
    s_lshl_b32 s14, s14, 3
    s_add_u32 s14, s14, s13
    s_cmp_eq_u32 {sUP}, 1
    s_cselect_b32 {sFC}, s12, s14
    s_waitcnt lgkmcnt(0)
    """)
    ptr = {0: 64, 1: 66, 2: 68, 3: 70, 4: 72, 5: 74, 6: 78, 7: 80, 8: 82, 9: 84, 10: 86, 11: 88}
    sizes = [2560, 16777216, 5242880, 4194304, 4194304, 5242880, 2211840, 2211840, 2211840, 2560, 256, WS_BYTES]
    for i in range(12):
        b = 16 + 4 * i
        I(f"s_mov_b32 s{b}, s{ptr[i]}\ns_mov_b32 s{b+1}, s{ptr[i]+1}\ns_mov_b32 s{b+2}, {sizes[i]}\ns_mov_b32 s{b+3}, 0x20000")
    g.stamp(0)
    I(f"s_cmp_ge_u32 {sWV}, 8\ns_cbranch_scc1 L_loader")

    I(f"s_cmp_ge_u32 {sWV}, 4\ns_cbranch_scc1 L_st_hi")
    I(f"""
    v_lshlrev_b32 v4, 13, v3
    v_lshl_add_u32 v4, v2, 4, v4
    s_lshl_b32 s12, {sSUB}, 6
    s_lshl_b32 s13, {sWV}, 4
    s_add_u32 s12, s12, s13
    s_lshl_b32 s12, s12, 13
    s_lshl_b32 s13, {sH}, 8
    s_add_u32 s12, s12, s13
    """)
    for t in range(4):
        I(f"buffer_load_dwordx4 v[{16+4*t}:{19+4*t}], v4, {S_WUK}, s12 offen offset:{64*t} {NT}")
    I("s_branch L_B0")
    g.label("L_st_hi")
    I(f"s_cmp_ge_u32 {sWV}, 6\ns_cbranch_scc1 L_st_67")
    I(f"""
    s_sub_u32 s12, {sWV}, 4
    s_mul_i32 s12, s12, 1280
    v_mul_u32_u24 v4, 20, v1
    buffer_load_dwordx4 v[8:11], v4, {S_X}, s12 offen
    buffer_load_dword v12, v4, {S_X}, s12 offen offset:16
    s_waitcnt vmcnt(0)
    """)
    for i in range(5):
        I(f"v_lshlrev_b32 v{16+2*i}, 16, v{8+i}\nv_and_b32 v{17+2*i}, 0xffff0000, v{8+i}")
    I("v_add_f32 v5, v16, v17")
    for i in range(2, 10):
        I(f"v_add_f32 v5, v5, v{16+i}")
    g.wave_allreduce(5, 6)
    I(f"v_mul_f32 v5, {f2u(1.0/640):#x}, v5")
    for i in range(10):
        I(f"v_sub_f32 v{16+i}, v{16+i}, v5")
    I("v_mul_f32 v5, v16, v16")
    for i in range(1, 10):
        I(f"v_fmac_f32 v5, v{16+i}, v{16+i}")
    g.wave_allreduce(5, 6)
    I(f"""
    v_mov_b32 v6, {f2u(1e-5):#x}
    s_mov_b32 s13, {f2u(1.0/640):#x}
    v_fma_f32 v5, v5, s13, v6
    v_rsq_f32 v5, v5
    s_nop 0
    """)
    for i in range(10):
        I(f"v_mul_f32 v{16+i}, v{16+i}, v5")
    for i in range(5):
        I(f"v_cvt_pk_bf16_f32 v{8+i}, v{16+2*i}, v{17+2*i}")
    I(f"v_add_u32 v4, s12, v4")
    for i in range(5):
        I(f"ds_write_b32 v4, v{8+i} offset:{L_XN+4*i}")
    I("s_branch L_B0")
    g.label("L_st_67")
    I(f"s_cmp_eq_u32 {sWV}, 6\ns_cbranch_scc1 L_B0")
    I(f"""
    v_mov_b32 v8, -1
    v_mov_b32 v9, -1
    v_mov_b32 v10, -1
    v_mov_b32 v11, -1
    v_lshlrev_b32 v4, 4, v1
    s_cmp_lg_u32 s2, 0
    s_cbranch_scc1 L_nononce
    s_memrealtime s[90:91]
    s_waitcnt lgkmcnt(0)
    s_or_b32 s90, s90, 1
    v_mov_b32 v12, s90
    v_mov_b32 v13, s91
    v_mov_b32 v5, {OOB}
    v_cmp_eq_u32 vcc, 0, v1
    s_nop 1
    v_cndmask_b32 v5, v5, 0, vcc
    buffer_store_dwordx2 v[12:13], v5, {S_DBG}, 0 offen sc1
    """)
    g.label("L_nononce")
    I(f"""
    v_mov_b32 v6, {OOB}
    v_cmp_gt_u32 vcc, 32, v1
    s_lshl_b32 s12, {sH}, 3
    s_add_u32 s12, s12, {sSUB}
    v_cndmask_b32 v5, v6, v4, vcc
    s_lshl_b32 s13, s12, 9
    s_add_u32 s13, s13, {XA}
    buffer_store_dwordx4 v[8:11], v5, {S_WS}, s13 offen sc1
    """)
    I(f"""
    v_lshrrev_b32 v7, 3, v1
    v_lshlrev_b32 v7, 15, v7
    v_and_b32 v12, 7, v1
    v_lshl_add_u32 v7, v12, 4, v7
    v_cmp_gt_u32 vcc, 16, v1
    s_lshl_b32 s13, {sH}, 10
    s_lshl_b32 s14, {sSUB}, 7
    v_cndmask_b32 v5, v6, v7, vcc
    s_add_u32 s13, s13, s14
    s_add_u32 s13, s13, {XB}
    buffer_store_dwordx4 v[8:11], v5, {S_WS}, s13 offen sc1
    """)
    I(f"""
    v_lshlrev_b32 v7, 13, v2
    v_lshl_add_u32 v7, v3, 4, v7
    s_lshl_b32 s13, {sX}, 16
    s_lshl_b32 s14, {sS}, 8
    s_add_u32 s13, s13, s14
    s_add_u32 s13, s13, {XC1M}
    buffer_store_dwordx4 v[8:11], v7, {S_WS}, s13 offen sc1
    s_add_u32 s13, s13, 0x8000
    buffer_store_dwordx4 v[8:11], v7, {S_WS}, s13 offen sc1
    """)
    I(f"""
    s_lshl_b32 s13, {sS}, 3
    s_add_u32 s13, s13, {sX}
    s_lshl_b32 s14, s13, 10
    s_add_u32 s14, s14, {XC2D}
    buffer_store_dwordx4 v[8:11], v4, {S_WS}, s14 offen sc1
    v_cmp_eq_u32 vcc, 0, v1
    s_lshl_b32 s14, s13, 3
    s_add_u32 s14, s14, {XC2M}
    v_cndmask_b32 v5, v6, 0, vcc
    buffer_store_dwordx2 v[8:9], v5, {S_WS}, s14 offen sc1
    """)
    I(f"""
    s_lshl_b32 s13, {sX}, 5
    s_add_u32 s13, s13, {sS}
    s_mul_i32 s13, s13, 5120
    s_add_u32 s13, s13, {XD1}
    """)
    for i in range(4):
        I(f"buffer_store_dwordx4 v[8:11], v4, {S_WS}, s13 offen offset:{1024*i} sc1")
    I(f"s_add_u32 s13, s13, 4096\nbuffer_store_dwordx4 v[8:11], v4, {S_WS}, s13 offen sc1")
    I(f"""
    s_cmp_ge_u32 {sS}, 20
    s_cbranch_scc1 L_nod2
    v_lshrrev_b32 v7, 3, v1
    v_mul_u32_u24 v7, 2560, v7
    v_lshl_add_u32 v7, v12, 4, v7
    v_cmp_gt_u32 vcc, 16, v1
    s_mul_i32 s13, {sX}, 5120
    s_lshl_b32 s14, {sS}, 7
    v_cndmask_b32 v5, v6, v7, vcc
    s_add_u32 s13, s13, s14
    s_add_u32 s13, s13, {XD2}
    buffer_store_dwordx4 v[8:11], v5, {S_WS}, s13 offen sc1
    """)
    g.label("L_nod2")
    I(f"""
    s_cmp_eq_u32 {sUP}, 0
    s_cbranch_scc1 L_noxe
    v_mul_u32_u24 v7, 3456, v1
    v_cmp_gt_u32 vcc, 2, v1
    s_lshl_b32 s13, {sFC}, 4
    s_add_u32 s13, s13, {XE}
    v_cndmask_b32 v5, v6, v7, vcc
    buffer_store_dwordx4 v[8:11], v5, {S_WS}, s13 offen sc1
    """)
    g.label("L_noxe")
    lp, dn = g.newlab("Lp"), g.newlab("Ld")
    I("s_mov_b32 s92, 0\nv_mov_b32 v5, 0")
    g.label(lp)
    I(f"""
    buffer_load_dwordx2 v[12:13], v5, {S_DBG}, 0 offen sc1
    s_waitcnt vmcnt(0)
    v_cmp_ne_u32 vcc, 0, v12
    s_add_u32 s92, s92, 1
    s_cmp_eq_u64 vcc, exec
    s_cbranch_scc1 {dn}
    s_sleep 1
    s_cmp_lt_u32 s92, {POLL_LIMIT}
    s_cbranch_scc1 {lp}
    """)
    g.label(dn)
    I(f"""
    s_getreg_b32 s13, hwreg(HW_REG_XCC_ID)
    v_mov_b32 v14, s13
    v_mov_b32 v15, 0
    v_cmp_eq_u32 vcc, 0, v1
    s_lshl_b32 s13, s12, 4
    s_add_u32 s13, s13, {FLAGS}
    v_cndmask_b32 v5, v6, 0, vcc
    buffer_store_dwordx4 v[12:15], v5, {S_WS}, s13 offen sc1
    v_mov_b32 v5, 0
    ds_write_b64 v5, v[12:13] offset:{L_CTRL}
    """)
    g.label("L_B0")
    I("s_waitcnt lgkmcnt(0)\ns_barrier")
    g.stamp(1)

    I(f"""
    v_lshrrev_b32 v4, 2, v1
    v_and_b32 v5, 7, v4
    v_lshlrev_b32 v5, 1, v5
    v_bfe_u32 v6, v1, 1, 1
    s_lshl_b32 s12, {sWV}, 1
    v_add_u32 v6, s12, v6
    v_xor_b32 v6, v6, v5
    v_lshlrev_b32 v6, 4, v6
    v_lshl_add_u32 v6, v4, 8, v6
    v_and_b32 v5, 1, v1
    v_lshl_add_u32 v6, v5, 3, v6
    v_add_u32 v6, {L_WQ}, v6
    v_and_b32 v5, 1, v3
    v_mul_u32_u24 v5, 1280, v5
    v_lshl_add_u32 v5, v2, 3, v5
    s_mul_i32 s12, {sSUB}, 160
    v_add_u32 v5, s12, v5
    v_add_u32 v5, {L_XN}, v5
    """)
    for st in range(5):
        I(f"ds_read_b64_tr_b16 v[{32+2*st}:{33+2*st}], v6 offset:{4096*st}")
        I(f"ds_read_b64 v[{44+2*st}:{45+2*st}], v5 offset:{32*st}")
    I(f"""
    v_mov_b32 v7, 0
    ds_read_b64 v[14:15], v7 offset:{L_CTRL}
    v_mov_b32 v8, 0
    v_mov_b32 v9, 0
    v_mov_b32 v10, 0
    v_mov_b32 v11, 0
    s_waitcnt lgkmcnt(0)
    """)
    for st in range(5):
        I(f"v_mfma_f32_16x16x16_bf16 v[8:11], v[{32+2*st}:{33+2*st}], v[{44+2*st}:{45+2*st}], v[8:11]")
    I(f"""
    v_lshlrev_b32 v5, 8, v3
    v_lshl_add_u32 v5, v2, 3, v5
    v_mov_b32 v6, {OOB}
    v_cmp_gt_u32 vcc, 2, v3
    s_lshl_b32 s12, {sH}, 3
    s_add_u32 s12, s12, {sSUB}
    v_cndmask_b32 v5, v6, v5, vcc
    s_lshl_b32 s12, s12, 9
    s_lshl_b32 s13, {sWV}, 5
    s_add_u32 s12, s12, s13
    s_add_u32 s12, s12, {XA}
    v_cvt_pk_bf16_f32 v12, v8, v9
    v_cvt_pk_bf16_f32 v13, v10, v11
    buffer_store_dwordx2 v[12:13], v5, {S_WS}, s12 offen sc1
    """)
    I(f"""
    v_min_u32 v4, 39, v1
    v_lshlrev_b32 v4, 3, v4
    s_mul_i32 s12, {sWV}, 320
    buffer_load_dwordx2 v[160:161], v4, {S_X}, s12 offen
    """)
    g.stamp(2)
    I(f"s_cmp_ge_u32 {sWV}, 4\ns_cbranch_scc1 L_sb_hi")
    lp, dn = g.newlab("Lp"), g.newlab("Ld")
    I(f"""
    v_and_b32 v4, 7, v1
    v_lshlrev_b32 v4, 4, v4
    s_lshl_b32 s12, {sH}, 7
    s_add_u32 s12, s12, {FLAGS}
    s_mov_b32 s92, 0
    """)
    g.label(lp)
    I(f"""
    buffer_load_dwordx2 v[8:9], v4, {S_WS}, s12 offen sc1
    s_waitcnt vmcnt(0)
    v_xor_b32 v8, v8, v14
    v_xor_b32 v9, v9, v15
    v_or_b32 v8, v8, v9
    v_cmp_eq_u32 vcc, 0, v8
    s_add_u32 s92, s92, 1
    s_cmp_eq_u64 vcc, exec
    s_cbranch_scc1 {dn}
    s_sleep 1
    s_cmp_lt_u32 s92, {POLL_LIMIT}
    s_cbranch_scc1 {lp}
    """)
    g.label(dn)
    I(f"""
    v_lshlrev_b32 v5, 8, v3
    v_lshl_add_u32 v5, v2, 4, v5
    s_lshl_b32 s12, {sH}, 12
    s_add_u32 s12, s12, {XA}
    """)
    g.poll([f"buffer_load_dwordx4 v[{32+4*t}:{35+4*t}], v5, {S_WS}, s12 offen offset:{64*t} sc1" for t in range(4)],
           range(32, 48), delay=P["d_a"])
    g.stamp(3)
    I("v_mov_b32 v8, 0\nv_mov_b32 v9, 0\nv_mov_b32 v10, 0\nv_mov_b32 v11, 0\ns_nop 1")
    for t in range(4):
        I(f"v_mfma_f32_16x16x32_bf16 v[8:11], v[{16+4*t}:{19+4*t}], v[{32+4*t}:{35+4*t}], v[8:11]")
    SC = (128 ** -0.5) * 1.4426950408889634
    I(f"""
    v_lshlrev_b32 v5, 15, v3
    v_lshl_add_u32 v5, v2, 3, v5
    v_mov_b32 v6, {OOB}
    v_cmp_gt_u32 vcc, 2, v3
    s_lshl_b32 s12, {sH}, 10
    s_lshl_b32 s13, {sSUB}, 7
    v_cndmask_b32 v5, v6, v5, vcc
    s_add_u32 s12, s12, s13
    s_lshl_b32 s13, {sWV}, 5
    s_add_u32 s12, s12, s13
    s_add_u32 s12, s12, {XB}
    """)
    for r in (8, 4, 2):
        for k in range(4):
            I(f"v_add_f32_dpp v{8+k}, v{8+k}, v{8+k} row_ror:{r} row_mask:0xf bank_mask:0xf")
    for k in range(4):
        I(f"v_mul_f32 v{8+k}, {f2u(SC):#x}, v{8+k}")
    I(f"""
    v_cvt_pk_bf16_f32 v12, v8, v9
    v_cvt_pk_bf16_f32 v13, v10, v11
    buffer_store_dwordx2 v[12:13], v5, {S_WS}, s12 offen sc1
    """)
    g.stamp(4)
    I("s_branch L_B0b")
    g.label("L_sb_hi")
    I(f"s_cmp_lg_u32 {sWV}, 7\ns_cbranch_scc1 L_B0b")
    lp, dn = g.newlab("Lp"), g.newlab("Ld")
    I("v_lshlrev_b32 v4, 4, v1\ns_mov_b32 s92, 0")
    g.label(lp)
    for i in range(4):
        I(f"buffer_load_dwordx4 v[{32+4*i}:{35+4*i}], v4, {S_WS}, 0 offen offset:{FLAGS+1024*i} sc1")
    I("s_waitcnt vmcnt(0)\nv_mov_b32 v8, 0")
    for i in range(4):
        I(f"v_xor_b32 v9, v{32+4*i}, v14\nv_xor_b32 v10, v{33+4*i}, v15\nv_or3_b32 v8, v8, v9, v10")
    I(f"""
    v_cmp_eq_u32 vcc, 0, v8
    s_add_u32 s92, s92, 1
    s_cmp_eq_u64 vcc, exec
    s_cbranch_scc1 {dn}
    s_sleep 1
    s_cmp_lt_u32 s92, {POLL_LIMIT}
    s_cbranch_scc1 {lp}
    """)
    g.label(dn)
    I(f"""
    s_getreg_b32 s13, hwreg(HW_REG_XCC_ID)
    v_xor_b32 v8, s13, v34
    v_xor_b32 v9, s13, v38
    v_xor_b32 v10, s13, v42
    v_xor_b32 v11, s13, v46
    v_or3_b32 v8, v8, v9, v10
    v_or_b32 v8, v8, v11
    v_lshrrev_b32 v9, 3, v1
    v_cmp_eq_u32 vcc, {sX}, v9
    s_nop 1
    v_cndmask_b32 v8, 0, v8, vcc
    v_cmp_eq_u32 vcc, 0, v8
    s_cmp_eq_u64 vcc, exec
    s_cselect_b32 s13, 1, 0
    v_mov_b32 v8, s13
    v_mov_b32 v5, 0
    ds_write_b32 v5, v8 offset:{L_CTRL+8}
    """)
    g.label("L_B0b")
    I("s_waitcnt lgkmcnt(0)\ns_barrier")
    I(f"""
    v_lshlrev_b32 v5, 4, v1
    s_lshl_b32 s12, {sB}, 15
    s_lshl_b32 s13, {sWV}, 12
    s_add_u32 s12, s12, s13
    s_add_u32 s12, s12, {XB}
    v_mov_b32 v7, 0
    ds_read_b32 v6, v7 offset:{L_CTRL+8}
    s_waitcnt lgkmcnt(0)
    v_readfirstlane_b32 s15, v6
    """)
    g.poll([f"buffer_load_dwordx4 v[{32+4*t}:{35+4*t}], v5, {S_WS}, s12 offen offset:{1024*t} sc1" for t in range(4)],
           range(32, 48), delay=P["d_b"])
    g.stamp(5)
    I(f"s_mul_i32 s12, {sWV}, {4*CPITCH}\nv_add_u32 v5, s12, v5\nv_add_u32 v5, {L_QA}, v5")
    for t in range(4):
        I(f"ds_write_b128 v5, v[{32+4*t}:{35+4*t}] offset:{CPITCH*t}")
    I("s_waitcnt lgkmcnt(0)\ns_barrier")
    I(f"""
    s_lshr_b32 s12, {sWV}, 2
    s_and_b32 s13, {sWV}, 3
    s_lshl_b32 s14, s12, 4
    v_add_u32 v4, s14, v3
    v_mul_u32_u24 v4, {CPITCH}, v4
    v_lshl_add_u32 v4, v2, 8, v4
    v_add_u32 v4, {L_QA}, v4
    """)
    for j in range(16):
        I(f"ds_read_b128 v[{32+4*j}:{35+4*j}], v4 offset:{16*j}")
    I(f"""
    v_and_b32 v5, 7, v3
    v_lshlrev_b32 v5, 1, v5
    v_lshrrev_b32 v6, 3, v3
    v_add_u32 v5, v5, v6
    s_lshl_b32 s14, s13, 4
    v_add_u32 v5, s14, v5
    v_mul_u32_u24 v5, {CPITCH}, v5
    v_lshl_add_u32 v5, v2, 8, v5
    v_add_u32 v5, {L_CKV}, v5
    """)
    I(f"""
    v_and_b32 v6, 1, v2
    v_lshlrev_b32 v6, 3, v6
    v_bfe_u32 v7, v1, 2, 2
    v_lshl_add_u32 v6, v7, 1, v6
    v_lshrrev_b32 v7, 1, v2
    v_add_u32 v6, v6, v7
    v_mul_u32_u24 v6, {CPITCH}, v6
    v_and_b32 v7, 3, v1
    v_lshl_add_u32 v6, v7, 3, v6
    s_lshl_b32 s14, {sWV}, 7
    s_add_u32 s14, s14, {L_CKV}
    v_add_u32 v6, s14, v6
    v_mov_b32 v8, 0
    v_mov_b32 v9, 0
    v_mov_b32 v10, 0
    v_mov_b32 v11, 0
    s_waitcnt lgkmcnt(0)
    s_barrier
    """)
    g.stamp(6)
    for j in range(8):
        I(f"ds_read_b128 v[{96+4*j}:{99+4*j}], v5 offset:{16*j}")
    for j in range(8):
        I(f"s_waitcnt lgkmcnt(7)")
        I(f"v_mfma_f32_16x16x32_bf16 v[8:11], v[{96+4*j}:{99+4*j}], v[{32+4*j}:{35+4*j}], v[8:11]")
        I(f"ds_read_b128 v[{96+4*j}:{99+4*j}], v5 offset:{16*(j+8)}")
    trs = []
    for tau in range(4):
        for kb in range(2):
            for t in range(2):
                trs.append((tau, kb, t))
    ti = 0
    for j in range(8):
        I(f"s_waitcnt lgkmcnt({min(15, 7 - j + 2*j)})")
        I(f"v_mfma_f32_16x16x32_bf16 v[8:11], v[{96+4*j}:{99+4*j}], v[{64+4*j}:{67+4*j}], v[8:11]")
        for _ in range(2):
            tau, kb, t = trs[ti]
            ti += 1
            dst = PVA + (tau * 2 + kb) * 4 + 2 * t
            I(f"ds_read_b64_tr_b16 v[{dst}:{dst+1}], v6 offset:{(32*kb+16*t)*CPITCH + 32*tau}")
    I(f"""
    s_lshl_b32 s14, s12, 8
    v_lshl_add_u32 v7, v3, 4, s14
    v_add_u32 v7, {L_MB}, v7
    s_lshl_b32 s14, s13, 2
    v_add_u32 v12, s14, v7
    s_nop 3
    v_max_f32 v4, v8, v9
    v_max3_f32 v4, v4, v10, v11
    """)
    g.wave_allreduce(4, 13, op="v_max_f32", rors=())
    I(f"""
    ds_write_b32 v12, v4
    s_waitcnt lgkmcnt(0)
    s_barrier
    """)
    I(f"""
    ds_read_b128 v[96:99], v7
    s_waitcnt lgkmcnt(0)
    v_max_f32 v4, v96, v97
    v_max3_f32 v4, v4, v98, v99
    v_sub_f32 v8, v8, v4
    v_sub_f32 v9, v9, v4
    v_sub_f32 v10, v10, v4
    v_sub_f32 v11, v11, v4
    v_exp_f32 v8, v8
    v_exp_f32 v9, v9
    v_exp_f32 v10, v10
    v_exp_f32 v11, v11
    s_nop 0
    v_cvt_pk_bf16_f32 v14, v8, v9
    v_cvt_pk_bf16_f32 v15, v10, v11
    v_add_f32 v4, v8, v9
    v_add_f32 v13, v10, v11
    v_add_f32 v4, v4, v13
    """)
    I(f"""
    s_lshl_b32 s14, s12, 1
    s_lshr_b32 s93, s13, 1
    s_add_u32 s14, s14, s93
    s_lshl_b32 s14, s14, 10
    s_and_b32 s93, s13, 1
    s_lshl_b32 s93, s93, 3
    s_add_u32 s14, s14, s93
    v_lshl_add_u32 v5, v1, 4, s14
    ds_write_b64 v5, v[14:15] offset:{L_PB}
    """)
    g.wave_allreduce(4, 13, op="v_add_f32", rors=())
    I(f"""
    ds_write_b32 v12, v4 offset:512
    s_waitcnt lgkmcnt(0)
    s_barrier
    """)
    I("v_lshlrev_b32 v5, 4, v1")
    for q in range(4):
        I(f"ds_read_b128 v[{64+4*q}:{67+4*q}], v5 offset:{L_PB+1024*q}")
    I(f"""
    v_and_b32 v7, 31, v1
    v_lshlrev_b32 v7, 4, v7
    v_add_u32 v7, {L_MB}, v7
    ds_read_b128 v[96:99], v7
    ds_read_b128 v[100:103], v7 offset:512
    """)
    for r in range(32, 64):
        I(f"v_mov_b32 v{r}, 0")
    I("s_waitcnt lgkmcnt(2)")
    for kb in range(2):
        for tau in range(4):
            for ht in range(2):
                acc = 32 + (tau * 2 + ht) * 4
                a = PVA + (tau * 2 + kb) * 4
                pb = 64 + (ht * 2 + kb) * 4
                I(f"v_mfma_f32_16x16x32_bf16 v[{acc}:{acc+3}], v[{a}:{a+3}], v[{pb}:{pb+3}], v[{acc}:{acc+3}]")
    I(f"""
    s_waitcnt lgkmcnt(0)
    v_max_f32 v8, v96, v97
    v_max3_f32 v8, v8, v98, v99
    v_add_f32 v9, v100, v101
    v_add_f32 v10, v102, v103
    v_add_f32 v9, v9, v10
    s_mov_b32 s14, {C1J}
    v_mul_lo_u32 v5, v3, s14
    v_lshl_add_u32 v5, v2, 3, v5
    s_mul_i32 s12, {sX}, {32*C1J}
    s_lshl_b32 s13, {sS}, 10
    s_add_u32 s12, s12, s13
    s_lshl_b32 s13, {sWV}, 7
    s_add_u32 s12, s12, s13
    s_add_u32 s12, s12, {XC1D}
    s_add_u32 s13, s12, {16*C1J}
    """)
    for tau in range(4):
        for ht in range(2):
            acc = 32 + (tau * 2 + ht) * 4
            I(f"v_cvt_pk_bf16_f32 v{acc}, v{acc}, v{acc+1}\nv_cvt_pk_bf16_f32 v{acc+1}, v{acc+2}, v{acc+3}")
    I(f"""
    v_lshlrev_b32 v7, 3, v1
    v_mov_b32 v6, {OOB}
    v_cmp_gt_u32 vcc, 32, v1
    s_lshl_b32 s14, {sX}, 3
    s_add_u32 s14, s14, {sWV}
    v_cndmask_b32 v7, v6, v7, vcc
    s_lshl_b32 s14, s14, 13
    s_lshl_b32 s93, {sS}, 8
    s_add_u32 s93, s14, s93
    s_add_u32 s93, s93, {XC1M}
    s_add_u32 s14, s14, {XC1M}
    s_cmp_eq_u32 s15, 1
    s_cbranch_scc1 L_c1_fast
    """)
    for fl, lab in (("sc1", None), ("", "L_c1_fast")):
        if lab:
            g.label(lab)
        for tau in range(4):
            for ht in range(2):
                acc = 32 + (tau * 2 + ht) * 4
                I(f"buffer_store_dwordx2 v[{acc}:{acc+1}], v5, {S_WS}, {'s13' if ht else 's12'} offen offset:{32*tau} {fl}")
        I("s_waitcnt vmcnt(0)")
        I(f"buffer_store_dwordx2 v[8:9], v7, {S_WS}, s93 offen {fl}")
        if not lab:
            I("s_branch L_c1_done")
    g.label("L_c1_done")
    g.stamp(7)
    I(f"""
    v_lshrrev_b32 v4, 3, v1
    v_lshlrev_b32 v5, 8, v4
    s_lshl_b32 s12, {sS}, 3
    s_add_u32 s14, s14, s12
    v_and_b32 v6, 7, v1
    v_lshlrev_b32 v7, 10, v4
    v_lshl_add_u32 v7, v6, 4, v7
    s_lshl_b32 s12, {sX}, 5
    s_add_u32 s12, s12, {sS}
    s_mul_i32 s12, s12, {C1J}
    s_lshl_b32 s13, {sWV}, 7
    s_add_u32 s12, s12, s13
    s_add_u32 s12, s12, {XC1D}
    """)
    g.poll([f"buffer_load_dwordx2 v[{32+2*i}:{33+2*i}], v5, {S_WS}, s14 offen offset:{2048*(i&1)} sc1" +
            ("\ns_add_u32 s14, s14, 4096" if i == 1 else ("\ns_sub_u32 s14, s14, 4096" if i == 3 else ""))
            for i in range(4)], range(32, 40), delay=P["d_c1"])
    for i in range(4):
        I(f"buffer_load_dwordx4 v[{64+4*i}:{67+4*i}], v7, {S_WS}, s12 offen sc1")
        if i < 3:
            I("s_add_u32 s12, s12, 8192")
    g.stamp(8)
    I("v_max_f32 v8, v32, v34\nv_max3_f32 v8, v8, v36, v38")
    g.wave_allreduce(8, 9, op="v_max_f32", rors=(8,))
    for i in range(4):
        I(f"v_sub_f32 v{32+2*i}, v{32+2*i}, v8")
    for i in range(4):
        I(f"v_exp_f32 v{32+2*i}, v{32+2*i}")
    I("s_nop 0\nv_mul_f32 v9, v32, v33\nv_fmac_f32 v9, v34, v35\nv_fmac_f32 v9, v36, v37\nv_fmac_f32 v9, v38, v39")
    g.wave_allreduce(9, 10, op="v_add_f32", rors=(8,))
    I("s_waitcnt vmcnt(0)")
    for i in range(4):
        for d in range(4):
            src = 64 + 4 * i + d
            I(f"v_lshlrev_b32 v10, 16, v{src}\nv_and_b32 v11, 0xffff0000, v{src}")
            if i == 0:
                I(f"v_mul_f32 v{40+2*d}, v32, v10\nv_mul_f32 v{41+2*d}, v32, v11")
            else:
                I(f"v_fmac_f32 v{40+2*d}, v{32+2*i}, v10\nv_fmac_f32 v{41+2*d}, v{32+2*i}, v11")
    I("s_nop 1")
    for k in (0, 1, 4, 5):
        I(f"v_permlane16_swap_b32 v{40+k}, v{42+k}")
    for k in (0, 1, 4, 5):
        I(f"v_add_f32 v{40+k}, v{40+k}, v{42+k}")
    I("s_nop 1")
    for k in (0, 1):
        I(f"v_permlane32_swap_b32 v{40+k}, v{44+k}")
    for k in (0, 1):
        I(f"v_add_f32 v{40+k}, v{40+k}, v{44+k}")
    I(f"""
    v_lshlrev_b32 v5, 4, v6
    v_lshl_add_u32 v5, v2, 2, v5
    v_add_f32_dpp v40, v40, v40 row_ror:8 row_mask:0xf bank_mask:0xf
    v_add_f32_dpp v41, v41, v41 row_ror:8 row_mask:0xf bank_mask:0xf
    v_mov_b32 v6, {OOB}
    v_cmp_gt_u32 vcc, 8, v3
    s_lshl_b32 s12, {sS}, 3
    s_add_u32 s12, s12, {sX}
    v_cndmask_b32 v5, v6, v5, vcc
    s_lshl_b32 s13, s12, 10
    s_lshl_b32 s14, {sWV}, 7
    s_add_u32 s13, s13, s14
    s_add_u32 s13, s13, {XC2D}
    v_cvt_pk_bf16_f32 v40, v40, v41
    buffer_store_dword v40, v5, {S_WS}, s13 offen sc1
    v_cmp_eq_u32 vcc, 0, v0
    s_lshl_b32 s13, s12, 3
    s_add_u32 s13, s13, {XC2M}
    v_cndmask_b32 v5, v6, 0, vcc
    buffer_store_dwordx2 v[8:9], v5, {S_WS}, s13 offen sc1
    """)
    g.stamp(9)
    I("s_barrier")
    I(f"""
    v_bfe_u32 v4, v1, 2, 2
    v_lshl_add_u32 v4, v2, 3, v4
    v_lshlrev_b32 v4, 5, v4
    v_and_b32 v5, 3, v1
    v_lshl_add_u32 v4, v5, 3, v4
    s_lshl_b32 s12, {sWV}, 11
    v_add_u32 v4, s12, v4
    v_add_u32 v4, {L_WUV}, v4
    """)
    for t in range(2):
        for tt in range(2):
            I(f"ds_read_b64_tr_b16 v[{96+4*t+2*tt}:{97+4*t+2*tt}], v4 offset:{(32*t+4*tt)*32}")
    I(f"""
    v_lshrrev_b32 v4, 2, v1
    v_mul_u32_u24 v4, 1280, v4
    v_lshl_add_u32 v4, v5, 3, v4
    s_mul_i32 s12, {sWV}, 160
    v_add_u32 v4, s12, v4
    v_add_u32 v4, {L_WO}, v4
    """)
    for u in range(5):
        I(f"ds_read_b64_tr_b16 v[{104+2*u}:{105+2*u}], v4 offset:{32*u}")
    I(f"""
    v_and_b32 v5, 7, v3
    v_lshlrev_b32 v5, 10, v5
    v_lshl_add_u32 v5, v2, 4, v5
    s_lshl_b32 s12, {sH}, 13
    s_lshl_b32 s13, {sWV}, 7
    s_add_u32 s12, s12, s13
    s_add_u32 s12, s12, {XC2D}
    v_and_b32 v6, 1, v2
    v_lshlrev_b32 v6, 5, v6
    s_lshl_b32 s13, {sH}, 6
    s_add_u32 s13, s13, {XC2M}
    """)
    g.poll([f"buffer_load_dwordx4 v[32:35], v5, {S_WS}, s12 offen sc1",
            f"buffer_load_dwordx4 v[36:39], v5, {S_WS}, s12 offen offset:64 sc1",
            f"buffer_load_dwordx4 v[40:43], v6, {S_WS}, s13 offen sc1",
            f"buffer_load_dwordx4 v[44:47], v6, {S_WS}, s13 offen offset:16 sc1"],
           range(32, 48), delay=P["d_c2"])
    g.stamp(10)
    I(f"""
    v_mov_b32 v8, 0
    v_mov_b32 v9, 0
    v_mov_b32 v10, 0
    v_mov_b32 v11, 0
    s_waitcnt lgkmcnt(0)
    v_mfma_f32_16x16x32_bf16 v[8:11], v[32:35], v[96:99], v[8:11]
    v_mfma_f32_16x16x32_bf16 v[8:11], v[36:39], v[100:103], v[8:11]
    v_max_f32 v4, v40, v42
    v_max3_f32 v4, v4, v44, v46
    v_sub_f32 v40, v40, v4
    v_sub_f32 v42, v42, v4
    v_sub_f32 v44, v44, v4
    v_sub_f32 v46, v46, v4
    v_exp_f32 v40, v40
    v_exp_f32 v42, v42
    v_exp_f32 v44, v44
    v_exp_f32 v46, v46
    s_nop 0
    v_mul_f32 v4, v40, v41
    v_fmac_f32 v4, v42, v43
    v_fmac_f32 v4, v44, v45
    v_fmac_f32 v4, v46, v47
    v_rcp_f32 v4, v4
    v_mul_f32 v12, v40, v8
    v_fmac_f32 v12, v42, v9
    v_fmac_f32 v12, v44, v10
    v_fmac_f32 v12, v46, v11
    v_mul_f32 v12, v12, v4
    v_lshlrev_b32 v6, 1, v6
    v_lshl_add_u32 v6, v3, 2, v6
    s_lshl_b32 s12, {sWV}, 7
    v_add_u32 v6, s12, v6
    ds_write_b32 v6, v12 offset:{L_DR}
    v_and_b32 v5, 1, v3
    v_lshlrev_b32 v5, 6, v5
    v_lshl_add_u32 v5, v2, 4, v5
    s_waitcnt lgkmcnt(0)
    s_barrier
    """)
    for v in range(8):
        I(f"ds_read_b128 v[{32+4*v}:{35+4*v}], v5 offset:{L_DR+128*v}")
    I(f"""
    v_mul_u32_u24 v5, 2560, v3
    v_lshl_add_u32 v5, v2, 4, v5
    v_mov_b32 v6, {OOB}
    v_cmp_gt_u32 vcc, 2, v3
    s_lshl_b32 s12, {sX}, 5
    s_add_u32 s12, s12, {sS}
    v_cndmask_b32 v5, v6, v5, vcc
    s_mul_i32 s12, s12, 5120
    s_mul_i32 s13, {sWV}, 320
    s_add_u32 s12, s12, s13
    s_add_u32 s12, s12, {XD1}
    """)
    for r in range(64, 84):
        I(f"v_mov_b32 v{r}, 0")
    I("s_waitcnt lgkmcnt(0)")
    for v in range(1, 8):
        for k in range(4):
            I(f"v_add_f32 v{32+k}, v{32+k}, v{32+4*v+k}")
    I("v_cvt_pk_bf16_f32 v12, v32, v33\nv_cvt_pk_bf16_f32 v13, v34, v35\ns_nop 1")
    for u in range(5):
        I(f"v_mfma_f32_16x16x16_bf16 v[{64+4*u}:{67+4*u}], v[{104+2*u}:{105+2*u}], v[12:13], v[{64+4*u}:{67+4*u}]")
    I("s_nop 7\ns_cmp_eq_u32 s15, 1\ns_cbranch_scc1 L_e_fast")
    for fl, lab in (("sc1", None), ("", "L_e_fast")):
        if lab:
            g.label(lab)
        for u in range(5):
            I(f"buffer_store_dwordx4 v[{64+4*u}:{67+4*u}], v5, {S_WS}, s12 offen offset:{64*u} {fl}")
        if not lab:
            I("s_branch L_e_done")
    g.label("L_e_done")
    g.stamp(11)
    I(f"""
    s_cmp_lg_u32 {sWV}, 0
    s_cbranch_scc1 L_B8
    s_cmp_ge_u32 {sS}, 20
    s_cbranch_scc1 L_B8
    v_lshrrev_b32 v4, 3, v3
    v_mul_u32_u24 v4, 2560, v4
    v_and_b32 v5, 7, v3
    v_lshl_add_u32 v4, v5, 4, v4
    v_mul_u32_u24 v5, 5120, v2
    v_add_u32 v5, v5, v4
    s_mul_i32 s12, {sX}, {32*5120}
    s_lshl_b32 s13, {sS}, 7
    s_add_u32 s12, s12, s13
    s_add_u32 s12, s12, {XD1}
    """)
    lds = []
    for i in range(8):
        lds.append(f"s_add_u32 s14, s12, {i*4*5120}\nbuffer_load_dwordx4 v[{32+4*i}:{35+4*i}], v5, {S_WS}, s14 offen sc1")
    g.poll(lds, range(32, 64), delay=P["d_d1"], tmp="v6")
    for i in range(1, 8):
        for k in range(4):
            I(f"v_add_f32 v{32+k}, v{32+k}, v{32+4*i+k}")
    I(f"""
    v_lshl_add_u32 v4, v2, 2, v4
    s_nop 0
    v_permlane16_swap_b32 v32, v33
    v_permlane16_swap_b32 v34, v35
    v_add_f32 v32, v32, v33
    v_add_f32 v34, v34, v35
    s_mul_i32 s12, {sX}, 5120
    s_add_u32 s12, s12, s13
    v_permlane32_swap_b32 v32, v34
    v_add_f32 v32, v32, v34
    s_add_u32 s12, s12, {XD2}
    buffer_store_dword v32, v4, {S_WS}, s12 offen sc1
    """)
    g.stamp(12)
    g.label("L_B8")
    I("s_barrier")
    I(f"s_cmp_eq_u32 {sUP}, 0\ns_cbranch_scc1 L_w2frag")
    I(f"""
    v_lshrrev_b32 v4, 2, v1
    v_lshlrev_b32 v4, 4, v4
    v_and_b32 v5, 1, v1
    v_lshl_add_u32 v4, v5, 3, v4
    v_bfe_u32 v5, v1, 1, 1
    v_mul_u32_u24 v5, {L_W3-L_W1}, v5
    v_add_u32 v4, v4, v5
    s_mul_i32 s12, {sWV}, 1280
    v_add_u32 v4, s12, v4
    """)
    for st in range(5):
        I(f"ds_read_b64_tr_b16 v[{96+2*st}:{97+2*st}], v4 offset:{L_W1+256*st}")
    I(f"""
    v_min_u32 v4, 39, v1
    v_lshlrev_b32 v4, 2, v4
    s_mul_i32 s12, {sWV}, 160
    v_add_u32 v4, s12, v4
    v_mov_b32 v5, 0x3f803f80
    ds_write_b32 v4, v5 offset:{L_HB+2560}
    s_branch L_d2
    """)
    g.label("L_w2frag")
    I(f"""
    v_bfe_u32 v4, v1, 2, 2
    v_lshl_add_u32 v4, v2, 3, v4
    v_lshlrev_b32 v4, 5, v4
    v_and_b32 v5, 3, v1
    v_lshl_add_u32 v4, v5, 3, v4
    s_lshl_b32 s12, {sWV}, 10
    s_add_u32 s12, s12, {L_W2}
    v_add_u32 v4, s12, v4
    """)
    for i in range(7):
        for tt in range(2):
            I(f"ds_read_b64_tr_b16 v[{96+4*i+2*tt}:{97+4*i+2*tt}], v4 offset:{8192*i+128*tt}")
    g.label("L_d2")
    I(f"""
    v_min_u32 v5, 39, v1
    v_lshlrev_b32 v7, 3, v5
    v_lshlrev_b32 v5, 4, v5
    s_mul_i32 s12, {sWV}, 640
    s_add_u32 s12, s12, {XD2}
    """)
    lds = []
    for i in range(8):
        lds.append(f"s_add_u32 s14, s12, {i*5120}\nbuffer_load_dwordx4 v[{32+4*i}:{35+4*i}], v5, {S_WS}, s14 offen sc1")
    g.poll(lds, range(32, 64), delay=P["d_d2"], tmp="v6")
    g.stamp(13)
    for i in range(1, 8):
        for k in range(4):
            I(f"v_add_f32 v{32+k}, v{32+k}, v{32+4*i+k}")
    I(f"""
    v_cvt_pk_bf16_f32 v8, v32, v33
    v_cvt_pk_bf16_f32 v9, v34, v35
    v_lshlrev_b32 v32, 16, v8
    v_and_b32 v33, 0xffff0000, v8
    v_lshlrev_b32 v34, 16, v9
    v_and_b32 v35, 0xffff0000, v9
    v_lshlrev_b32 v36, 16, v160
    v_and_b32 v37, 0xffff0000, v160
    v_lshlrev_b32 v38, 16, v161
    v_and_b32 v39, 0xffff0000, v161
    v_add_f32 v32, v32, v36
    v_add_f32 v33, v33, v37
    v_add_f32 v34, v34, v38
    v_add_f32 v35, v35, v39
    v_cvt_pk_bf16_f32 v8, v32, v33
    v_cvt_pk_bf16_f32 v9, v34, v35
    s_mul_i32 s12, {sWV}, 320
    v_add_u32 v7, s12, v7
    ds_write_b64 v7, v[8:9] offset:{L_HB}
    v_lshlrev_b32 v32, 16, v8
    v_and_b32 v33, 0xffff0000, v8
    v_lshlrev_b32 v34, 16, v9
    v_and_b32 v35, 0xffff0000, v9
    v_add_f32 v10, v32, v33
    v_add_f32 v11, v34, v35
    v_add_f32 v10, v10, v11
    v_mul_f32 v11, v32, v32
    v_fmac_f32 v11, v33, v33
    v_fmac_f32 v11, v34, v34
    v_fmac_f32 v11, v35, v35
    v_cmp_gt_u32 vcc, 40, v1
    s_nop 1
    v_cndmask_b32 v10, 0, v10, vcc
    v_cndmask_b32 v11, 0, v11, vcc
    """)
    g.wave_allreduce(10, 12)
    g.wave_allreduce(11, 12)
    I(f"""
    s_lshl_b32 s12, {sWV}, 3
    v_mov_b32 v4, s12
    ds_write_b64 v4, v[10:11] offset:{L_STAT}
    s_waitcnt lgkmcnt(0)
    s_barrier
    """)
    I(f"s_cmp_eq_u32 {sUP}, 0\ns_cbranch_scc1 L_down")
    I(f"""
    v_min_u32 v4, 2, v3
    v_mul_u32_u24 v4, 1280, v4
    v_lshl_add_u32 v4, v2, 3, v4
    s_mul_i32 s12, {sWV}, 160
    v_add_u32 v4, s12, v4
    """)
    for st in range(5):
        I(f"ds_read_b64 v[{32+2*st}:{33+2*st}], v4 offset:{L_HB+32*st}")
    I(f"""
    v_mov_b32 v8, 0
    v_mov_b32 v9, 0
    v_mov_b32 v10, 0
    v_mov_b32 v11, 0
    s_waitcnt lgkmcnt(0)
    """)
    for st in range(5):
        I(f"v_mfma_f32_16x16x16_bf16 v[8:11], v[{32+2*st}:{33+2*st}], v[{96+2*st}:{97+2*st}], v[8:11]")
    I(f"""
    s_lshl_b32 s12, {sWV}, 8
    v_lshl_add_u32 v4, v1, 4, s12
    v_cmp_gt_u32 vcc, 16, v1
    s_and_saveexec_b64 s[94:95], vcc
    s_nop 4
    ds_write_b128 v4, v[8:11] offset:{L_UR}
    s_mov_b64 exec, s[94:95]
    s_waitcnt lgkmcnt(0)
    s_barrier
    """)
    I(f"s_cmp_lg_u32 {sWV}, 0\ns_cbranch_scc1 L_end")
    I("v_lshlrev_b32 v4, 4, v3\nv_mov_b32 v5, 0")
    for v in range(8):
        I(f"ds_read_b128 v[{32+4*v}:{35+4*v}], v4 offset:{L_UR+256*v}")
    for q in range(4):
        I(f"ds_read_b128 v[{64+4*q}:{67+4*q}], v5 offset:{L_STAT+16*q}")
    I("s_waitcnt lgkmcnt(0)")
    for v in range(1, 8):
        for k in range(3):
            I(f"v_add_f32 v{32+k}, v{32+k}, v{32+4*v+k}")
    for b in range(2):
        o = 64 + 8 * b
        I(f"""
        v_add_f32 v{o}, v{o}, v{o+2}
        v_add_f32 v{o+4}, v{o+4}, v{o+6}
        v_add_f32 v{o+1}, v{o+1}, v{o+3}
        v_add_f32 v{o+5}, v{o+5}, v{o+7}
        v_add_f32 v{o}, v{o}, v{o+4}
        v_add_f32 v{o+1}, v{o+1}, v{o+5}
        v_mul_f32 v{o}, {f2u(1.0/640):#x}, v{o}
        v_mul_f32 v{o+1}, {f2u(1.0/640):#x}, v{o+1}
        v_fma_f32 v{o+1}, -v{o}, v{o}, v{o+1}
        v_max_f32 v{o+1}, 0, v{o+1}
        v_add_f32 v{o+1}, {f2u(1e-5):#x}, v{o+1}
        v_rsq_f32 v{o+1}, v{o+1}
        v_fma_f32 v{32+b}, -v{o}, v34, v{32+b}
        v_mul_f32 v{32+b}, v{32+b}, v{o+1}
        """)
    I(f"""
    v_cvt_pk_bf16_f32 v8, v32, v33
    v_lshlrev_b32 v32, 16, v8
    v_and_b32 v33, 0xffff0000, v8
    s_nop 1
    v_mov_b32_dpp v34, v32 row_ror:8 row_mask:0xf bank_mask:0xf
    v_mov_b32_dpp v35, v33 row_ror:8 row_mask:0xf bank_mask:0xf
    v_mul_f32 v36, {f2u(-1.4426950408889634):#x}, v32
    v_mul_f32 v37, {f2u(-1.4426950408889634):#x}, v33
    v_exp_f32 v36, v36
    v_exp_f32 v37, v37
    s_nop 0
    v_add_f32 v36, 1.0, v36
    v_add_f32 v37, 1.0, v37
    v_rcp_f32 v36, v36
    v_rcp_f32 v37, v37
    s_nop 0
    v_mul_f32 v32, v32, v36
    v_mul_f32 v33, v33, v37
    v_cvt_pk_bf16_f32 v8, v32, v33
    v_lshlrev_b32 v32, 16, v8
    v_and_b32 v33, 0xffff0000, v8
    v_mul_f32 v32, v32, v34
    v_mul_f32 v33, v33, v35
    s_nop 1
    v_mov_b32_dpp v34, v32 row_ror:15 row_mask:0xf bank_mask:0xf
    v_mov_b32_dpp v35, v33 row_ror:15 row_mask:0xf bank_mask:0xf
    v_cvt_pk_bf16_f32 v8, v32, v34
    v_cvt_pk_bf16_f32 v9, v33, v35
    """)
    I(f"""
    v_cmp_eq_u32 vcc, 1, v2
    s_nop 1
    v_cndmask_b32 v8, v8, v9, vcc
    v_mul_u32_u24 v4, 3456, v2
    v_lshl_add_u32 v4, v3, 1, v4
    v_and_b32 v5, 0x29, v1
    v_mov_b32 v6, {OOB}
    v_cmp_eq_u32 vcc, 0, v5
    s_lshl_b32 s12, {sFC}, 4
    s_add_u32 s12, s12, {XE}
    v_cndmask_b32 v4, v6, v4, vcc
    buffer_store_dword v8, v4, {S_WS}, s12 offen sc1
    """)
    g.stamp(14)
    I("s_branch L_end")
    g.label("L_down")
    I(f"""
    v_and_b32 v5, 1, v3
    v_mul_u32_u24 v5, 3456, v5
    v_lshl_add_u32 v5, v2, 4, v5
    s_lshl_b32 s12, {sWV}, 6
    s_add_u32 s12, s12, {XE}
    s_cmp_lt_u32 {sWV}, 6
    s_cselect_b32 s13, {512*6}, 0
    s_add_u32 s13, s13, s12
    """)
    lds = [f"buffer_load_dwordx4 v[{32+4*i}:{35+4*i}], v5, {S_WS}, s12 offen offset:{512*i} sc1" for i in range(6)]
    lds.append(f"buffer_load_dwordx4 v[56:59], v5, {S_WS}, s13 offen sc1")
    g.poll(lds, range(32, 60), delay=P["d_e"], tmp="v6")
    g.stamp(14)
    I(f"""
    v_mov_b32 v8, 0
    v_mov_b32 v9, 0
    v_mov_b32 v10, 0
    v_mov_b32 v11, 0
    s_nop 1
    """)
    for i in range(6):
        I(f"v_mfma_f32_16x16x32_bf16 v[8:11], v[{32+4*i}:{35+4*i}], v[{96+4*i}:{99+4*i}], v[8:11]")
    I(f"s_cmp_ge_u32 {sWV}, 6\ns_cbranch_scc1 L_dn6")
    I(f"v_mfma_f32_16x16x32_bf16 v[8:11], v[56:59], v[120:123], v[8:11]")
    g.label("L_dn6")
    I(f"""
    s_lshl_b32 s12, {sWV}, 8
    v_lshl_add_u32 v4, v1, 4, s12
    v_cmp_gt_u32 vcc, 16, v1
    s_and_saveexec_b64 s[94:95], vcc
    s_nop 4
    ds_write_b128 v4, v[8:11] offset:{L_UR}
    s_mov_b64 exec, s[94:95]
    s_waitcnt lgkmcnt(0)
    s_barrier
    """)
    I(f"s_cmp_lg_u32 {sWV}, 0\ns_cbranch_scc1 L_end")
    I(f"""
    v_lshlrev_b32 v4, 4, v3
    s_lshl_b32 s12, {sFC}, 5
    v_lshl_add_u32 v5, v3, 1, s12
    """)
    for v in range(8):
        I(f"ds_read_b128 v[{32+4*v}:{35+4*v}], v4 offset:{L_UR+256*v}")
    I(f"""
    ds_read_u16 v64, v5 offset:{L_HB}
    ds_read_u16 v65, v5 offset:{L_HB+1280}
    s_waitcnt lgkmcnt(0)
    """)
    for v in range(1, 8):
        for k in range(2):
            I(f"v_add_f32 v{32+k}, v{32+k}, v{32+4*v+k}")
    I(f"""
    v_cvt_pk_bf16_f32 v8, v32, v33
    v_lshlrev_b32 v32, 16, v8
    v_and_b32 v33, 0xffff0000, v8
    v_lshlrev_b32 v64, 16, v64
    v_lshlrev_b32 v65, 16, v65
    v_add_f32 v32, v32, v64
    v_add_f32 v33, v33, v65
    s_nop 1
    v_mov_b32_dpp v34, v32 row_ror:15 row_mask:0xf bank_mask:0xf
    v_mov_b32_dpp v35, v33 row_ror:15 row_mask:0xf bank_mask:0xf
    v_cvt_pk_bf16_f32 v8, v32, v34
    v_cvt_pk_bf16_f32 v9, v33, v35
    v_cmp_eq_u32 vcc, 1, v2
    s_nop 1
    v_cndmask_b32 v8, v8, v9, vcc
    v_mul_u32_u24 v4, 1280, v2
    v_lshl_add_u32 v4, v3, 1, v4
    v_and_b32 v5, 0x21, v1
    v_mov_b32 v6, {OOB}
    v_cmp_eq_u32 vcc, 0, v5
    s_nop 1
    v_cndmask_b32 v4, v6, v4, vcc
    buffer_store_dword v8, v4, {S_OUT}, s12 offen
    """)
    g.stamp(15)
    I("s_branch L_end")

    g.label("L_loader")
    I(f"""
    s_sub_u32 s15, {sWV}, 8
    s_lshl_b32 s12, s15, 2
    v_add_u32 v4, s12, v2
    v_lshlrev_b32 v4, 1, v4
    v_xor_b32 v4, v4, v3
    v_lshlrev_b32 v4, 4, v4
    v_lshl_add_u32 v4, v2, 13, v4
    v_lshlrev_b32 v5, 4, v1
    s_mul_i32 s12, {sSUB}, 80
    s_lshl_b32 s13, s15, 2
    s_add_u32 s12, s12, s13
    s_lshl_b32 s12, s12, 13
    s_lshl_b32 s13, {sH}, 8
    s_add_u32 s12, s12, s13
    s_lshl_b32 s13, s15, 10
    s_add_u32 s13, s13, {L_WQ}
    """)
    for i in range(10):
        I(f"s_mov_b32 m0, s13")
        I(f"s_add_u32 s13, s13, 2048")
        I(f"buffer_load_dwordx4 v4, {S_WQ}, s12 offen {NT} lds")
        I(f"s_add_u32 s12, s12, {8*8192}")
    I(f"""
    s_lshl_b32 s12, {sB}, 13
    s_add_u32 s12, s12, {sKEY}
    s_add_u32 s12, s12, s15
    s_lshl_b32 s12, s12, 10
    s_mul_i32 s13, s15, {CPITCH}
    s_add_u32 s13, s13, {L_CKV}
    """)
    for i in range(32):
        I(f"s_mov_b32 m0, s13")
        I(f"s_add_u32 s13, s13, {2*CPITCH}")
        I(f"buffer_load_dwordx4 v5, {S_CKV}, s12 offen {NT} lds")
        I(f"s_add_u32 s12, s12, 2048")
    I(f"""
    v_lshrrev_b32 v6, 1, v1
    v_and_b32 v7, 1, v1
    v_lshlrev_b32 v8, 13, v6
    v_lshl_add_u32 v8, v7, 4, v8
    s_lshl_b32 s12, s15, 18
    s_lshl_b32 s13, {sH}, 8
    s_add_u32 s12, s12, s13
    s_lshl_b32 s13, {sSUB}, 5
    s_add_u32 s12, s12, s13
    s_lshl_b32 s13, s15, 10
    s_add_u32 s13, s13, {L_WUV}
    """)
    for i in range(8):
        I(f"s_mov_b32 m0, s13")
        I(f"s_add_u32 s13, s13, 2048")
        I(f"buffer_load_dwordx4 v8, {S_WUV}, s12 offen {NTS} lds")
        I(f"s_add_u32 s12, s12, {1<<19}")
    I(f"""
    s_lshl_b32 s12, {sH}, 7
    s_lshl_b32 s13, {sSUB}, 4
    s_add_u32 s12, s12, s13
    s_mul_i32 s12, s12, 1280
    s_lshl_b32 s13, s15, 10
    s_add_u32 s12, s12, s13
    s_add_u32 s13, s13, {L_WO}
    """)
    for i in range(10):
        I(f"s_mov_b32 m0, s13")
        I(f"s_add_u32 s13, s13, 2048")
        I(f"buffer_load_dwordx4 v5, {S_WO}, s12 offen {NT} lds")
        I(f"s_add_u32 s12, s12, 2048")
    I("s_waitcnt vmcnt(50)\ns_barrier")
    I("s_barrier")
    I("s_barrier")
    I("s_waitcnt vmcnt(18)\ns_barrier")
    I("s_barrier")
    I(f"s_cmp_eq_u32 {sUP}, 0\ns_cbranch_scc1 L_ld_down")
    I(f"""
    v_mul_u32_u24 v8, 3456, v1
    s_lshl_b32 s12, {sFC}, 4
    s_cmp_eq_u32 s15, 1
    s_cbranch_scc1 L_ld_w3
    """)
    for srd, base, lab in ((S_W1, L_W1, None), (S_W3, L_W3, "L_ld_w3")):
        if lab:
            g.label(lab)
        for i in range(10):
            I(f"s_mov_b32 m0, {base+1024*i}")
            I("s_nop 0")
            I(f"buffer_load_dwordx4 v8, {srd}, s12 offen {NTS} lds")
            I(f"s_add_u32 s12, s12, {64*3456}")
        I("s_barrier")
        I("s_waitcnt vmcnt(10)\ns_barrier")
        I("s_branch L_ld_tail")
    g.label("L_ld_down")
    I(f"""
    v_mul_u32_u24 v8, 1280, v6
    v_lshl_add_u32 v8, v7, 4, v8
    s_lshl_b32 s12, {sFC}, 5
    s_mul_i32 s13, s15, {32*1280}
    s_add_u32 s12, s12, s13
    s_lshl_b32 s13, s15, 10
    s_add_u32 s13, s13, {L_W2}
    """)
    for i in range(27):
        I(f"s_mov_b32 m0, s13")
        I(f"s_add_u32 s13, s13, 2048")
        I(f"buffer_load_dwordx4 v8, {S_W2}, s12 offen {NTS} lds")
        I(f"s_add_u32 s12, s12, {64*1280}")
    I("s_barrier")
    I("s_waitcnt vmcnt(27)\ns_barrier")
    g.label("L_ld_tail")
    I("s_barrier")
    I("s_waitcnt vmcnt(0)\ns_barrier")
    g.label("L_end")
    I("s_endpgm")

    nv = 168
    tail = f"""
.section .rodata,"a"
.p2align 6
.amdhsa_kernel {KNAME}
  .amdhsa_next_free_vgpr {nv}
  .amdhsa_next_free_sgpr 102
  .amdhsa_accum_offset {nv}
  .amdhsa_group_segment_fixed_size 0
  .amdhsa_kernarg_size 104
  .amdhsa_user_sgpr_count 2
  .amdhsa_user_sgpr_kernarg_segment_ptr 1
  .amdhsa_system_sgpr_workgroup_id_x 1
.end_amdhsa_kernel
"""
    return "\n".join(hdr) + "\n" + "\n".join(g.L) + "\n" + tail


PVA = 128

if __name__ == "__main__":
    diag = "--diag" in sys.argv
    out = [a for a in sys.argv[1:] if not a.startswith("--")]
    txt = build(diag=diag)
    if out:
        open(out[0], "w").write(txt)
    else:
        sys.stdout.write(txt)
```

```python
import struct
POLL_LIMIT = 60000
OOB = 0x7FFFFF00

def f2u(f):
    return struct.unpack("<I", struct.pack("<f", f))[0]

class Gen:
    def __init__(self, diag, P, L_CNT, VZ, VO):
        self.L = []
        self.diag = diag
        self.lab = 0
        self.P = P
        self.L_CNT = L_CNT
        self.VZ, self.VO = VZ, VO

    def I(self, s):
        for line in s.strip().split("\n"):
            line = line.strip()
            if line:
                self.L.append("  " + line)

    def label(self, name):
        self.L.append(name + ":")

    def newlab(self, p="L"):
        self.lab += 1
        return f"{p}_{self.lab}"

    def sleep(self, n):
        while n > 0:
            k = min(n, 127)
            self.I(f"s_sleep {k}")
            n -= k

    def stamp(self, idx):
        if not self.diag:
            return
        if self.P.get("lite") and idx not in (0, 15):
            return
        self.I(f"""
        s_memrealtime s[96:97]
        s_waitcnt lgkmcnt(0)
        s_mov_b32 s{64+idx}, s96
        """)

    def bar(self, wait="lgkmcnt(0)"):
        if wait:
            self.I(f"s_waitcnt {wait}")
        self.I("s_barrier")

    def signal(self, cnt, wait="lgkmcnt(0)"):
        if wait:
            self.I(f"s_waitcnt {wait}")
        self.I(f"""
        s_mov_b64 exec, 1
        ds_add_u32 {self.VZ}, {self.VO} offset:{self.L_CNT+4*cnt}
        s_mov_b64 exec, -1
        """)

    def waitc(self, cnt, n, tmp="v4"):
        lp = self.newlab("Lw")
        self.label(lp)
        self.I(f"""
        ds_read_b32 {tmp}, {self.VZ} offset:{self.L_CNT+4*cnt}
        s_waitcnt lgkmcnt(0)
        v_cmp_gt_u32 vcc, {n}, {tmp}
        s_cbranch_vccnz {lp}
        """)

    def maxchain(self, regs, tmp):
        r = list(regs)
        self.I(f"v_max_u32 {tmp}, v{r[0]}, v{r[1]}")
        r = r[2:]
        while len(r) >= 2:
            self.I(f"v_max3_u32 {tmp}, {tmp}, v{r[0]}, v{r[1]}")
            r = r[2:]
        if r:
            self.I(f"v_max_u32 {tmp}, {tmp}, v{r[0]}")

    def poll(self, loads, regs, delay=0, tmp="v4", preissued=False, backoff=None):
        if delay:
            self.sleep(delay)
        lp = self.newlab("Lp")
        dn = self.newlab("Ld")
        ent = self.newlab("Le")
        self.I("s_mov_b32 s92, 0")
        if preissued:
            self.I(f"s_branch {ent}")
        self.label(lp)
        for l in loads:
            self.I(l)
        if preissued:
            self.label(ent)
        self.I("s_waitcnt vmcnt(0)")
        self.maxchain(regs, tmp)
        self.I(f"""
        v_cmp_ne_u32 vcc, -1, {tmp}
        s_add_u32 s92, s92, 1
        s_cmp_eq_u64 vcc, exec
        s_cbranch_scc1 {dn}
        s_sleep {backoff if backoff is not None else self.P['backoff']}
        s_cmp_lt_u32 s92, {POLL_LIMIT}
        s_cbranch_scc1 {lp}
        """)
        self.label(dn)

    def wave_allreduce(self, v, t, op="v_add_f32", rors=(8, 4, 2, 1), rows=True):
        for r in rors:
            self.I(f"s_nop 1\n{op}_dpp v{v}, v{v}, v{v} row_ror:{r} row_mask:0xf bank_mask:0xf")
        if rows:
            self.I(f"""
            v_mov_b32 v{t}, v{v}
            s_nop 1
            v_permlane16_swap_b32 v{v}, v{t}
            {op} v{v}, v{v}, v{t}
            v_mov_b32 v{t}, v{v}
            s_nop 1
            v_permlane32_swap_b32 v{v}, v{t}
            {op} v{v}, v{v}, v{t}
            """)

    def tree_add(self, base, n, stride, width):
        step = 1
        while step < n:
            for a in range(0, n - step, 2 * step):
                for k in range(width):
                    self.I(f"v_add_f32 v{base+a*stride+k}, v{base+a*stride+k}, v{base+(a+step)*stride+k}")
            step *= 2
```

```python
import sys
from genlib import *

KNAME = "sequential_preLN__compressed_kv_cla__glu_gated_swiglu__decode_kernel"

FLAGS = 0x000000
XH    = 0x008000
XB    = 0x010000
XC2M  = 0x020000
XD2   = 0x030000
XE    = 0x040000
XC1M  = 0x050000
XAF   = 0x080000
XAS   = 0x0C0000
XU    = 0x100000
XC2D  = 0x180000
XD1   = 0x200000
TS    = 0x380000
XC1D  = 0x400000
C1J   = 16640
WS_BYTES = 0x1000000

CPITCH = 1040
L_CTRL = 0
L_CNT = 64
L_STAT = 192
(C_NON, C_H, C_U, C_XA, C_AG, C_VER) = range(6)
L_XN  = 2304
L_XAL = 4864
L_DR  = 8960
L_CT  = 11008
L_WUV = 12288
L_WO  = 45056
L_WUK = 45056
L_MB  = 256
L_LB  = 1280
L_UR  = 256
L_HB  = 2304
L_CKV = 5120
L_QA  = L_CKV
L_TR  = L_CKV + 64 * CPITCH
L_W1  = L_CKV
L_W3  = L_CKV + 20480
L_W2  = L_CKV
L_PB  = L_CKV + 32 * CPITCH
L_WQ  = L_CKV + 128 * CPITCH
LDS_BYTES = 158720
PVA = 128
VZ, VO = "v192", "v193"
NVGPR = 200

DEFAULTS = dict(d_a=2, d_c1=1, d_c2=0, d_d1=2, d_d2=0, d_u=2, d_e=0, backoff=2, nt="nt", fast_tries=200,
                d_non=4, d_p2=10, bo_c2=4, bo_d2=4, bo_e=4, bo_b=4, W2=8, d_A=40, init_blocks=1, hint_kb=2, pf_rows=0, pre=0)


def build(diag=False, P=None):
    PP = dict(DEFAULTS)
    if P:
        PP.update(P)
    P = PP
    g = Gen(diag, P, L_CNT, VZ, VO)
    I = g.I
    NT = P["nt"]
    names = ["X", "CKV", "WQ", "WUK", "WUV", "WO", "W1", "W3", "W2", "OUT", "DBG", "WS"]
    S_X, S_CKV, S_WQ, S_WUK, S_WUV, S_WO, S_W1, S_W3, S_W2, S_OUT, S_DBG, S_WS = [
        f"s[{16+4*i}:{19+4*i}]" for i in range(12)]
    ptr = {0: 64, 1: 66, 2: 68, 3: 70, 4: 72, 5: 74, 6: 78, 7: 80, 8: 82, 9: 84, 10: 86, 11: 88}
    sizes = [2560, 16777216, 5242880, 4194304, 4194304, 5242880, 2211840, 2211840, 2211840, 2560, 256, WS_BYTES]

    def srd(*which):
        for nm in which:
            i = names.index(nm)
            b = 16 + 4 * i
            I(f"s_mov_b64 s[{b}:{b+1}], s[{ptr[i]}:{ptr[i]+1}]\ns_mov_b32 s{b+2}, {sizes[i]}\ns_mov_b32 s{b+3}, 0x20000")

    def dma(voff, srd_, flag, dm0, dso):
        I(f"s_mov_b32 m0, s13")
        I(f"s_add_u32 s13, s13, {dm0}")
        I(f"buffer_load_dwordx4 {voff}, {srd_}, s12 offen {flag} lds")
        I(f"s_add_u32 s12, s12, {dso}")

    def zero_stamps():
        if diag:
            for i in range(0, 28):
                I(f"s_mov_b32 s{64+i}, 0")

    sWV, sX, sS, sM, sH, sSUB, sFC, sUP, sKC = "s3", "s4", "s5", "s6", "s7", "s8", "s9", "s10", "s11"
    hdr = [f"; @launch grid=(256,1,1) block=(512,1,1) lds={LDS_BYTES}",
           '.amdgcn_target "amdgcn-amd-amdhsa--gfx950"', ".text", f".globl {KNAME}", ".p2align 8",
           f".type {KNAME},@function", f"{KNAME}:"]

    I(f"""
    s_cmp_ge_u32 s2, 256
    s_cbranch_scc1 L_end
    s_load_dwordx16 s[64:79], s[0:1], 0
    s_load_dwordx8 s[80:87], s[0:1], 64
    s_load_dwordx2 s[88:89], s[0:1], 96
    s_memrealtime s[90:91]
    v_lshrrev_b32 v4, 6, v0
    v_and_b32 v1, 63, v0
    v_readfirstlane_b32 {sWV}, v4
    v_lshrrev_b32 v2, 4, v1
    v_and_b32 v3, 15, v1
    v_mov_b32 {VZ}, 0
    v_mov_b32 {VO}, 1
    v_lshlrev_b32 v4, 2, v3
    ds_write_b32 v4, {VZ} offset:{L_CNT}
    s_and_b32 {sX}, s2, 7
    s_lshr_b32 {sS}, s2, 3
    s_and_b32 {sM}, {sS}, 15
    v_lshlrev_b32 v5, 4, v1
    v_mov_b32 v6, {OOB}
    v_mov_b32 v8, -1
    v_mov_b32 v9, -1
    v_mov_b32 v10, -1
    v_mov_b32 v11, -1
    v_cmp_eq_u32 vcc, 0, v1
    s_and_b32 s12, {sS}, 3
    s_lshl_b32 s12, s12, 3
    v_cndmask_b32 v7, v6, 0, vcc
    s_add_u32 {sH}, {sX}, s12
    s_lshr_b32 {sSUB}, {sM}, 2
    s_lshr_b32 s12, {sM}, 2
    s_lshl_b32 s12, s12, 3
    s_add_u32 s12, s12, {sX}
    s_cmp_lt_u32 s12, 27
    s_cselect_b32 {sUP}, 1, 0
    s_and_b32 {sKC}, {sM}, 3
    s_sub_u32 s14, {sX}, 3
    s_lshl_b32 s14, s14, 2
    s_add_u32 s14, s14, {sKC}
    s_cmp_eq_u32 {sUP}, 1
    s_cselect_b32 {sFC}, s12, s14
    """)

    def nonce_and_flag(first_wait):
        lp, dn, ent = g.newlab("Lp"), g.newlab("Ld"), g.newlab("Le")
        I(f"""
        s_mov_b32 s92, 0
        s_lshl_b32 s14, {sX}, 5
        s_add_u32 s14, s14, {sS}
        s_lshl_b32 s14, s14, 4
        s_add_u32 s14, s14, {FLAGS}
        s_getreg_b32 s15, hwreg(HW_REG_XCC_ID)
        v_mov_b32 v14, s15
        v_mov_b32 v15, 0
        s_waitcnt {first_wait}
        s_branch {ent}
        """)
        g.label(lp)
        I(f"""
        buffer_load_dwordx2 v[12:13], {VZ}, {S_DBG}, 0 offen sc1
        s_waitcnt vmcnt(0)
        """)
        g.label(ent)
        I(f"""
        v_cmp_ne_u32 vcc, 0, v12
        s_add_u32 s92, s92, 1
        s_cmp_eq_u64 vcc, exec
        s_cbranch_scc1 {dn}
        s_sleep {P['d_non']}
        s_cmp_lt_u32 s92, {POLL_LIMIT}
        s_cbranch_scc1 {lp}
        """)
        g.label(dn)
        I(f"""
        ds_write_b64 {VZ}, v[12:13] offset:{L_CTRL}
        buffer_store_dwordx4 v[12:15], v7, {S_WS}, s14 offen sc1
        """)
        g.signal(C_NON)
        g.stamp(16)

    def verify_flags(r0, kindA, preissued, first_wait="vmcnt(0)", onlyA=False, uniform=True):
        lp, dn, ent = g.newlab("Lp"), g.newlab("Ld"), g.newlab("Le")
        I("s_mov_b32 s92, 0")
        if preissued:
            I(f"s_waitcnt {first_wait}\ns_branch {ent}")
        g.label(lp)
        for i in range(4):
            I(f"buffer_load_dwordx4 v[{r0+4*i}:{r0+3+4*i}], v5, {S_WS}, 0 offen offset:{FLAGS+1024*i} sc1")
        I("s_waitcnt vmcnt(0)")
        if preissued:
            g.label(ent)
        I("v_mov_b32 v8, 0")
        for i in range(4):
            I(f"v_xor_b32 v9, v{r0+4*i}, v14\nv_xor_b32 v10, v{r0+1+4*i}, v15\nv_or3_b32 v8, v8, v9, v10")
        I("v_cmp_eq_u32 vcc, 0, v8\ns_add_u32 s92, s92, 1")
        if onlyA:
            I("s_or_b32 vcc_lo, vcc_lo, 0xffff\ns_or_b32 vcc_hi, vcc_hi, 0xffff")
        I(f"""
        s_cmp_eq_u64 vcc, exec
        s_cbranch_scc1 {dn}
        s_sleep 4
        s_cmp_lt_u32 s92, {POLL_LIMIT}
        s_cbranch_scc1 {lp}
        """)
        g.label(dn)
        if not uniform:
            g.stamp(17)
            return
        I(f"""
        s_lshr_b32 s14, {sX}, 1
        s_cmp_eq_u32 s14, 1
        v_mov_b32 v8, v{r0+2}
        s_cbranch_scc0 {dn}a
        v_mov_b32 v8, v{r0+6}
        {dn}a:
        s_cmp_eq_u32 s14, 2
        s_cbranch_scc0 {dn}b
        v_mov_b32 v8, v{r0+10}
        {dn}b:
        s_cmp_eq_u32 s14, 3
        s_cbranch_scc0 {dn}c
        v_mov_b32 v8, v{r0+14}
        {dn}c:
        s_getreg_b32 s14, hwreg(HW_REG_XCC_ID)
        v_xor_b32 v8, s14, v8
        s_and_b32 s14, {sX}, 1
        s_lshl_b32 s14, s14, 1
        s_add_u32 s14, s14, {1 if kindA else 0}
        v_cmp_eq_u32 vcc, s14, v2
        s_nop 1
        v_cndmask_b32 v8, 0, v8, vcc
        v_cmp_eq_u32 vcc, 0, v8
        s_cmp_eq_u64 vcc, exec
        s_cselect_b32 s14, 1, 0
        v_mov_b32 v8, s14
        ds_write_b32 {VZ}, v8 offset:{L_CTRL+8}
        """)
        g.stamp(17)

    def h_from_sum(xr):
        I(f"""
        v_cvt_pk_bf16_f32 v8, v32, v33
        v_cvt_pk_bf16_f32 v9, v34, v35
        v_lshlrev_b32 v36, 16, v{xr}
        v_and_b32 v37, 0xffff0000, v{xr}
        v_lshlrev_b32 v38, 16, v{xr+1}
        v_and_b32 v39, 0xffff0000, v{xr+1}
        v_lshlrev_b32 v32, 16, v8
        v_and_b32 v33, 0xffff0000, v8
        v_lshlrev_b32 v34, 16, v9
        v_and_b32 v35, 0xffff0000, v9
        v_add_f32 v32, v32, v36
        v_add_f32 v33, v33, v37
        v_add_f32 v34, v34, v38
        v_add_f32 v35, v35, v39
        v_cvt_pk_bf16_f32 v8, v32, v33
        v_cvt_pk_bf16_f32 v9, v34, v35
        """)

    I(f"""
    s_waitcnt lgkmcnt(0)
    s_cmp_ge_u32 {sWV}, 4
    s_cbranch_scc1 L_e_hi
    s_or_b32 s14, s2, {sWV}
    s_cmp_lg_u32 s14, 0
    s_cbranch_scc1 L_e_dma
    """)
    srd("DBG")
    I(f"""
    s_or_b32 s90, s90, 1
    v_mov_b32 v14, s90
    v_mov_b32 v15, s91
    buffer_store_dwordx2 v[14:15], v7, {S_DBG}, 0 offen sc1
    s_branch L_e_dma
    L_e_hi:
    s_cmp_ge_u32 {sWV}, 6
    s_cbranch_scc1 L_e_67
    s_sub_u32 s15, {sWV}, 4
    s_mul_i32 s15, s15, 1280
    v_mul_u32_u24 v100, 20, v1
    """)
    srd("X")
    I(f"""
    buffer_load_dwordx4 v[8:11], v100, {S_X}, s15 offen
    buffer_load_dword v12, v100, {S_X}, s15 offen offset:16
    s_branch L_e_dma
    L_e_67:
    """)
    srd("DBG", "WS")
    I(f"""
    s_cmp_ge_u32 {sS}, 16
    s_cbranch_scc1 L_e_A67
    s_cmp_eq_u32 {sWV}, 6
    s_cbranch_scc1 L_e_B6
    """)
    I(f"""
    s_lshl_b32 s13, {sX}, 4
    s_add_u32 s13, s13, {sM}
    s_mul_i32 s13, s13, 5120
    s_add_u32 s13, s13, {XD1}
    """)
    for i in range(4):
        I(f"buffer_store_dwordx4 v[8:11], v5, {S_WS}, s13 offen offset:{1024*i} sc1")
    I(f"""
    s_add_u32 s13, s13, 4096
    buffer_store_dwordx4 v[8:11], v5, {S_WS}, s13 offen sc1
    v_mul_u32_u24 v4, 2560, v2
    v_lshl_add_u32 v4, v3, 4, v4
    s_cmp_lt_u32 {sM}, 10
    s_cselect_b32 s15, 32, 0
    v_cmp_gt_u32 vcc, s15, v1
    s_mul_i32 s13, {sX}, 5120
    s_lshl_b32 s14, {sM}, 8
    v_cndmask_b32 v4, v6, v4, vcc
    s_add_u32 s13, s13, s14
    s_add_u32 s13, s13, {XD2}
    buffer_store_dwordx4 v[8:11], v4, {S_WS}, s13 offen sc1
    s_branch L_e_dma
    L_e_B6:
    s_lshl_b32 s12, {sH}, 13
    s_add_u32 s12, s12, {XAF}
    v_lshlrev_b32 v4, 7, v1
    buffer_load_dword v14, v4, {S_WS}, s12 offen nt
    v_lshrrev_b32 v4, 3, v1
    v_lshlrev_b32 v4, 8, v4
    v_and_b32 v12, 7, v1
    v_lshl_add_u32 v4, v12, 4, v4
    s_add_u32 s13, s12, 4096
    buffer_store_dwordx4 v[8:11], v4, {S_WS}, s12 offen
    buffer_store_dwordx4 v[8:11], v4, {S_WS}, s12 offen offset:2048
    buffer_store_dwordx4 v[8:11], v4, {S_WS}, s13 offen
    buffer_store_dwordx4 v[8:11], v4, {S_WS}, s13 offen offset:2048
    """)
    I(f"""
    s_branch L_e_dma
    L_e_A67:
    s_cmp_eq_u32 {sWV}, 6
    s_cbranch_scc1 L_e_dma
    """)
    I(f"""
    v_lshlrev_b32 v4, 7, v1
    v_cmp_gt_u32 vcc, 32, v1
    s_lshl_b32 s14, {sX}, 12
    s_lshl_b32 s15, {sM}, 3
    v_cndmask_b32 v4, v6, v4, vcc
    v_cndmask_b32 v12, v6, v5, vcc
    s_add_u32 s14, s14, s15
    s_add_u32 s14, s14, {XC1M}
    buffer_store_dwordx2 v[8:9], v4, {S_WS}, s14 offen sc1
    s_lshl_b32 s14, {sX}, 4
    s_add_u32 s14, s14, {sM}
    s_lshl_b32 s14, s14, 9
    s_add_u32 s14, s14, {XB}
    buffer_store_dwordx4 v[8:11], v12, {S_WS}, s14 offen sc1
    s_lshl_b32 s14, {sM}, 4
    s_add_u32 s14, s14, {sX}
    s_lshl_b32 s15, s14, 10
    s_add_u32 s15, s15, {XC2D}
    buffer_store_dwordx4 v[8:11], v5, {S_WS}, s15 offen sc1
    s_add_u32 s15, s15, 8192
    buffer_store_dwordx4 v[8:11], v5, {S_WS}, s15 offen sc1
    v_lshlrev_b32 v4, 6, v1
    v_cmp_gt_u32 vcc, 2, v1
    s_lshl_b32 s15, s14, 3
    s_add_u32 s15, s15, {XC2M}
    v_cndmask_b32 v4, v6, v4, vcc
    buffer_store_dwordx2 v[8:9], v4, {S_WS}, s15 offen sc1
    s_lshl_b32 s14, {sX}, 4
    s_add_u32 s14, s14, {sM}
    s_lshl_b32 s14, s14, 11
    s_add_u32 s14, s14, {XU}
    buffer_store_dwordx4 v[8:11], v5, {S_WS}, s14 offen sc1
    buffer_store_dwordx4 v[8:11], v5, {S_WS}, s14 offen offset:1024 sc1
    v_lshrrev_b32 v4, 1, v1
    v_mul_u32_u24 v4, 3456, v4
    v_and_b32 v12, 1, v1
    v_lshl_add_u32 v4, v12, 4, v4
    s_lshl_b32 s15, {sUP}, 2
    v_cmp_gt_u32 vcc, s15, v1
    s_lshl_b32 s14, {sFC}, 2
    s_add_u32 s14, s14, {sKC}
    v_cndmask_b32 v4, v6, v4, vcc
    s_lshl_b32 s14, s14, 5
    s_add_u32 s14, s14, {XE}
    buffer_store_dwordx4 v[8:11], v4, {S_WS}, s14 offen sc1
    buffer_load_dwordx2 v[12:13], {VZ}, {S_DBG}, 0 offen sc1
    """)
    g.label("L_e_dma")
    I(f"""
    s_and_b32 s12, {sWV}, 1
    s_lshl_b32 s12, s12, 2
    v_add_u32 v4, s12, v2
    v_lshlrev_b32 v4, 1, v4
    v_xor_b32 v4, v4, v3
    v_lshlrev_b32 v4, 4, v4
    v_lshl_add_u32 v4, v2, 13, v4
    s_lshr_b32 s93, {sS}, 2
    s_mul_i32 s12, s93, 80
    s_lshl_b32 s13, {sWV}, 2
    s_add_u32 s12, s12, s13
    s_lshl_b32 s12, s12, 13
    s_lshl_b32 s13, {sH}, 8
    s_add_u32 s12, s12, s13
    s_lshl_b32 s13, {sWV}, 10
    s_add_u32 s13, s13, {L_WQ}
    """)
    srd("WQ")
    I(f"s_cmp_ge_u32 {sWV}, 4\ns_cbranch_scc1 L_e_d2")
    dma("v4", S_WQ, NT, 8192, 32 * 8192)
    g.label("L_e_d2")
    for i in range(2):
        dma("v4", S_WQ, NT, 8192, 32 * 8192)
    def ckv_block():
        for i in range(4):
            dma("v5", S_CKV, NT, CPITCH if i < 3 else 29 * CPITCH, 1024 if i < 3 else 29 * 1024)
    I(f"s_cmp_lt_u32 {sS}, 16\ns_cbranch_scc1 L_e_B")
    srd("CKV")
    I(f"""
    s_lshl_b32 s12, {sX}, 11
    s_lshl_b32 s13, {sM}, 7
    s_add_u32 s12, s12, s13
    s_lshl_b32 s13, {sWV}, 2
    s_add_u32 s12, s12, s13
    s_lshl_b32 s12, s12, 10
    s_mul_i32 s13, {sWV}, {4*CPITCH}
    s_add_u32 s13, s13, {L_CKV}
    """)
    for i in range(P["pre"]):
        ckv_block()
    I("s_mov_b32 s100, s12\ns_mov_b32 s101, s13\ns_branch L_e_srd")
    g.label("L_e_B")
    srd("WUK")
    I(f"""
    v_xor_b32 v4, v3, v2
    v_lshlrev_b32 v4, 4, v4
    v_lshl_add_u32 v4, v2, 13, v4
    s_lshl_b32 s12, {sSUB}, 7
    s_lshl_b32 s13, {sWV}, 4
    s_add_u32 s12, s12, s13
    s_lshl_b32 s12, s12, 13
    s_lshl_b32 s13, {sH}, 8
    s_add_u32 s12, s12, s13
    s_lshl_b32 s13, {sWV}, 12
    s_add_u32 s13, s13, {L_WUK}
    """)
    for i in range(4):
        dma("v4", S_WUK, NT, 1024, 4 * 8192)
        if i < 3:
            I(f"v_xor_b32 v4, {64 if i != 1 else 192}, v4")
    g.label("L_e_srd")
    srd("X", "CKV", "WUV", "WO", "W1", "W3", "W2", "OUT", "DBG", "WS")
    zero_stamps()
    g.stamp(0)
    I("s_barrier")
    I(f"""
    s_cmp_lg_u32 {sWV}, 7
    s_cbranch_scc1 L_s_n7
    s_cmp_lt_u32 {sS}, 16
    s_cbranch_scc1 L_stA
    """)
    nonce_and_flag(f"vmcnt({2+4*P['pre']})")
    I("s_branch L_stA")
    g.label("L_s_n7")
    I(f"s_and_b32 s12, {sWV}, 6\ns_cmp_lg_u32 s12, 4\ns_cbranch_scc1 L_stA")
    I(f"""
    s_cmp_ge_u32 {sS}, 16
    s_cbranch_scc1 L_ln_A
    s_waitcnt vmcnt(6)
    s_branch L_ln
    L_ln_A:
    s_waitcnt vmcnt({2+4*P['pre']})
    L_ln:
    """)
    for i in range(5):
        I(f"v_lshlrev_b32 v{32+2*i}, 16, v{8+i}\nv_and_b32 v{33+2*i}, 0xffff0000, v{8+i}")
    I("v_add_f32 v5, v32, v33\nv_add_f32 v6, v34, v35")
    for i in range(2, 5):
        I(f"v_add_f32 v5, v5, v{32+2*i}\nv_add_f32 v6, v6, v{33+2*i}")
    I("v_add_f32 v5, v5, v6")
    g.wave_allreduce(5, 6)
    I(f"v_mul_f32 v5, {f2u(1.0/640):#x}, v5")
    for i in range(10):
        I(f"v_sub_f32 v{32+i}, v{32+i}, v5")
    I("v_mul_f32 v5, v32, v32\nv_mul_f32 v6, v33, v33")
    for i in range(1, 5):
        I(f"v_fmac_f32 v5, v{32+2*i}, v{32+2*i}\nv_fmac_f32 v6, v{33+2*i}, v{33+2*i}")
    I("v_add_f32 v5, v5, v6")
    g.wave_allreduce(5, 6)
    I(f"""
    v_mov_b32 v6, {f2u(1e-5):#x}
    s_mov_b32 s13, {f2u(1.0/640):#x}
    v_fma_f32 v5, v5, s13, v6
    v_rsq_f32 v5, v5
    v_add_u32 v4, s15, v100
    """)
    for i in range(10):
        I(f"v_mul_f32 v{32+i}, v{32+i}, v5")
    for i in range(5):
        I(f"v_cvt_pk_bf16_f32 v{8+i}, v{32+2*i}, v{33+2*i}")
    for i in range(5):
        I(f"ds_write_b32 v4, v{8+i} offset:{L_XN+4*i}")
    g.stamp(16)
    g.label("L_stA")
    I(f"""
    v_lshrrev_b32 v4, 2, v1
    v_and_b32 v5, 7, v4
    v_lshlrev_b32 v5, 1, v5
    v_bfe_u32 v6, v1, 1, 1
    s_lshl_b32 s12, {sWV}, 1
    v_add_u32 v6, s12, v6
    v_xor_b32 v6, v6, v5
    v_lshlrev_b32 v6, 4, v6
    v_lshl_add_u32 v6, v4, 8, v6
    v_and_b32 v5, 1, v1
    v_lshl_add_u32 v6, v5, 3, v6
    v_add_u32 v6, {L_WQ}, v6
    v_and_b32 v5, 1, v3
    v_mul_u32_u24 v5, 1280, v5
    v_lshl_add_u32 v5, v2, 3, v5
    s_lshr_b32 s93, {sS}, 2
    s_mul_i32 s12, s93, 160
    v_add_u32 v5, s12, v5
    v_and_b32 v198, 1, v2
    v_lshlrev_b32 v198, 9, v198
    v_lshrrev_b32 v4, 1, v2
    v_lshl_add_u32 v198, v4, 7, v198
    v_lshl_add_u32 v198, v3, 3, v198
    v_mov_b32 v4, {OOB >> 1}
    v_cmp_gt_u32 vcc, 2, v3
    s_lshl_b32 s12, {sH}, 12
    s_lshl_b32 s13, s93, 4
    v_cndmask_b32 v198, v4, v198, vcc
    s_add_u32 s12, s12, s13
    s_lshr_b32 s13, {sWV}, 1
    s_lshl_b32 s13, s13, 10
    s_add_u32 s12, s12, s13
    s_and_b32 s13, {sWV}, 1
    s_lshl_b32 s13, s13, 8
    s_add_u32 s12, s12, s13
    s_lshl_b32 s99, s12, 1
    s_add_u32 s98, s99, {XAF}
    s_add_u32 s99, s99, {XAS}
    v_lshlrev_b32 v199, 1, v198
    v_mov_b32 v8, 0
    v_mov_b32 v9, 0
    v_mov_b32 v10, 0
    v_mov_b32 v11, 0
    s_cmp_lt_u32 {sS}, 16
    s_cbranch_scc1 L_wB
    s_cmp_eq_u32 {sWV}, 7
    s_cbranch_scc1 L_wA7
    s_waitcnt vmcnt({4*P['pre']})
    L_wA7:
    s_waitcnt vmcnt({4*P['pre']+1})
    s_branch L_wE
    L_wB:
    s_waitcnt vmcnt(4)
    L_wE:
    """)
    g.bar()
    g.stamp(1)
    I(f"ds_read_b64 v[14:15], {VZ} offset:{L_CTRL}")
    for st in range(5):
        I(f"ds_read_b64_tr_b16 v[{32+2*st}:{33+2*st}], v6 offset:{4096*st}")
        I(f"ds_read_b64 v[{44+2*st}:{45+2*st}], v5 offset:{L_XN+32*st}")
    for st in range(5):
        I(f"s_waitcnt lgkmcnt({8-2*st})")
        I(f"v_mfma_f32_16x16x16_bf16 v[8:11], v[{32+2*st}:{33+2*st}], v[{44+2*st}:{45+2*st}], v[8:11]")
    I(f"""
    v_lshlrev_b32 v5, 4, v1
    s_mov_b32 s92, 0
    s_nop 5
    v_cvt_pk_bf16_f32 v12, v8, v9
    v_cvt_pk_bf16_f32 v13, v10, v11
    buffer_store_dwordx4 v[12:15], v199, {S_WS}, s98 offen
    v_mov_b32 v196, v12
    v_mov_b32 v197, v13
    """)
    g.stamp(2)
    I(f"s_cmp_ge_u32 {sS}, 16\ns_cbranch_scc1 L_Awg")
    FT = P['fast_tries']
    I(f"""
    s_lshl_b32 s12, {sH}, 12
    s_lshl_b32 s13, {sWV}, 9
    s_add_u32 s12, s12, s13
    s_lshl_b32 s95, s12, 1
    s_add_u32 s12, s95, {XAF}
    s_add_u32 s95, s95, {XAS}
    v_lshlrev_b32 v102, 3, v1
    v_add_u32 v96, s13, v102
    v_lshlrev_b32 v99, 15, v3
    v_lshl_add_u32 v99, v2, 3, v99
    v_mov_b32 v4, {OOB}
    v_cmp_gt_u32 vcc, 2, v3
    s_lshl_b32 s14, {sH}, 10
    s_lshl_b32 s15, {sSUB}, 8
    v_cndmask_b32 v99, v4, v99, vcc
    s_add_u32 s14, s14, s15
    s_lshl_b32 s15, {sWV}, 5
    s_add_u32 s14, s14, s15
    s_add_u32 s14, s14, {XB}
    v_xor_b32 v98, v3, v2
    v_lshlrev_b32 v98, 4, v98
    v_lshl_add_u32 v98, v3, 8, v98
    s_lshl_b32 s15, {sWV}, 12
    s_add_u32 s15, s15, {L_WUK}
    v_add_u32 v98, s15, v98
    s_mov_b32 s15, 0
    v_lshl_add_u32 v103, v3, 4, s13
    v_mov_b32 v8, 0
    v_mov_b32 v9, 0
    v_mov_b32 v10, 0
    v_mov_b32 v11, 0
    L_xa_loop:
    s_cmp_eq_u32 s15, 1
    s_cbranch_scc1 L_xa_chk
    buffer_load_dwordx2 v[14:15], {VZ}, {S_DBG}, 0 offen sc1
    buffer_load_dwordx2 v[36:37], v103, {S_WS}, 0 offen offset:{FLAGS+256} sc1
    buffer_load_dwordx4 v[32:35], v5, {S_WS}, s12 offen sc1
    s_waitcnt vmcnt(0)
    s_cmp_lg_u32 s92, 0
    s_cbranch_scc1 L_xa_n1
    ds_read_b128 v[16:19], v98
    v_xor_b32 v98, 64, v98
    ds_read_b128 v[20:23], v98
    v_xor_b32 v98, 192, v98
    ds_read_b128 v[24:27], v98
    v_xor_b32 v98, 64, v98
    ds_read_b128 v[28:31], v98
    L_xa_n1:
    v_cmp_ne_u32 vcc, 0, v14
    v_cmp_eq_u64 s[100:101], v[36:37], v[14:15]
    v_max_u32 v4, v32, v33
    s_and_b64 vcc, vcc, s[100:101]
    s_cmp_eq_u64 vcc, exec
    s_cbranch_scc0 L_xa_next
    v_cmp_ne_u32 vcc, -1, v4
    v_cmp_eq_u64 s[100:101], v[34:35], v[14:15]
    s_and_b32 vcc_lo, vcc_lo, 0x00ff00ff
    s_and_b32 vcc_hi, vcc_hi, 0x00ff00ff
    s_and_b32 s100, s100, 0xff00ff00
    s_and_b32 s101, s101, 0xff00ff00
    s_or_b64 vcc, s[100:101], vcc
    s_cmp_eq_u64 vcc, exec
    s_cbranch_scc1 L_xa_got
    s_cmp_le_u32 s92, {FT}
    s_cbranch_scc1 L_xa_next
    buffer_load_dwordx4 v[32:35], v5, {S_WS}, s95 offen sc1
    s_waitcnt vmcnt(0)
    v_cmp_eq_u64 vcc, v[34:35], v[14:15]
    s_cmp_eq_u64 vcc, exec
    s_cbranch_scc0 L_xa_next
    L_xa_got:
    ds_write_b64 v96, v[32:33] offset:{L_XAL}
    s_mov_b32 s15, 1
    """)
    g.signal(C_XA)
    I(f"""
    L_xa_chk:
    ds_read_b32 v4, {VZ} offset:{L_CNT+4*C_XA}
    s_waitcnt lgkmcnt(0)
    v_cmp_gt_u32 vcc, 8, v4
    s_cbranch_vccz L_xa_done
    L_xa_next:
    s_cmp_lg_u32 s92, {FT}
    s_cbranch_scc1 L_xa_nf
    s_mov_b32 s93, 0
    L_xa_non:
    buffer_load_dwordx2 v[14:15], {VZ}, {S_DBG}, 0 offen sc1
    s_waitcnt vmcnt(0)
    v_cmp_ne_u32 vcc, 0, v14
    s_add_u32 s93, s93, 1
    s_cmp_eq_u64 vcc, exec
    s_cbranch_scc1 L_xa_non_d
    s_sleep 4
    s_cmp_lt_u32 s93, {POLL_LIMIT}
    s_cbranch_scc1 L_xa_non
    L_xa_non_d:
    v_mov_b32 v12, v196
    v_mov_b32 v13, v197
    buffer_store_dwordx4 v[12:15], v199, {S_WS}, s99 offen sc1
    L_xa_nf:
    s_and_b32 s93, s92, 3
    s_cmp_lg_u32 s93, 3
    s_cbranch_scc1 L_xa_nr
    buffer_store_dwordx2 v[196:197], v199, {S_WS}, s98 offen
    L_xa_nr:
    s_add_u32 s92, s92, 1
    s_cmp_lt_u32 s92, {POLL_LIMIT}
    s_cbranch_scc1 L_xa_loop
    L_xa_done:
    """)
    g.stamp(3)
    for k in range(8):
        I(f"ds_read_b64 v[{32+2*k}:{33+2*k}], v102 offset:{L_XAL+512*k}")
    for k in range(8):
        I(f"s_waitcnt lgkmcnt({7-k})")
        I(f"v_mfma_f32_16x16x16_bf16 v[8:11], v[{16+2*k}:{17+2*k}], v[{32+2*k}:{33+2*k}], v[8:11]")
    SC = (128 ** -0.5) * 1.4426950408889634
    I("s_nop 7")
    for r in (8, 4, 2):
        for k in range(4):
            I(f"v_add_f32_dpp v{8+k}, v{8+k}, v{8+k} row_ror:{r} row_mask:0xf bank_mask:0xf")
    for k in range(4):
        I(f"v_mul_f32 v{8+k}, {f2u(SC):#x}, v{8+k}")
    I(f"""
    v_cvt_pk_bf16_f32 v104, v8, v9
    v_cvt_pk_bf16_f32 v105, v10, v11
    buffer_store_dwordx2 v[104:105], v99, {S_WS}, s14 offen sc1
    v_mov_b32 v12, v196
    v_mov_b32 v13, v197
    v_mov_b32 v108, v14
    v_mov_b32 v109, v15
    """)
    g.stamp(4)
    I(f"""
    s_barrier
    buffer_store_dwordx4 v[12:15], v199, {S_WS}, s99 offen sc1
    s_cmp_lg_u32 {sWV}, 7
    s_cbranch_scc1 L_B_pr
    v_mov_b32 v4, {OOB}
    v_cmp_eq_u32 vcc, 0, v1
    s_lshl_b32 s14, {sX}, 5
    s_add_u32 s14, s14, {sS}
    v_cndmask_b32 v7, v4, 0, vcc
    s_lshl_b32 s14, s14, 4
    s_add_u32 s14, s14, {FLAGS}
    s_getreg_b32 s15, hwreg(HW_REG_XCC_ID)
    v_mov_b32 v110, s15
    v_mov_b32 v111, 0
    buffer_store_dwordx4 v[108:111], v7, {S_WS}, s14 offen sc1
    L_B_pr:
    """)
    if P["pf_rows"]:
        n = P["pf_rows"] // 64
        I(f"""
        s_lshl_b32 s12, {sX}, 11
        s_lshl_b32 s13, {sM}, 7
        s_add_u32 s12, s12, s13
        s_add_u32 s12, s12, {128 - P["pf_rows"]}
        s_mul_i32 s13, {sWV}, {8*n}
        s_add_u32 s12, s12, s13
        s_lshl_b32 s12, s12, 10
        v_lshlrev_b32 v4, 7, v1
        """)
        for i in range(n):
            I(f"buffer_load_dword v{194+i}, v4, {S_CKV}, s12 offen nt\ns_add_u32 s12, s12, 8192")
    I(f"""
    s_lshl_b32 s12, {sX}, 4
    s_add_u32 s12, s12, {sM}
    s_lshl_b32 s12, s12, 7
    s_add_u32 s12, s12, {XH}
    s_mov_b32 s92, 0
    s_cmp_lg_u32 {sWV}, 0
    s_cbranch_scc1 L_B_hd
    L_B_hp:
    buffer_load_dwordx2 v[12:13], {VZ}, {S_WS}, s12 offen sc1
    s_waitcnt vmcnt(0)
    v_cmp_eq_u64 vcc, v[12:13], v[108:109]
    s_add_u32 s92, s92, 1
    s_cbranch_vccnz L_B_hd
    s_sleep 4
    s_cmp_lt_u32 s92, 200
    s_cbranch_scc1 L_B_hp
    L_B_hd:
    s_barrier
    """)
    g.stamp(26)
    g.label("L_B_p2")
    I(f"""
    s_cmp_ge_u32 {sWV}, 4
    s_cbranch_scc1 L_B_np
    s_lshl_b32 s12, {sX}, 5
    s_lshl_b32 s13, {sM}, 1
    s_add_u32 s12, s12, s13
    s_lshr_b32 s13, {sWV}, 1
    s_add_u32 s12, s12, s13
    s_mul_i32 s12, s12, {C1J}
    s_and_b32 s13, {sWV}, 1
    s_lshl_b32 s13, s13, 13
    s_add_u32 s12, s12, s13
    s_add_u32 s12, s12, {XC1D}
    v_lshlrev_b32 v4, 7, v1
    buffer_load_dword v194, v4, {S_WS}, s12 offen nt
    L_B_np:
    v_lshrrev_b32 v4, 2, v1
    v_lshlrev_b32 v4, 13, v4
    v_and_b32 v6, 3, v1
    v_lshl_add_u32 v4, v6, 4, v4
    s_lshl_b32 s12, {sWV}, 17
    s_lshl_b32 s13, {sH}, 8
    s_add_u32 s12, s12, s13
    s_lshl_b32 s13, {sSUB}, 6
    s_add_u32 s12, s12, s13
    s_lshl_b32 s13, {sWV}, 10
    s_add_u32 s13, s13, {L_WUV}
    """)
    for i in range(4):
        dma("v4", S_WUV, NT, 8192, 1 << 20)
    I(f"""
    s_lshl_b32 s12, {sH}, 7
    s_lshl_b32 s13, {sSUB}, 5
    s_add_u32 s12, s12, s13
    s_mul_i32 s12, s12, 1280
    s_lshl_b32 s13, {sWV}, 10
    s_add_u32 s12, s12, s13
    s_add_u32 s13, s13, {L_WO}
    """)
    for i in range(5):
        dma("v5", S_WO, NT, 8192, 8192)
    I(f"""
    v_bfe_u32 v4, v1, 2, 2
    v_lshl_add_u32 v4, v2, 3, v4
    v_lshlrev_b32 v16, 6, v4
    v_lshl_add_u32 v16, v6, 3, v16
    s_lshl_b32 s12, {sWV}, 12
    s_add_u32 s12, s12, {L_WUV}
    v_add_u32 v16, s12, v16
    v_mul_u32_u24 v17, 1280, v4
    v_lshl_add_u32 v17, v6, 3, v17
    s_mul_i32 s12, {sWV}, 160
    s_add_u32 s12, s12, {L_WO}
    v_add_u32 v17, s12, v17
    v_and_b32 v18, 7, v3
    v_lshlrev_b32 v18, 10, v18
    v_lshl_add_u32 v18, v2, 4, v18
    s_lshl_b32 s12, {sH}, 13
    s_lshl_b32 s13, {sWV}, 7
    s_add_u32 s12, s12, s13
    s_add_u32 s12, s12, {XC2D}
    v_and_b32 v4, 1, v2
    v_lshlrev_b32 v19, 5, v4
    s_lshl_b32 s13, {sH}, 6
    s_add_u32 s13, s13, {XC2M}
    v_lshl_add_u32 v20, v4, 5, v3
    v_lshlrev_b32 v20, 5, v20
    s_lshl_b32 s14, {sWV}, 2
    v_add_u32 v20, s14, v20
    v_lshlrev_b32 v21, 5, v1
    s_lshl_b32 s14, {sWV}, 7
    v_lshl_add_u32 v22, v1, 1, s14
    v_and_b32 v23, 1, v3
    v_lshlrev_b32 v23, 6, v23
    v_lshl_add_u32 v23, v2, 4, v23
    v_add_u32 v23, s14, v23
    v_mul_u32_u24 v24, 2560, v3
    v_lshl_add_u32 v24, v2, 4, v24
    v_mov_b32 v4, {OOB}
    v_cmp_gt_u32 vcc, 2, v3
    s_lshl_b32 s93, {sX}, 4
    s_add_u32 s93, s93, {sM}
    v_cndmask_b32 v24, v4, v24, vcc
    s_mul_i32 s93, s93, 5120
    s_mul_i32 s94, {sWV}, 320
    s_add_u32 s93, s93, s94
    s_add_u32 s93, s93, {XD1}
    """)
    I(f"s_cmp_lg_u32 {sWV}, 7\ns_cbranch_scc1 L_B_nu\nv_mov_b32 v14, v108\nv_mov_b32 v15, v109")
    verify_flags(32, False, False)
    g.label("L_B_nu")
    for r in list(range(8, 16)) + list(range(64, 84)):
        I(f"v_mov_b32 v{r}, 0")
    g.bar("vmcnt(0) lgkmcnt(0)")
    g.stamp(18)
    I(f"""
    ds_read_b32 v4, {VZ} offset:{L_CTRL+8}
    s_cmp_lg_u32 {sWV}, 0
    s_cbranch_scc1 L_B_np3
    s_cmp_ge_u32 {sM}, 10
    s_cbranch_scc1 L_B_np3
    v_lshrrev_b32 v5, 1, v1
    v_mul_u32_u24 v5, 2560, v5
    v_and_b32 v6, 1, v1
    v_lshl_add_u32 v5, v6, 7, v5
    s_mul_i32 s14, {sX}, {16*5120}
    s_lshl_b32 s94, {sM}, 8
    s_add_u32 s14, s14, s94
    s_add_u32 s14, s14, {XD1}
    buffer_load_dword v6, v5, {S_WS}, s14 offen sc1 nt
    L_B_np3:
    """)
    for t in range(2):
        for nu in range(2):
            for tt in range(2):
                r = 96 + (t * 2 + nu) * 4 + 2 * tt
                I(f"ds_read_b64_tr_b16 v[{r}:{r+1}], v16 offset:{(32*t+4*tt)*64+32*nu}")
    for u in range(5):
        for tt in range(2):
            r = 112 + 4 * u + 2 * tt
            I(f"ds_read_b64_tr_b16 v[{r}:{r+1}], v17 offset:{32*u+4*tt*1280}")
    I("s_waitcnt lgkmcnt(0)\nv_readfirstlane_b32 s15, v4")
    g.poll([f"buffer_load_dwordx4 v[32:35], v18, {S_WS}, s12 offen sc1",
            f"buffer_load_dwordx4 v[36:39], v18, {S_WS}, s12 offen offset:64 sc1",
            f"buffer_load_dwordx4 v[40:43], v19, {S_WS}, s13 offen sc1",
            f"buffer_load_dwordx4 v[44:47], v19, {S_WS}, s13 offen offset:16 sc1"],
           range(32, 48), delay=P["d_c2"], backoff=P["bo_c2"])
    g.stamp(10)
    I(f"""
    v_mfma_f32_16x16x32_bf16 v[8:11], v[32:35], v[96:99], v[8:11]
    v_mfma_f32_16x16x32_bf16 v[12:15], v[32:35], v[100:103], v[12:15]
    v_mfma_f32_16x16x32_bf16 v[8:11], v[36:39], v[104:107], v[8:11]
    v_mfma_f32_16x16x32_bf16 v[12:15], v[36:39], v[108:111], v[12:15]
    v_max_f32 v4, v40, v42
    v_max3_f32 v4, v4, v44, v46
    v_sub_f32 v40, v40, v4
    v_sub_f32 v42, v42, v4
    v_sub_f32 v44, v44, v4
    v_sub_f32 v46, v46, v4
    v_exp_f32 v40, v40
    v_exp_f32 v42, v42
    v_exp_f32 v44, v44
    v_exp_f32 v46, v46
    s_nop 0
    v_mul_f32 v4, v40, v41
    v_fmac_f32 v4, v42, v43
    v_fmac_f32 v4, v44, v45
    v_fmac_f32 v4, v46, v47
    v_rcp_f32 v4, v4
    v_mul_f32 v5, v40, v8
    v_mul_f32 v6, v40, v12
    v_fmac_f32 v5, v42, v9
    v_fmac_f32 v6, v42, v13
    v_fmac_f32 v5, v44, v10
    v_fmac_f32 v6, v44, v14
    v_fmac_f32 v5, v46, v11
    v_fmac_f32 v6, v46, v15
    v_mul_f32 v5, v5, v4
    v_mul_f32 v6, v6, v4
    ds_write_b32 v20, v5 offset:{L_DR}
    ds_write_b32 v20, v6 offset:{L_DR+512}
    """)
    g.bar()
    I(f"""
    ds_read_b128 v[32:35], v21 offset:{L_DR}
    ds_read_b128 v[36:39], v21 offset:{L_DR+16}
    s_waitcnt lgkmcnt(0)
    v_add_f32 v32, v32, v33
    v_add_f32 v34, v34, v35
    v_add_f32 v36, v36, v37
    v_add_f32 v38, v38, v39
    v_add_f32 v32, v32, v34
    v_add_f32 v36, v36, v38
    v_add_f32 v32, v32, v36
    v_cvt_pk_bf16_f32 v32, v32, v32
    ds_write_b16 v22, v32 offset:{L_CT}
    s_waitcnt lgkmcnt(0)
    ds_read_b128 v[12:15], v23 offset:{L_CT}
    s_waitcnt lgkmcnt(0)
    """)
    for u in range(5):
        I(f"v_mfma_f32_16x16x32_bf16 v[{64+4*u}:{67+4*u}], v[{112+4*u}:{115+4*u}], v[12:15], v[{64+4*u}:{67+4*u}]")
    I("s_nop 5\ns_cmp_eq_u32 s15, 1\ns_cbranch_scc1 L_e_fast")
    for fl, lab in (("sc1", None), ("", "L_e_fast")):
        if lab:
            g.label(lab)
        for u in range(5):
            I(f"buffer_store_dwordx4 v[{64+4*u}:{67+4*u}], v24, {S_WS}, s93 offen offset:{64*u} {fl}")
        if not lab:
            I("s_branch L_e_done")
    g.label("L_e_done")
    g.stamp(11)
    I(f"""
    s_cmp_lg_u32 {sWV}, 0
    s_cbranch_scc1 L_fin
    s_cmp_ge_u32 {sM}, 10
    s_cbranch_scc1 L_fin
    v_mul_u32_u24 v5, 2560, v2
    v_lshl_add_u32 v5, v3, 4, v5
    v_and_b32 v4, 1, v2
    v_mul_u32_u24 v7, 2560, v4
    v_lshl_add_u32 v7, v3, 4, v7
    v_lshrrev_b32 v4, 1, v2
    v_lshl_add_u32 v7, v4, 3, v7
    s_mul_i32 s93, {sX}, 5120
    s_add_u32 s93, s93, s94
    s_add_u32 s93, s93, {XD2}
    """)
    lds = [f"s_add_u32 s13, s14, {i*2*5120}\nbuffer_load_dwordx4 v[{32+4*i}:{35+4*i}], v5, {S_WS}, s13 offen sc1"
           for i in range(8)]
    g.poll(lds, range(32, 64), delay=P["d_d1"], tmp="v6")
    g.tree_add(32, 8, 4, 4)
    I(f"""
    s_nop 1
    v_permlane32_swap_b32 v32, v34
    v_permlane32_swap_b32 v33, v35
    v_add_f32 v32, v32, v34
    v_add_f32 v33, v33, v35
    buffer_store_dwordx2 v[32:33], v7, {S_WS}, s93 offen sc1
    """)
    g.stamp(12)
    I("s_branch L_fin")

    g.label("L_Awg")
    I(f"""
    s_mov_b32 s12, s100
    s_mov_b32 s13, s101
    s_barrier
    buffer_store_dwordx4 v[12:15], v199, {S_WS}, s99 offen sc1
    """)

    for i in range(3 - P["pre"]):
        ckv_block()
    I(f"s_cmp_lg_u32 {sWV}, 6\ns_cbranch_scc1 L_A_nf")
    for i in range(4):
        I(f"buffer_load_dwordx4 v[{112+4*i}:{115+4*i}], v5, {S_WS}, 0 offen offset:{FLAGS+1024*i} sc1")
    g.label("L_A_nf")
    ckv_block()
    I(f"""
    v_and_b32 v16, 7, v3
    v_lshlrev_b32 v16, 1, v16
    v_lshrrev_b32 v4, 3, v3
    v_add_u32 v16, v16, v4
    s_lshl_b32 s14, {sWV}, 4
    v_add_u32 v16, s14, v16
    v_mul_u32_u24 v16, {CPITCH}, v16
    v_lshl_add_u32 v16, v2, 8, v16
    v_add_u32 v16, {L_CKV}, v16
    v_and_b32 v17, 1, v2
    v_lshlrev_b32 v17, 3, v17
    v_bfe_u32 v4, v1, 2, 2
    v_lshl_add_u32 v17, v4, 1, v17
    v_lshrrev_b32 v4, 1, v2
    v_add_u32 v17, v17, v4
    v_mul_u32_u24 v17, {CPITCH}, v17
    v_and_b32 v4, 3, v1
    v_lshl_add_u32 v17, v4, 3, v17
    s_lshl_b32 s14, {sWV}, 7
    s_add_u32 s14, s14, {L_CKV}
    v_add_u32 v17, s14, v17
    v_mul_u32_u24 v18, {CPITCH}, v3
    v_lshl_add_u32 v18, v2, 8, v18
    v_lshlrev_b32 v19, 5, v3
    s_lshl_b32 s14, {sWV}, 2
    v_add_u32 v20, s14, v19
    s_lshr_b32 s14, {sWV}, 1
    s_lshl_b32 s14, s14, 10
    s_and_b32 s15, {sWV}, 1
    s_lshl_b32 s15, s15, 3
    s_add_u32 s14, s14, s15
    v_add_u32 v21, s14, v5
    s_mul_i32 s14, {sWV}, {4*CPITCH}
    v_add_u32 v22, s14, v5
    v_lshrrev_b32 v23, 1, v2
    v_and_b32 v4, 7, v3
    v_xor_b32 v23, v23, v4
    v_lshlrev_b32 v23, 4, v23
    v_lshl_add_u32 v23, v3, 7, v23
    v_and_b32 v4, 1, v2
    v_lshl_add_u32 v23, v4, 3, v23
    s_lshl_b32 s14, {sWV}, 12
    s_add_u32 s14, s14, {L_TR}
    v_add_u32 v23, s14, v23
    v_xor_b32 v24, 32, v23
    v_xor_b32 v25, 64, v23
    v_xor_b32 v26, 96, v23
    v_lshrrev_b32 v30, 3, v1
    v_and_b32 v31, 7, v1
    v_xor_b32 v27, v30, v31
    v_lshlrev_b32 v27, 4, v27
    v_lshl_add_u32 v27, v30, 7, v27
    v_add_u32 v27, s14, v27
    s_mov_b32 s14, {C1J}
    v_mul_lo_u32 v28, v30, s14
    v_lshl_add_u32 v28, v31, 4, v28
    v_lshlrev_b32 v29, 7, v1
    v_mov_b32 v4, {OOB}
    v_cmp_gt_u32 vcc, 32, v1
    s_lshr_b32 s94, {sX}, 2
    s_lshl_b32 s94, s94, 15
    v_cndmask_b32 v29, v4, v29, vcc
    s_lshl_b32 s14, {sWV}, 12
    s_add_u32 s94, s94, s14
    s_add_u32 s94, s94, {XB}
    """)
    xb_loads = [f"buffer_load_dwordx4 v[{96+4*t}:{99+4*t}], v5, {S_WS}, s94 offen offset:{1024*t} sc1" for t in range(4)]
    for kb in range(4):
        if kb == 0:
            g.bar("vmcnt(12)")
        elif kb == 1:
            g.bar("vmcnt(8) lgkmcnt(0)")
        elif kb == 2:
            I(f"s_cmp_lg_u32 {sWV}, 6\ns_cbranch_scc1 L_A_w2")
            verify_flags(112, True, True, first_wait="vmcnt(4)", onlyA=True)
            g.label("L_A_w2")
            g.bar("vmcnt(4) lgkmcnt(0)")
            for l in xb_loads:
                I(l)
            I(f"""
            s_lshl_b32 s14, {sX}, 4
            s_add_u32 s14, s14, {sM}
            s_lshl_b32 s14, s14, 7
            s_add_u32 s14, s14, {XH}
            v_mov_b32 v4, {OOB}
            v_cmp_eq_u32 vcc, 0, v0
            s_nop 1
            v_cndmask_b32 v4, v4, 0, vcc
            buffer_store_dwordx2 v[14:15], v4, {S_WS}, s14 offen sc1
            """)
        else:
            g.bar("vmcnt(5) lgkmcnt(0)")
            g.stamp(6)
        for tau in range(4):
            for t in range(2):
                dst = PVA + (tau * 4 + kb) * 4 + 2 * t
                I(f"ds_read_b64_tr_b16 v[{dst}:{dst+1}], v17 offset:{16*t*CPITCH + 32*tau}")
        if kb < 3:
            I(f"v_add_u32 v17, {32*CPITCH}, v17")
        I(f"s_lshr_b32 s14, {sWV}, 1\ns_cmp_lg_u32 s14, {kb}\ns_cbranch_scc1 L_A_na{kb}")
        for j in range(16):
            I(f"ds_read_b128 v[{32+4*j}:{35+4*j}], v16 offset:{16*j}")
        g.label(f"L_A_na{kb}")
    I(f"ds_read_b32 v6, {VZ} offset:{L_CTRL+8}")
    g.poll(xb_loads, range(96, 112), preissued=True, backoff=P["bo_b"])
    g.stamp(5)
    for t in range(4):
        I(f"ds_write_b128 v22, v[{96+4*t}:{99+4*t}] offset:{L_QA+CPITCH*t}")
    I(f"""
    s_lshl_b32 s93, {sX}, 4
    s_add_u32 s93, s93, {sM}
    s_lshl_b32 s93, s93, 8
    s_add_u32 s93, s93, {XC1M}
    s_cmp_lg_u32 {sWV}, 3
    s_cbranch_scc1 L_A_npm
    v_lshlrev_b32 v4, 2, v1
    buffer_load_dword v194, v4, {S_WS}, s93 offen sc1 nt
    L_A_npm:
    """)
    for r in range(8, 16):
        I(f"v_mov_b32 v{r}, 0")
    g.bar()
    I("v_readfirstlane_b32 s15, v6")
    seq = [(j, ht) for j in range(16) for ht in range(2)]
    def qread(i):
        j, ht = seq[i]
        r = 96 + 4 * (i % 8)
        I(f"ds_read_b128 v[{r}:{r+3}], v18 offset:{L_QA+16*CPITCH*ht+16*j}")
    for i in range(8):
        qread(i)
    for i in range(32):
        j, ht = seq[i]
        r = 96 + 4 * (i % 8)
        I(f"s_waitcnt lgkmcnt({min(7, 31 - i)})")
        I(f"v_mfma_f32_16x16x32_bf16 v[{8+4*ht}:{11+4*ht}], v[{32+4*j}:{35+4*j}], v[{r}:{r+3}], v[{8+4*ht}:{11+4*ht}]")
        if i + 8 < 32:
            qread(i + 8)
    for r in range(32, 40):
        I(f"v_mov_b32 v{r}, 0")
    I(f"""
    v_max_f32 v4, v8, v9
    v_max_f32 v6, v12, v13
    v_max3_f32 v4, v4, v10, v11
    v_max3_f32 v6, v6, v14, v15
    s_nop 1
    v_permlane16_swap_b32 v4, v6
    v_max_f32 v4, v4, v6
    v_mov_b32 v6, v4
    s_nop 1
    v_permlane32_swap_b32 v4, v6
    v_max_f32 v4, v4, v6
    """)
    I(f"""
    v_and_b32 v6, 1, v2
    v_lshl_add_u32 v7, v6, 9, v20
    ds_write_b32 v7, v4 offset:{L_MB}
    """)
    g.stamp(20)
    for r in range(40, 64):
        I(f"v_mov_b32 v{r}, 0")
    g.bar()
    g.stamp(21)
    I(f"""
    ds_read_b128 v[96:99], v19 offset:{L_MB}
    ds_read_b128 v[100:103], v19 offset:{L_MB+16}
    ds_read_b128 v[104:107], v19 offset:{L_MB+512}
    ds_read_b128 v[108:111], v19 offset:{L_MB+528}
    s_waitcnt lgkmcnt(2)
    v_max3_f32 v4, v96, v97, v98
    v_max3_f32 v4, v4, v99, v100
    v_max3_f32 v4, v4, v101, v102
    v_max_f32 v4, v4, v103
    s_waitcnt lgkmcnt(0)
    v_max3_f32 v6, v104, v105, v106
    v_max3_f32 v6, v6, v107, v108
    v_max3_f32 v6, v6, v109, v110
    v_max_f32 v6, v6, v111
    """)
    for k in range(4):
        I(f"v_sub_f32 v{8+k}, v{8+k}, v4\nv_sub_f32 v{12+k}, v{12+k}, v6")
    for k in range(8):
        I(f"v_exp_f32 v{8+k}, v{8+k}")
    I(f"""
    s_nop 0
    v_cvt_pk_bf16_f32 v96, v8, v9
    v_cvt_pk_bf16_f32 v97, v10, v11
    v_cvt_pk_bf16_f32 v98, v12, v13
    v_cvt_pk_bf16_f32 v99, v14, v15
    ds_write_b64 v21, v[96:97] offset:{L_PB}
    ds_write_b64 v21, v[98:99] offset:{L_PB+4096}
    v_add_f32 v4, v8, v9
    v_add_f32 v6, v12, v13
    v_add_f32 v8, v10, v11
    v_add_f32 v9, v14, v15
    v_add_f32 v4, v4, v8
    v_add_f32 v6, v6, v9
    s_nop 1
    v_permlane16_swap_b32 v4, v6
    v_add_f32 v4, v4, v6
    v_mov_b32 v6, v4
    s_nop 1
    v_permlane32_swap_b32 v4, v6
    v_add_f32 v4, v4, v6
    ds_write_b32 v7, v4 offset:{L_LB}
    s_mul_i32 s12, {sX}, {32*C1J}
    s_lshl_b32 s13, {sM}, 10
    s_add_u32 s12, s12, s13
    s_lshl_b32 s13, {sWV}, 7
    s_add_u32 s12, s12, s13
    s_add_u32 s12, s12, {XC1D}
    s_lshl_b32 s13, {sX}, 12
    s_lshl_b32 s14, {sM}, 3
    s_add_u32 s13, s13, s14
    s_add_u32 s13, s13, {XC1M}
    v_and_b32 v6, 31, v1
    v_lshlrev_b32 v6, 5, v6
    """)
    g.bar()
    g.stamp(22)
    for q in range(8):
        I(f"ds_read_b128 v[{64+4*q}:{67+4*q}], v5 offset:{L_PB+1024*q}")
    I("s_cmp_eq_u32 s15, 1\ns_cbranch_scc1 L_pv_fast")
    for fl, lab in (("sc1", None), ("", "L_pv_fast")):
        if lab:
            g.label(lab)
        for ht in range(2):
            I(f"s_waitcnt lgkmcnt({4 if ht == 0 else 0})")
            for tau in range(4):
                for kb in range(4):
                    acc = 32 + (tau * 2 + ht) * 4
                    a = PVA + (tau * 4 + kb) * 4
                    pb = 64 + (ht * 4 + kb) * 4
                    I(f"v_mfma_f32_16x16x32_bf16 v[{acc}:{acc+3}], v[{a}:{a+3}], v[{pb}:{pb+3}], v[{acc}:{acc+3}]")
                if ht == 1:
                    if tau == 0:
                        for tq in range(3):
                            acc = 32 + (tq * 2) * 4
                            I(f"v_cvt_pk_bf16_f32 v{acc}, v{acc}, v{acc+1}\nv_cvt_pk_bf16_f32 v{acc+1}, v{acc+2}, v{acc+3}")
                            I(f"ds_write_b64 v{23+tq}, v[{acc}:{acc+1}]")
                    if tau == 1:
                        acc = 32 + 6 * 4
                        I(f"v_cvt_pk_bf16_f32 v{acc}, v{acc}, v{acc+1}\nv_cvt_pk_bf16_f32 v{acc+1}, v{acc+2}, v{acc+3}")
                        I(f"ds_write_b64 v26, v[{acc}:{acc+1}]")
                        I("s_waitcnt lgkmcnt(0)")
                        I("ds_read_b128 v[96:99], v27\nds_read_b128 v[100:103], v27 offset:1024")
                    if tau == 2:
                        I("s_waitcnt lgkmcnt(1)")
                        I(f"buffer_store_dwordx4 v[96:99], v28, {S_WS}, s12 offen {fl}")
                        I(f"s_add_u32 s12, s12, {8*C1J}")
                        I("s_waitcnt lgkmcnt(0)")
                        I(f"buffer_store_dwordx4 v[100:103], v28, {S_WS}, s12 offen {fl}")
                        I(f"s_add_u32 s12, s12, {8*C1J}")
        I(f"""
        ds_read_b128 v[112:115], v6 offset:{L_MB}
        ds_read_b128 v[116:119], v6 offset:{L_MB+16}
        ds_read_b128 v[120:123], v6 offset:{L_LB}
        ds_read_b128 v[124:127], v6 offset:{L_LB+16}
        """)
        for tau in range(4):
            acc = 32 + (tau * 2 + 1) * 4
            I(f"v_cvt_pk_bf16_f32 v{acc}, v{acc}, v{acc+1}\nv_cvt_pk_bf16_f32 v{acc+1}, v{acc+2}, v{acc+3}")
            I(f"ds_write_b64 v{23+tau}, v[{acc}:{acc+1}] offset:2048")
        I("s_waitcnt lgkmcnt(0)")
        I("ds_read_b128 v[104:107], v27 offset:2048\nds_read_b128 v[108:111], v27 offset:3072")
        g.stamp(23)
        I(f"""
        v_max3_f32 v8, v112, v113, v114
        v_max3_f32 v8, v8, v115, v116
        v_max3_f32 v8, v8, v117, v118
        v_max_f32 v8, v8, v119
        s_waitcnt lgkmcnt(1)
        buffer_store_dwordx4 v[104:107], v28, {S_WS}, s12 offen {fl}
        s_add_u32 s12, s12, {8*C1J}
        s_waitcnt lgkmcnt(0)
        buffer_store_dwordx4 v[108:111], v28, {S_WS}, s12 offen {fl}
        v_add_f32 v9, v120, v121
        v_add_f32 v10, v122, v123
        v_add_f32 v11, v124, v125
        v_add_f32 v12, v126, v127
        v_add_f32 v9, v9, v10
        v_add_f32 v11, v11, v12
        v_add_f32 v9, v9, v11
        """)
        g.bar("vmcnt(0)")
        g.stamp(25)
        I(f"s_cmp_lg_u32 {sWV}, 0\ns_cbranch_scc1 L_c1_done")
        I(f"buffer_store_dwordx2 v[8:9], v29, {S_WS}, s13 offen {fl}")
        if not lab:
            I("s_branch L_c1_done")
    g.label("L_c1_done")
    g.stamp(7)
    I(f"""
    v_lshlrev_b32 v16, 3, v30
    s_lshl_b32 s14, {sX}, 5
    s_lshl_b32 s13, {sM}, 1
    s_add_u32 s14, s14, s13
    s_mul_i32 s12, s14, {C1J}
    v_lshlrev_b32 v7, 10, v30
    v_lshl_add_u32 v7, v31, 4, v7
    v_add_u32 v6, 8192, v7
    s_lshl_b32 s13, {sWV}, 7
    s_add_u32 s12, s12, s13
    s_add_u32 s12, s12, {XC1D}
    s_add_u32 s14, s12, {C1J}
    v_lshlrev_b32 v17, 4, v31
    v_lshl_add_u32 v17, v2, 2, v17
    v_bfe_u32 v4, v1, 3, 1
    v_lshl_add_u32 v17, v4, 13, v17
    s_lshl_b32 s95, {sM}, 4
    s_add_u32 s95, s95, {sX}
    s_lshl_b32 s94, s95, 10
    s_add_u32 s94, s94, s13
    s_add_u32 s94, s94, {XC2D}
    s_lshl_b32 s95, s95, 3
    s_add_u32 s95, s95, {XC2M}
    v_lshlrev_b32 v18, 3, v1
    v_and_b32 v4, 0x1f7, v0
    v_mov_b32 v19, {OOB}
    v_cmp_eq_u32 vcc, 0, v4
    s_nop 1
    v_cndmask_b32 v18, v19, v18, vcc
    """)
    g.poll([f"buffer_load_dwordx2 v[{32+2*q}:{33+2*q}], v16, {S_WS}, s93 offen offset:{64*q} sc1" for q in range(4)],
           range(32, 40), delay=P["d_c1"], backoff=1)
    I(f"""
    buffer_load_dwordx4 v[64:67], v7, {S_WS}, s12 offen sc1
    buffer_load_dwordx4 v[68:71], v6, {S_WS}, s12 offen sc1
    buffer_load_dwordx4 v[72:75], v7, {S_WS}, s14 offen sc1
    buffer_load_dwordx4 v[76:79], v6, {S_WS}, s14 offen sc1
    """)
    g.stamp(8)
    I(f"""
    v_max_f32 v8, v32, v34
    v_max_f32 v10, v36, v38
    s_nop 1
    v_max_f32_dpp v8, v8, v8 row_ror:8 row_mask:0xf bank_mask:0xf
    v_max_f32_dpp v10, v10, v10 row_ror:8 row_mask:0xf bank_mask:0xf
    v_mov_b32 v12, v8
    v_mov_b32 v13, v10
    s_nop 0
    v_permlane16_swap_b32 v8, v12
    v_permlane16_swap_b32 v10, v13
    v_max_f32 v8, v8, v12
    v_max_f32 v10, v10, v13
    v_mov_b32 v12, v8
    v_mov_b32 v13, v10
    s_nop 0
    v_permlane32_swap_b32 v8, v12
    v_permlane32_swap_b32 v10, v13
    v_max_f32 v8, v8, v12
    v_max_f32 v10, v10, v13
    v_sub_f32 v32, v32, v8
    v_sub_f32 v34, v34, v8
    v_sub_f32 v36, v36, v10
    v_sub_f32 v38, v38, v10
    v_exp_f32 v32, v32
    v_exp_f32 v34, v34
    v_exp_f32 v36, v36
    v_exp_f32 v38, v38
    s_nop 0
    v_mul_f32 v9, v32, v33
    v_mul_f32 v11, v36, v37
    v_fmac_f32 v9, v34, v35
    v_fmac_f32 v11, v38, v39
    s_nop 1
    v_add_f32_dpp v9, v9, v9 row_ror:8 row_mask:0xf bank_mask:0xf
    v_add_f32_dpp v11, v11, v11 row_ror:8 row_mask:0xf bank_mask:0xf
    v_mov_b32 v12, v9
    v_mov_b32 v13, v11
    s_nop 0
    v_permlane16_swap_b32 v9, v12
    v_permlane16_swap_b32 v11, v13
    v_add_f32 v9, v9, v12
    v_add_f32 v11, v11, v13
    v_mov_b32 v12, v9
    v_mov_b32 v13, v11
    s_nop 0
    v_permlane32_swap_b32 v9, v12
    v_permlane32_swap_b32 v11, v13
    v_add_f32 v9, v9, v12
    v_add_f32 v11, v11, v13
    v_cmp_eq_u32 vcc, 8, v1
    s_nop 1
    v_cndmask_b32 v8, v8, v10, vcc
    v_cndmask_b32 v9, v9, v11, vcc
    """)
    if diag and not P.get("lite"):
        I("s_waitcnt vmcnt(0)")
        g.stamp(24)
    for q in range(4):
        hh, i = q >> 1, q & 1
        ab = 40 + 8 * hh
        I(f"s_waitcnt vmcnt({3-q})")
        for d in range(4):
            src = 64 + 4 * q + d
            I(f"v_lshlrev_b32 v12, 16, v{src}\nv_and_b32 v13, 0xffff0000, v{src}")
            if i == 0:
                I(f"v_mul_f32 v{ab+2*d}, v{32+2*q}, v12\nv_mul_f32 v{ab+1+2*d}, v{32+2*q}, v13")
            else:
                I(f"v_fmac_f32 v{ab+2*d}, v{32+2*q}, v12\nv_fmac_f32 v{ab+1+2*d}, v{32+2*q}, v13")
    I("s_nop 1")
    for ab in (40, 48):
        for k in (0, 1, 4, 5):
            I(f"v_permlane16_swap_b32 v{ab+k}, v{ab+2+k}")
    for ab in (40, 48):
        for k in (0, 1, 4, 5):
            I(f"v_add_f32 v{ab+k}, v{ab+k}, v{ab+2+k}")
    I("s_nop 0")
    for ab in (40, 48):
        for k in (0, 1):
            I(f"v_permlane32_swap_b32 v{ab+k}, v{ab+4+k}")
    I(f"""
    v_add_f32 v40, v40, v44
    v_add_f32 v41, v41, v45
    v_add_f32 v48, v48, v52
    v_add_f32 v49, v49, v53
    v_cmp_lt_u32 vcc, 7, v3
    v_add_f32_dpp v40, v40, v40 row_ror:8 row_mask:0xf bank_mask:0xf
    v_add_f32_dpp v41, v41, v41 row_ror:8 row_mask:0xf bank_mask:0xf
    v_add_f32_dpp v48, v48, v48 row_ror:8 row_mask:0xf bank_mask:0xf
    v_add_f32_dpp v49, v49, v49 row_ror:8 row_mask:0xf bank_mask:0xf
    v_cvt_pk_bf16_f32 v40, v40, v41
    v_cvt_pk_bf16_f32 v48, v48, v49
    v_cndmask_b32 v40, v40, v48, vcc
    buffer_store_dword v40, v17, {S_WS}, s94 offen sc1
    buffer_store_dwordx2 v[8:9], v18, {S_WS}, s95 offen sc1
    """)
    g.stamp(9)
    g.bar("vmcnt(0)")
    I(f"s_cmp_eq_u32 {sUP}, 0\ns_cbranch_scc1 L_down")
    I(f"""
    v_mul_u32_u24 v4, 3456, v30
    v_and_b32 v6, 1, v2
    s_and_b32 s12, {sWV}, 1
    s_lshl_b32 s12, s12, 1
    v_add_u32 v6, s12, v6
    v_lshlrev_b32 v6, 1, v6
    v_xor_b32 v6, v6, v31
    v_lshl_add_u32 v4, v6, 4, v4
    s_mul_i32 s12, {sKC}, 160
    s_and_b32 s14, {sWV}, 3
    s_lshl_b32 s13, s14, 3
    s_add_u32 s12, s12, s13
    s_mul_i32 s12, s12, 3456
    s_lshl_b32 s13, {sFC}, 7
    s_add_u32 s12, s12, s13
    s_lshl_b32 s13, s14, 10
    s_cmp_ge_u32 {sWV}, 4
    s_cbranch_scc1 L_up_w3
    s_add_u32 s13, s13, {L_W1}
    """)
    for m in range(5):
        dma("v4", S_W1, NT, 4096, 32 * 3456)
    I("s_branch L_up_ld")
    g.label("L_up_w3")
    I(f"s_add_u32 s13, s13, {L_W3}")
    for m in range(5):
        dma("v4", S_W3, NT, 4096, 32 * 3456)
    g.label("L_up_ld")
    I(f"""
    v_bfe_u32 v4, v1, 3, 1
    v_and_b32 v6, 1, v2
    v_lshl_add_u32 v4, v6, 1, v4
    v_xor_b32 v4, s14, v4
    v_lshlrev_b32 v16, 5, v4
    v_bfe_u32 v4, v1, 2, 2
    v_lshl_add_u32 v4, v2, 3, v4
    v_lshl_add_u32 v16, v4, 7, v16
    v_and_b32 v4, 3, v1
    v_lshl_add_u32 v16, v4, 3, v16
    s_lshr_b32 s12, {sWV}, 2
    s_mul_i32 s12, s12, {L_W3-L_W1}
    v_add_u32 v16, s12, v16
    v_min_u32 v17, 2, v3
    v_mul_u32_u24 v17, 320, v17
    v_lshl_add_u32 v17, v2, 4, v17
    v_lshlrev_b32 v18, 2, v4
    v_mov_b32 v4, {OOB}
    v_cmp_gt_u32 vcc, 16, v1
    s_lshl_b32 s93, {sX}, 4
    s_add_u32 s93, s93, {sM}
    v_cndmask_b32 v19, v4, v5, vcc
    s_lshl_b32 s93, s93, 11
    s_andn2_b32 s94, s93, 0x1fff
    s_lshl_b32 s13, {sWV}, 8
    s_add_u32 s93, s93, s13
    s_add_u32 s93, s93, {XU}
    s_lshl_b32 s13, {sKC}, 8
    s_add_u32 s94, s94, s13
    s_add_u32 s94, s94, {XU}
    v_lshlrev_b32 v20, 11, v2
    v_lshl_add_u32 v20, v3, 4, v20
    v_min_u32 v21, 39, v1
    v_mov_b32 v8, 0
    v_mov_b32 v9, 0
    v_mov_b32 v10, 0
    v_mov_b32 v11, 0
    """)
    I(f"""
    s_sub_u32 s12, {sWV}, 1
    s_cmp_ge_u32 s12, 2
    s_cbranch_scc1 L_up_nx
    v_lshlrev_b32 v22, 3, v21
    s_mul_i32 s13, s12, 1280
    s_mul_i32 s14, {sKC}, 320
    s_add_u32 s13, s13, s14
    buffer_load_dwordx2 v[194:195], v22, {S_X}, s13 offen
    L_up_nx:
    s_cmp_lg_u32 {sWV}, 3
    s_cbranch_scc1 L_up_n1
    v_mov_b32 v12, 0x3f803f80
    v_mov_b32 v13, 0x3f803f80
    v_lshlrev_b32 v4, 3, v21
    ds_write_b64 v4, v[12:13] offset:{L_HB+640}
    L_up_n1:
    s_cmp_lg_u32 {sWV}, 0
    s_cbranch_scc1 L_up_n0
    v_lshrrev_b32 v4, 2, v3
    v_lshlrev_b32 v4, 11, v4
    v_bfe_u32 v6, v3, 1, 1
    v_lshl_add_u32 v4, v6, 10, v4
    v_and_b32 v6, 1, v3
    v_lshl_add_u32 v4, v6, 7, v4
    buffer_load_dword v194, v4, {S_WS}, s94 offen sc1 nt
    L_up_n0:
    """)
    g.bar("vmcnt(0) lgkmcnt(0)")
    g.stamp(19)
    for st in range(5):
        for tt in range(2):
            I(f"ds_read_b64_tr_b16 v[{96+4*st+2*tt}:{97+4*st+2*tt}], v16 offset:{L_W1+4096*st+512*tt}")
    I(f"s_cmp_ge_u32 s12, 2\ns_cbranch_scc1 L_up_mm")
    I(f"""
    v_lshlrev_b32 v7, 4, v21
    s_mul_i32 s13, s12, 2560
    s_mul_i32 s14, {sKC}, 640
    s_add_u32 s13, s13, s14
    s_add_u32 s13, s13, {XD2}
    s_mul_i32 s14, s12, 320
    v_add_u32 v22, s14, v22
    """)
    lds = [f"s_add_u32 s14, s13, {i*5120}\nbuffer_load_dwordx4 v[{32+4*i}:{35+4*i}], v7, {S_WS}, s14 offen sc1"
           for i in range(8)]
    g.poll(lds, range(32, 64), delay=P["d_d2"], tmp="v4", backoff=P["bo_d2"])
    g.stamp(13)
    g.tree_add(32, 8, 4, 4)
    h_from_sum(194)
    I(f"ds_write_b64 v22, v[8:9] offset:{L_HB}")
    g.signal(C_H)
    I(f"""
    v_lshlrev_b32 v32, 16, v8
    v_and_b32 v33, 0xffff0000, v8
    v_lshlrev_b32 v34, 16, v9
    v_and_b32 v35, 0xffff0000, v9
    v_add_f32 v12, v32, v33
    v_add_f32 v13, v34, v35
    v_add_f32 v12, v12, v13
    v_mul_f32 v13, v32, v32
    v_fmac_f32 v13, v33, v33
    v_fmac_f32 v13, v34, v34
    v_fmac_f32 v13, v35, v35
    v_cmp_gt_u32 vcc, 40, v1
    v_mov_b32 v8, 0
    v_mov_b32 v9, 0
    v_cndmask_b32 v12, 0, v12, vcc
    v_cndmask_b32 v13, 0, v13, vcc
    s_nop 1
    v_permlane16_swap_b32 v12, v13
    v_add_f32 v12, v12, v13
    v_mov_b32 v13, v12
    s_nop 1
    v_permlane32_swap_b32 v12, v13
    v_add_f32 v12, v12, v13
    """)
    g.wave_allreduce(12, 13, rows=False)
    I(f"""
    v_and_b32 v4, 1, v2
    v_lshlrev_b32 v4, 2, v4
    s_lshl_b32 s14, s12, 3
    v_add_u32 v4, s14, v4
    ds_write_b32 v4, v12 offset:{L_STAT}
    """)
    g.signal(C_U)
    g.label("L_up_mm")
    g.waitc(C_H, 2)
    for st in range(5):
        I(f"ds_read_b128 v[{32+4*st}:{35+4*st}], v17 offset:{L_HB+64*st}")
    for st in range(5):
        I(f"s_waitcnt lgkmcnt({4-st})")
        I(f"v_mfma_f32_16x16x32_bf16 v[8:11], v[{32+4*st}:{35+4*st}], v[{96+4*st}:{99+4*st}], v[8:11]")
    g.waitc(C_U, 2)
    I(f"""
    ds_read_b32 v12, v18 offset:{L_STAT}
    s_waitcnt lgkmcnt(0)
    s_nop 1
    v_mov_b32 v11, v12
    s_cmp_eq_u32 s15, 1
    s_cbranch_scc1 L_u_fast
    buffer_store_dwordx4 v[8:11], v19, {S_WS}, s93 offen sc1
    s_branch L_u_done
    L_u_fast:
    buffer_store_dwordx4 v[8:11], v19, {S_WS}, s93 offen
    L_u_done:
    """)
    g.stamp(12)
    I(f"s_cmp_lg_u32 {sWV}, 0\ns_cbranch_scc1 L_fin")
    I(f"""
    v_mul_u32_u24 v16, 3456, v2
    v_lshl_add_u32 v16, v3, 1, v16
    v_and_b32 v4, 0x21, v1
    v_mov_b32 v6, {OOB}
    v_cmp_eq_u32 vcc, 0, v4
    s_lshl_b32 s13, {sFC}, 2
    s_add_u32 s13, s13, {sKC}
    v_cndmask_b32 v16, v6, v16, vcc
    s_lshl_b32 s13, s13, 5
    s_add_u32 s13, s13, {XE}
    """)
    g.poll([f"buffer_load_dwordx4 v[32:35], v20, {S_WS}, s94 offen sc1",
            f"buffer_load_dwordx4 v[36:39], v20, {S_WS}, s94 offen offset:1024 sc1"],
           range(32, 40), delay=P["d_u"], backoff=1)
    g.stamp(13)
    for k in range(7):
        I(f"v_mov_b32 v{40+k}, v{32+k}")
    for k in range(7):
        I(f"v_permlane16_swap_b32 v{32+k}, v{40+k}")
    for k in range(7):
        I(f"v_add_f32 v{32+k}, v{32+k}, v{40+k}")
    for k in range(7):
        I(f"v_mov_b32 v{40+k}, v{32+k}")
    for k in range(7):
        I(f"v_permlane32_swap_b32 v{32+k}, v{40+k}")
    for k in range(7):
        I(f"v_add_f32 v{32+k}, v{32+k}, v{40+k}")
    I(f"""
    v_mov_b32_dpp v40, v35 quad_perm:[0,0,0,0] row_mask:0xf bank_mask:0xf
    v_mov_b32_dpp v41, v35 quad_perm:[1,1,1,1] row_mask:0xf bank_mask:0xf
    v_mov_b32_dpp v42, v35 quad_perm:[2,2,2,2] row_mask:0xf bank_mask:0xf
    v_mov_b32_dpp v43, v35 quad_perm:[3,3,3,3] row_mask:0xf bank_mask:0xf
    v_mul_f32 v40, {f2u(1.0/640):#x}, v40
    v_mul_f32 v41, {f2u(1.0/640):#x}, v41
    v_mul_f32 v42, {f2u(1.0/640):#x}, v42
    v_mul_f32 v43, {f2u(1.0/640):#x}, v43
    v_fma_f32 v41, -v40, v40, v41
    v_fma_f32 v43, -v42, v42, v43
    v_max_f32 v41, 0, v41
    v_max_f32 v43, 0, v43
    v_add_f32 v41, {f2u(1e-5):#x}, v41
    v_add_f32 v43, {f2u(1e-5):#x}, v43
    v_rsq_f32 v41, v41
    v_rsq_f32 v43, v43
    v_fma_f32 v32, -v40, v34, v32
    v_fma_f32 v33, -v42, v34, v33
    v_fma_f32 v36, -v40, v38, v36
    v_fma_f32 v37, -v42, v38, v37
    v_mul_f32 v32, v32, v41
    v_mul_f32 v33, v33, v43
    v_mul_f32 v36, v36, v41
    v_mul_f32 v37, v37, v43
    v_cvt_pk_bf16_f32 v8, v32, v33
    v_cvt_pk_bf16_f32 v9, v36, v37
    v_lshlrev_b32 v32, 16, v8
    v_and_b32 v33, 0xffff0000, v8
    v_lshlrev_b32 v34, 16, v9
    v_and_b32 v35, 0xffff0000, v9
    v_mul_f32 v36, {f2u(-1.4426950408889634):#x}, v32
    v_mul_f32 v37, {f2u(-1.4426950408889634):#x}, v33
    v_exp_f32 v36, v36
    v_exp_f32 v37, v37
    s_nop 0
    v_add_f32 v36, 1.0, v36
    v_add_f32 v37, 1.0, v37
    v_rcp_f32 v36, v36
    v_rcp_f32 v37, v37
    s_nop 0
    v_mul_f32 v32, v32, v36
    v_mul_f32 v33, v33, v37
    v_cvt_pk_bf16_f32 v8, v32, v33
    v_lshlrev_b32 v32, 16, v8
    v_and_b32 v33, 0xffff0000, v8
    v_mul_f32 v32, v32, v34
    v_mul_f32 v33, v33, v35
    v_cmp_eq_u32 vcc, 1, v2
    s_nop 0
    v_mov_b32_dpp v34, v32 row_ror:15 row_mask:0xf bank_mask:0xf
    v_mov_b32_dpp v35, v33 row_ror:15 row_mask:0xf bank_mask:0xf
    v_cvt_pk_bf16_f32 v8, v32, v34
    v_cvt_pk_bf16_f32 v9, v33, v35
    v_cndmask_b32 v8, v8, v9, vcc
    buffer_store_dword v8, v16, {S_WS}, s13 offen sc1
    """)
    g.stamp(14)
    I("s_branch L_fin")
    g.label("L_down")
    I(f"""
    v_lshrrev_b32 v4, 2, v1
    v_mul_u32_u24 v4, 1280, v4
    v_and_b32 v6, 3, v1
    v_lshl_add_u32 v4, v6, 4, v4
    s_mul_i32 s12, {sWV}, {16*1280}
    s_lshl_b32 s13, {sFC}, 6
    s_add_u32 s12, s12, s13
    s_lshl_b32 s13, {sWV}, 10
    s_add_u32 s13, s13, {L_W2}
    """)
    for m in range(13):
        dma("v4", S_W2, NT, 8192, 128 * 1280)
    I(f"s_cmp_ge_u32 {sWV}, 4\ns_cbranch_scc1 L_dn_ld")
    dma("v4", S_W2, NT, 8192, 128 * 1280)
    g.label("L_dn_ld")
    I(f"""
    v_bfe_u32 v4, v1, 2, 2
    v_lshl_add_u32 v4, v2, 3, v4
    v_lshlrev_b32 v16, 6, v4
    v_lshl_add_u32 v16, v6, 3, v16
    s_lshl_b32 s12, {sWV}, 11
    s_add_u32 s12, s12, {L_W2}
    v_add_u32 v16, s12, v16
    v_add_u32 v17, 0x10000, v16
    v_and_b32 v18, 1, v3
    v_mul_u32_u24 v18, 3456, v18
    v_lshl_add_u32 v18, v2, 4, v18
    s_lshl_b32 s93, {sWV}, 6
    s_add_u32 s93, s93, {XE}
    s_cmp_lt_u32 {sWV}, 6
    s_cselect_b32 s94, {512*6}, 0
    s_add_u32 s94, s94, s93
    s_lshl_b32 s14, {sWV}, 8
    v_lshl_add_u32 v19, v1, 4, s14
    """)
    for r in range(8, 16):
        I(f"v_mov_b32 v{r}, 0")
    I(f"""
    s_cmp_lg_u32 {sWV}, 1
    s_cbranch_scc1 L_dn_nx
    v_lshrrev_b32 v6, 3, v3
    v_mul_u32_u24 v7, 2560, v6
    v_lshl_add_u32 v7, v31, 4, v7
    v_mul_u32_u24 v20, 1280, v6
    v_lshl_add_u32 v20, v31, 3, v20
    v_lshlrev_b32 v22, 3, v3
    s_lshl_b32 s12, {sFC}, 6
    buffer_load_dwordx2 v[194:195], v20, {S_X}, s12 offen
    L_dn_nx:
    """)
    g.bar("vmcnt(0) lgkmcnt(0)")
    g.stamp(19)
    for i in range(7):
        for nu in range(2):
            for tt in range(2):
                r = 96 + (i * 2 + nu) * 4 + 2 * tt
                off = 16384 * i + 256 * tt + 32 * nu
                va = "v16" if off < 65536 else "v17"
                I(f"ds_read_b64_tr_b16 v[{r}:{r+1}], {va} offset:{off & 65535}")
    I(f"s_cmp_lg_u32 {sWV}, 1\ns_cbranch_scc1 L_dn_e")
    I(f"s_lshl_b32 s13, {sFC}, 7\ns_add_u32 s13, s13, {XD2}")
    lds = [f"s_add_u32 s14, s13, {i*5120}\nbuffer_load_dwordx4 v[{32+4*i}:{35+4*i}], v7, {S_WS}, s14 offen sc1"
           for i in range(8)]
    g.poll(lds, range(32, 64), delay=P["d_d2"], tmp="v4", backoff=P["bo_d2"])
    g.stamp(13)
    g.tree_add(32, 8, 4, 4)
    h_from_sum(194)
    I(f"ds_write_b64 v22, v[8:9] offset:{L_HB}\nv_mov_b32 v8, 0\nv_mov_b32 v9, 0")
    g.signal(C_H)
    g.label("L_dn_e")
    g.waitc(C_H, 1)
    lds = [f"buffer_load_dwordx4 v[{32+4*i}:{35+4*i}], v18, {S_WS}, s93 offen offset:{512*i} sc1" for i in range(6)]
    lds.append(f"buffer_load_dwordx4 v[56:59], v18, {S_WS}, s94 offen sc1")
    g.poll(lds, range(32, 60), delay=P["d_e"], tmp="v6", backoff=P["bo_e"])
    g.stamp(14)
    for i in range(7):
        if i == 6:
            I(f"s_cmp_ge_u32 {sWV}, 6\ns_cbranch_scc1 L_dn6")
        for nu in range(2):
            r = 96 + (i * 2 + nu) * 4
            I(f"v_mfma_f32_16x16x32_bf16 v[{8+4*nu}:{11+4*nu}], v[{32+4*i}:{35+4*i}], v[{r}:{r+3}], v[{8+4*nu}:{11+4*nu}]")
    g.label("L_dn6")
    I(f"""
    s_mov_b64 exec, 0xffff
    s_nop 6
    v_mov_b32 v10, v12
    v_mov_b32 v11, v13
    ds_write_b128 v19, v[8:11] offset:{L_UR}
    s_mov_b64 exec, -1
    """)
    g.bar()
    I(f"s_cmp_lg_u32 {sWV}, 0\ns_cbranch_scc1 L_fin")
    I(f"""
    v_lshlrev_b32 v16, 4, v3
    v_lshl_add_u32 v16, v2, 2, v16
    v_and_b32 v4, 1, v2
    v_lshrrev_b32 v6, 1, v2
    v_lshlrev_b32 v7, 6, v4
    v_lshl_add_u32 v7, v6, 5, v7
    v_lshl_add_u32 v7, v3, 1, v7
    ds_read_u16 v64, v7 offset:{L_HB}
    """)
    for v in range(8):
        I(f"ds_read_b32 v{32+v}, v16 offset:{L_UR+256*v}")
    I(f"""
    v_mul_u32_u24 v17, 1280, v4
    v_lshl_add_u32 v17, v6, 5, v17
    v_lshl_add_u32 v17, v3, 1, v17
    v_and_b32 v5, 1, v1
    v_mov_b32 v6, {OOB}
    v_cmp_eq_u32 vcc, 0, v5
    s_lshl_b32 s12, {sFC}, 6
    s_waitcnt lgkmcnt(0)
    v_cndmask_b32 v17, v6, v17, vcc
    v_lshlrev_b32 v64, 16, v64
    """)
    g.tree_add(32, 8, 1, 1)
    I(f"""
    v_cvt_pk_bf16_f32 v8, v32, v32
    v_lshlrev_b32 v32, 16, v8
    v_add_f32 v32, v32, v64
    s_nop 1
    v_mov_b32_dpp v34, v32 row_ror:15 row_mask:0xf bank_mask:0xf
    v_cvt_pk_bf16_f32 v8, v32, v34
    buffer_store_dword v8, v17, {S_OUT}, s12 offen
    """)
    g.stamp(15)
    g.label("L_fin")
    if diag:
        I(f"""
        s_mul_i32 s96, s2, 10
        s_add_u32 s96, s96, {sWV}
        s_lshl_b32 s96, s96, 7
        s_add_u32 s96, s96, {TS}
        s_mov_b64 exec, 1
        """)
        for i in range(0, 28, 4):
            I(f"v_mov_b32 v4, s{64+i}\nv_mov_b32 v5, s{65+i}\nv_mov_b32 v6, s{66+i}\nv_mov_b32 v7, s{67+i}")
            I(f"buffer_store_dwordx4 v[4:7], {VZ}, {S_WS}, s96 offen offset:{4*i}\ns_nop 2")
    g.label("L_end")
    I("s_endpgm")

    tail = f"""
.section .rodata,"a"
.p2align 6
.amdhsa_kernel {KNAME}
  .amdhsa_next_free_vgpr {NVGPR}
  .amdhsa_next_free_sgpr 102
  .amdhsa_accum_offset {NVGPR}
  .amdhsa_group_segment_fixed_size 0
  .amdhsa_kernarg_size 104
  .amdhsa_user_sgpr_count 2
  .amdhsa_user_sgpr_kernarg_segment_ptr 1
  .amdhsa_system_sgpr_workgroup_id_x 1
.end_amdhsa_kernel
"""
    return "\n".join(hdr) + "\n" + "\n".join(g.L) + "\n" + tail


if __name__ == "__main__":
    diag = "--diag" in sys.argv
    out = [a for a in sys.argv[1:] if not a.startswith("--")]
    P = {}
    for a in sys.argv[1:]:
        if a.startswith("--P:"):
            k, v = a[4:].split("=")
            P[k] = int(v) if v.lstrip("-").isdigit() else v
    txt = build(diag=diag, P=P)
    if out:
        open(out[0], "w").write(txt)
    else:
        sys.stdout.write(txt)
```

```python
import struct
POLL_LIMIT = 60000
OOB = 0x7FFFFF00

def f2u(f):
    return struct.unpack("<I", struct.pack("<f", f))[0]

class Gen:
    def __init__(self, diag, P, L_CNT, VZ, VO):
        self.L = []
        self.diag = diag
        self.lab = 0
        self.P = P
        self.L_CNT = L_CNT
        self.VZ, self.VO = VZ, VO

    def I(self, s):
        for line in s.strip().split("\n"):
            line = line.strip()
            if line:
                self.L.append("  " + line)

    def label(self, name):
        self.L.append(name + ":")

    def newlab(self, p="L"):
        self.lab += 1
        return f"{p}_{self.lab}"

    def sleep(self, n):
        while n > 0:
            k = min(n, 127)
            self.I(f"s_sleep {k}")
            n -= k

    def stamp(self, idx):
        if not self.diag:
            return
        if self.P.get("lite") and idx not in (0, 15):
            return
        self.I(f"""
        s_memrealtime s[96:97]
        s_waitcnt lgkmcnt(0)
        s_mov_b32 s{64+idx}, s96
        """)

    def bar(self, wait="lgkmcnt(0)"):
        if wait:
            self.I(f"s_waitcnt {wait}")
        self.I("s_barrier")

    def signal(self, cnt, wait="lgkmcnt(0)"):
        if wait:
            self.I(f"s_waitcnt {wait}")
        self.I(f"""
        s_mov_b64 exec, 1
        ds_add_u32 {self.VZ}, {self.VO} offset:{self.L_CNT+4*cnt}
        s_mov_b64 exec, -1
        """)

    def waitc(self, cnt, n, tmp="v4"):
        lp = self.newlab("Lw")
        self.label(lp)
        self.I(f"""
        ds_read_b32 {tmp}, {self.VZ} offset:{self.L_CNT+4*cnt}
        s_waitcnt lgkmcnt(0)
        v_cmp_gt_u32 vcc, {n}, {tmp}
        s_cbranch_vccnz {lp}
        """)

    def maxchain(self, regs, tmp):
        r = list(regs)
        self.I(f"v_max_u32 {tmp}, v{r[0]}, v{r[1]}")
        r = r[2:]
        while len(r) >= 2:
            self.I(f"v_max3_u32 {tmp}, {tmp}, v{r[0]}, v{r[1]}")
            r = r[2:]
        if r:
            self.I(f"v_max_u32 {tmp}, {tmp}, v{r[0]}")

    def poll(self, loads, regs, delay=0, tmp="v4", preissued=False, backoff=None):
        if delay:
            self.sleep(delay)
        lp = self.newlab("Lp")
        dn = self.newlab("Ld")
        ent = self.newlab("Le")
        self.I("s_mov_b32 s92, 0")
        if preissued:
            self.I(f"s_branch {ent}")
        self.label(lp)
        for l in loads:
            self.I(l)
        if preissued:
            self.label(ent)
        self.I("s_waitcnt vmcnt(0)")
        self.maxchain(regs, tmp)
        self.I(f"""
        v_cmp_ne_u32 vcc, -1, {tmp}
        s_add_u32 s92, s92, 1
        s_cmp_eq_u64 vcc, exec
        s_cbranch_scc1 {dn}
        s_sleep {backoff if backoff is not None else self.P['backoff']}
        s_cmp_lt_u32 s92, {POLL_LIMIT}
        s_cbranch_scc1 {lp}
        """)
        self.label(dn)

    def wave_allreduce(self, v, t, op="v_add_f32", rors=(8, 4, 2, 1), rows=True):
        for r in rors:
            self.I(f"s_nop 1\n{op}_dpp v{v}, v{v}, v{v} row_ror:{r} row_mask:0xf bank_mask:0xf")
        if rows:
            self.I(f"""
            v_mov_b32 v{t}, v{v}
            s_nop 1
            v_permlane16_swap_b32 v{v}, v{t}
            {op} v{v}, v{v}, v{t}
            v_mov_b32 v{t}, v{v}
            s_nop 1
            v_permlane32_swap_b32 v{v}, v{t}
            {op} v{v}, v{v}, v{t}
            """)

    def tree_add(self, base, n, stride, width):
        step = 1
        while step < n:
            for a in range(0, n - step, 2 * step):
                for k in range(width):
                    self.I(f"v_add_f32 v{base+a*stride+k}, v{base+a*stride+k}, v{base+(a+step)*stride+k}")
            step *= 2

    def poll_pipe(self, mk_loads, nregs, bases, tmp="v4", gap=2):
        K = len(bases)
        nl = sum(1 for l in mk_loads(bases[0]) for x in l.split("\n") if x.strip().startswith("buffer_load"))
        st, lp, dn, fin = self.newlab("Ls"), self.newlab("Lp"), self.newlab("Ld"), self.newlab("Lf")
        got = [self.newlab("Lg") for _ in bases]
        self.I("s_mov_b32 s92, 0")
        self.label(st)
        for k in range(K):
            for l in mk_loads(bases[k]):
                self.I(l)
            if k < K - 1:
                self.I(f"s_sleep {gap}")
        self.label(lp)
        for k in range(K):
            self.I(f"s_waitcnt vmcnt({nl*(K-1)})")
            self.maxchain(range(bases[k], bases[k] + nregs), tmp)
            self.I(f"""
            v_cmp_ne_u32 vcc, -1, {tmp}
            s_cmp_eq_u64 vcc, exec
            s_cbranch_scc1 {got[k] if k else dn}
            s_sleep {gap}
            """)
            for l in mk_loads(bases[k]):
                self.I(l)
        self.I(f"""
        s_add_u32 s92, s92, 1
        s_cmp_lt_u32 s92, {POLL_LIMIT//2}
        s_cbranch_scc1 {lp}
        s_waitcnt vmcnt(0)
        s_branch {dn}
        """)
        for k in range(K - 1, 0, -1):
            self.label(got[k])
            self.I(f"s_waitcnt vmcnt({nl*(k-1)})")
            if k > 1:
                self.I(f"s_branch {fin}")
        self.label(fin)
        self.maxchain(range(bases[0], bases[0] + nregs), tmp)
        self.I(f"""
        v_cmp_ne_u32 vcc, -1, {tmp}
        s_add_u32 s92, s92, 1
        s_cmp_eq_u64 vcc, exec
        s_cbranch_scc1 {dn}
        s_waitcnt vmcnt(0)
        s_cmp_lt_u32 s92, {POLL_LIMIT//2}
        s_cbranch_scc1 {st}
        """)
        self.label(dn)
```

```python
import sys
from genlib import *

KNAME = "sequential_preLN__compressed_kv_cla__glu_gated_swiglu__decode_kernel"

FLAGS = 0x000000
XH    = 0x008000
XB    = 0x010000
XC2M  = 0x020000
XD2   = 0x030000
XE    = 0x040000
XC1M  = 0x050000
XAF   = 0x080000
XAS   = 0x0C0000
XU    = 0x100000
XC2D  = 0x180000
XD1   = 0x200000
TS    = 0x380000
XC1D  = 0x400000
C1J   = 16640
WS_BYTES = 0x1000000

CPITCH = 1040
L_CTRL = 0
L_CNT = 64
L_STAT = 192
(C_NON, C_H, C_U, C_XA, C_AG, C_VER) = range(6)
L_XN  = 2304
L_XAL = 4864
L_DR  = 8960
L_CT  = 11008
L_WUV = 12288
L_WO  = 45056
L_WUK = 45056
L_MB  = 256
L_LB  = 1280
L_UR  = 256
L_HB  = 2304
L_CKV = 5120
L_QA  = L_CKV
L_TR  = L_CKV + 64 * CPITCH
L_W1  = L_CKV
L_W3  = L_CKV + 20480
L_W2  = L_CKV
L_PB  = L_CKV + 32 * CPITCH
L_WQ  = L_CKV + 128 * CPITCH
LDS_BYTES = 158720
PVA = 128
VZ, VO = "v192", "v193"
NVGPR = 200

DEFAULTS = dict(d_a=2, d_c1=1, d_c2=0, d_d1=2, d_d2=0, d_u=2, d_e=0, backoff=2, nt="nt", fast_tries=200,
                d_non=4, d_p2=10, bo_c2=4, bo_d2=4, bo_e=4, bo_b=4, W2=8, d_A=40, init_blocks=1, hint_kb=2, pf_rows=0, pre=0, mid=0, ahead=4, fl_kb=1, wb=0, cpf=0, pipe=1, gap=2, t_c2=0, t_d2=0, t_e=0)


def build(diag=False, P=None):
    PP = dict(DEFAULTS)
    if P:
        PP.update(P)
    P = PP
    g = Gen(diag, P, L_CNT, VZ, VO)
    I = g.I
    NT = P["nt"]
    names = ["X", "CKV", "WQ", "WUK", "WUV", "WO", "W1", "W3", "W2", "OUT", "DBG", "WS"]
    S_X, S_CKV, S_WQ, S_WUK, S_WUV, S_WO, S_W1, S_W3, S_W2, S_OUT, S_DBG, S_WS = [
        f"s[{16+4*i}:{19+4*i}]" for i in range(12)]
    ptr = {0: 64, 1: 66, 2: 68, 3: 70, 4: 72, 5: 74, 6: 78, 7: 80, 8: 82, 9: 84, 10: 86, 11: 88}
    sizes = [2560, 16777216, 5242880, 4194304, 4194304, 5242880, 2211840, 2211840, 2211840, 2560, 256, WS_BYTES]

    def srd(*which):
        for nm in which:
            i = names.index(nm)
            b = 16 + 4 * i
            I(f"s_mov_b64 s[{b}:{b+1}], s[{ptr[i]}:{ptr[i]+1}]\ns_mov_b32 s{b+2}, {sizes[i]}\ns_mov_b32 s{b+3}, 0x20000")

    def dma(voff, srd_, flag, dm0, dso):
        I(f"s_mov_b32 m0, s13")
        I(f"s_add_u32 s13, s13, {dm0}")
        I(f"buffer_load_dwordx4 {voff}, {srd_}, s12 offen {flag} lds")
        I(f"s_add_u32 s12, s12, {dso}")

    def zero_stamps():
        if diag:
            for i in range(0, 28):
                I(f"s_mov_b32 s{64+i}, 0")

    sWV, sX, sS, sM, sH, sSUB, sFC, sUP, sKC = "s3", "s4", "s5", "s6", "s7", "s8", "s9", "s10", "s11"
    hdr = [f"; @launch grid=(256,1,1) block=(512,1,1) lds={LDS_BYTES}",
           '.amdgcn_target "amdgcn-amd-amdhsa--gfx950"', ".text", f".globl {KNAME}", ".p2align 8",
           f".type {KNAME},@function", f"{KNAME}:"]

    I(f"""
    s_cmp_ge_u32 s2, 256
    s_cbranch_scc1 L_end
    s_load_dwordx16 s[64:79], s[0:1], 0
    s_load_dwordx8 s[80:87], s[0:1], 64
    s_load_dwordx2 s[88:89], s[0:1], 96
    s_memrealtime s[90:91]
    v_lshrrev_b32 v4, 6, v0
    v_and_b32 v1, 63, v0
    v_readfirstlane_b32 {sWV}, v4
    v_lshrrev_b32 v2, 4, v1
    v_and_b32 v3, 15, v1
    v_mov_b32 {VZ}, 0
    v_mov_b32 {VO}, 1
    v_lshlrev_b32 v4, 2, v3
    ds_write_b32 v4, {VZ} offset:{L_CNT}
    s_and_b32 {sX}, s2, 7
    s_lshr_b32 {sS}, s2, 3
    s_and_b32 {sM}, {sS}, 15
    v_lshlrev_b32 v5, 4, v1
    v_mov_b32 v6, {OOB}
    v_mov_b32 v8, -1
    v_mov_b32 v9, -1
    v_mov_b32 v10, -1
    v_mov_b32 v11, -1
    v_cmp_eq_u32 vcc, 0, v1
    s_and_b32 s12, {sS}, 3
    s_lshl_b32 s12, s12, 3
    v_cndmask_b32 v7, v6, 0, vcc
    s_add_u32 {sH}, {sX}, s12
    s_lshr_b32 {sSUB}, {sM}, 2
    s_lshr_b32 s12, {sM}, 2
    s_lshl_b32 s12, s12, 3
    s_add_u32 s12, s12, {sX}
    s_cmp_lt_u32 s12, 27
    s_cselect_b32 {sUP}, 1, 0
    s_and_b32 {sKC}, {sM}, 3
    s_sub_u32 s14, {sX}, 3
    s_lshl_b32 s14, s14, 2
    s_add_u32 s14, s14, {sKC}
    s_cmp_eq_u32 {sUP}, 1
    s_cselect_b32 {sFC}, s12, s14
    """)

    def nonce_and_flag(first_wait):
        lp, dn, ent = g.newlab("Lp"), g.newlab("Ld"), g.newlab("Le")
        I(f"""
        s_mov_b32 s92, 0
        s_lshl_b32 s14, {sX}, 5
        s_add_u32 s14, s14, {sS}
        s_lshl_b32 s14, s14, 4
        s_add_u32 s14, s14, {FLAGS}
        s_getreg_b32 s15, hwreg(HW_REG_XCC_ID)
        v_mov_b32 v14, s15
        v_mov_b32 v15, 0
        s_waitcnt {first_wait}
        s_branch {ent}
        """)
        g.label(lp)
        I(f"""
        buffer_load_dwordx2 v[12:13], {VZ}, {S_DBG}, 0 offen sc1
        s_waitcnt vmcnt(0)
        """)
        g.label(ent)
        I(f"""
        v_cmp_ne_u32 vcc, 0, v12
        s_add_u32 s92, s92, 1
        s_cmp_eq_u64 vcc, exec
        s_cbranch_scc1 {dn}
        s_sleep {P['d_non']}
        s_cmp_lt_u32 s92, {POLL_LIMIT}
        s_cbranch_scc1 {lp}
        """)
        g.label(dn)
        I(f"""
        ds_write_b64 {VZ}, v[12:13] offset:{L_CTRL}
        buffer_store_dwordx4 v[12:15], v7, {S_WS}, s14 offen sc1
        """)
        g.signal(C_NON)
        g.stamp(16)

    def verify_flags(r0, kindA, preissued, first_wait="vmcnt(0)", onlyA=False, uniform=True):
        lp, dn, ent = g.newlab("Lp"), g.newlab("Ld"), g.newlab("Le")
        I("s_mov_b32 s92, 0")
        if preissued:
            I(f"s_waitcnt {first_wait}\ns_branch {ent}")
        g.label(lp)
        for i in range(4):
            I(f"buffer_load_dwordx4 v[{r0+4*i}:{r0+3+4*i}], v5, {S_WS}, 0 offen offset:{FLAGS+1024*i} sc1")
        I("s_waitcnt vmcnt(0)")
        if preissued:
            g.label(ent)
        I("v_mov_b32 v8, 0")
        for i in range(4):
            I(f"v_xor_b32 v9, v{r0+4*i}, v14\nv_xor_b32 v10, v{r0+1+4*i}, v15\nv_or3_b32 v8, v8, v9, v10")
        I("v_cmp_eq_u32 vcc, 0, v8\ns_add_u32 s92, s92, 1")
        if onlyA:
            I("s_or_b32 vcc_lo, vcc_lo, 0xffff\ns_or_b32 vcc_hi, vcc_hi, 0xffff")
        I(f"""
        s_cmp_eq_u64 vcc, exec
        s_cbranch_scc1 {dn}
        s_sleep 4
        s_cmp_lt_u32 s92, {POLL_LIMIT}
        s_cbranch_scc1 {lp}
        """)
        g.label(dn)
        if not uniform:
            g.stamp(17)
            return
        I(f"""
        s_lshr_b32 s14, {sX}, 1
        s_cmp_eq_u32 s14, 1
        v_mov_b32 v8, v{r0+2}
        s_cbranch_scc0 {dn}a
        v_mov_b32 v8, v{r0+6}
        {dn}a:
        s_cmp_eq_u32 s14, 2
        s_cbranch_scc0 {dn}b
        v_mov_b32 v8, v{r0+10}
        {dn}b:
        s_cmp_eq_u32 s14, 3
        s_cbranch_scc0 {dn}c
        v_mov_b32 v8, v{r0+14}
        {dn}c:
        s_getreg_b32 s14, hwreg(HW_REG_XCC_ID)
        v_xor_b32 v8, s14, v8
        s_and_b32 s14, {sX}, 1
        s_lshl_b32 s14, s14, 1
        s_add_u32 s14, s14, {1 if kindA else 0}
        v_cmp_eq_u32 vcc, s14, v2
        s_nop 1
        v_cndmask_b32 v8, 0, v8, vcc
        v_cmp_eq_u32 vcc, 0, v8
        s_cmp_eq_u64 vcc, exec
        s_cselect_b32 s14, 1, 0
        v_mov_b32 v8, s14
        ds_write_b32 {VZ}, v8 offset:{L_CTRL+8}
        """)
        g.stamp(17)

    def until(T, nreg):
        if not T:
            return
        lp = g.newlab("Lt")
        I(f"v_readfirstlane_b32 s100, {nreg}")
        g.label(lp)
        I(f"""
        s_memrealtime s[96:97]
        s_waitcnt lgkmcnt(0)
        s_sub_u32 s96, s96, s100
        s_cmp_lt_u32 s96, {T}
        s_cbranch_scc1 {lp}
        """)

    def h_from_sum(xr):
        I(f"""
        v_cvt_pk_bf16_f32 v8, v32, v33
        v_cvt_pk_bf16_f32 v9, v34, v35
        v_lshlrev_b32 v36, 16, v{xr}
        v_and_b32 v37, 0xffff0000, v{xr}
        v_lshlrev_b32 v38, 16, v{xr+1}
        v_and_b32 v39, 0xffff0000, v{xr+1}
        v_lshlrev_b32 v32, 16, v8
        v_and_b32 v33, 0xffff0000, v8
        v_lshlrev_b32 v34, 16, v9
        v_and_b32 v35, 0xffff0000, v9
        v_add_f32 v32, v32, v36
        v_add_f32 v33, v33, v37
        v_add_f32 v34, v34, v38
        v_add_f32 v35, v35, v39
        v_cvt_pk_bf16_f32 v8, v32, v33
        v_cvt_pk_bf16_f32 v9, v34, v35
        """)

    I(f"""
    s_waitcnt lgkmcnt(0)
    s_cmp_ge_u32 {sWV}, 4
    s_cbranch_scc1 L_e_hi
    s_or_b32 s14, s2, {sWV}
    s_cmp_lg_u32 s14, 0
    s_cbranch_scc1 L_e_dma
    """)
    srd("DBG")
    I(f"""
    s_or_b32 s90, s90, 1
    v_mov_b32 v14, s90
    v_mov_b32 v15, s91
    buffer_store_dwordx2 v[14:15], v7, {S_DBG}, 0 offen sc1
    s_branch L_e_dma
    L_e_hi:
    s_cmp_ge_u32 {sWV}, 6
    s_cbranch_scc1 L_e_67
    s_sub_u32 s15, {sWV}, 4
    s_mul_i32 s15, s15, 1280
    v_mul_u32_u24 v100, 20, v1
    """)
    srd("X")
    I(f"""
    buffer_load_dwordx4 v[8:11], v100, {S_X}, s15 offen
    buffer_load_dword v12, v100, {S_X}, s15 offen offset:16
    s_branch L_e_dma
    L_e_67:
    """)
    srd("DBG", "WS")
    I(f"""
    s_cmp_ge_u32 {sS}, 16
    s_cbranch_scc1 L_e_A67
    s_cmp_eq_u32 {sWV}, 6
    s_cbranch_scc1 L_e_B6
    """)
    I(f"""
    s_lshl_b32 s13, {sX}, 4
    s_add_u32 s13, s13, {sM}
    s_mul_i32 s13, s13, 5120
    s_add_u32 s13, s13, {XD1}
    """)
    for i in range(4):
        I(f"buffer_store_dwordx4 v[8:11], v5, {S_WS}, s13 offen offset:{1024*i} sc1")
    I(f"""
    s_add_u32 s13, s13, 4096
    buffer_store_dwordx4 v[8:11], v5, {S_WS}, s13 offen sc1
    v_mul_u32_u24 v4, 2560, v2
    v_lshl_add_u32 v4, v3, 4, v4
    s_cmp_lt_u32 {sM}, 10
    s_cselect_b32 s15, 32, 0
    v_cmp_gt_u32 vcc, s15, v1
    s_mul_i32 s13, {sX}, 5120
    s_lshl_b32 s14, {sM}, 8
    v_cndmask_b32 v4, v6, v4, vcc
    s_add_u32 s13, s13, s14
    s_add_u32 s13, s13, {XD2}
    buffer_store_dwordx4 v[8:11], v4, {S_WS}, s13 offen sc1
    s_branch L_e_dma
    L_e_B6:
    s_lshl_b32 s12, {sH}, 13
    s_add_u32 s12, s12, {XAF}
    v_lshlrev_b32 v4, 7, v1
    buffer_load_dword v14, v4, {S_WS}, s12 offen nt
    v_lshrrev_b32 v4, 3, v1
    v_lshlrev_b32 v4, 8, v4
    v_and_b32 v12, 7, v1
    v_lshl_add_u32 v4, v12, 4, v4
    s_add_u32 s13, s12, 4096
    buffer_store_dwordx4 v[8:11], v4, {S_WS}, s12 offen
    buffer_store_dwordx4 v[8:11], v4, {S_WS}, s12 offen offset:2048
    buffer_store_dwordx4 v[8:11], v4, {S_WS}, s13 offen
    buffer_store_dwordx4 v[8:11], v4, {S_WS}, s13 offen offset:2048
    """)
    I(f"""
    s_branch L_e_dma
    L_e_A67:
    s_cmp_eq_u32 {sWV}, 7
    s_cbranch_scc1 L_e_A7
    """)
    if P["cpf"]:
        I(f"""
        s_cmp_ge_u32 {sM}, 4
        s_cbranch_scc1 L_e_dma
        s_getpc_b64 s[12:13]
        L_pc:
        s_sub_u32 s12, s12, L_pc-{KNAME}
        s_subb_u32 s13, s13, 0
        v_lshlrev_b32 v4, 7, v1
        global_load_dword v194, v4, s[12:13]
        v_add_u32 v4, 8192, v4
        global_load_dword v194, v4, s[12:13]
        v_add_u32 v4, 8192, v4
        v_min_u32 v4, L_end-{KNAME}, v4
        global_load_dword v194, v4, s[12:13]
        """)
    I("s_branch L_e_dma\nL_e_A7:")
    I(f"""
    v_lshlrev_b32 v4, 7, v1
    v_cmp_gt_u32 vcc, 32, v1
    s_lshl_b32 s14, {sX}, 12
    s_lshl_b32 s15, {sM}, 3
    v_cndmask_b32 v4, v6, v4, vcc
    v_cndmask_b32 v12, v6, v5, vcc
    s_add_u32 s14, s14, s15
    s_add_u32 s14, s14, {XC1M}
    buffer_store_dwordx2 v[8:9], v4, {S_WS}, s14 offen sc1
    s_lshl_b32 s14, {sX}, 4
    s_add_u32 s14, s14, {sM}
    s_lshl_b32 s14, s14, 9
    s_add_u32 s14, s14, {XB}
    buffer_store_dwordx4 v[8:11], v12, {S_WS}, s14 offen sc1
    s_lshl_b32 s14, {sM}, 4
    s_add_u32 s14, s14, {sX}
    s_lshl_b32 s15, s14, 10
    s_add_u32 s15, s15, {XC2D}
    buffer_store_dwordx4 v[8:11], v5, {S_WS}, s15 offen sc1
    s_add_u32 s15, s15, 8192
    buffer_store_dwordx4 v[8:11], v5, {S_WS}, s15 offen sc1
    v_lshlrev_b32 v4, 6, v1
    v_cmp_gt_u32 vcc, 2, v1
    s_lshl_b32 s15, s14, 3
    s_add_u32 s15, s15, {XC2M}
    v_cndmask_b32 v4, v6, v4, vcc
    buffer_store_dwordx2 v[8:9], v4, {S_WS}, s15 offen sc1
    s_lshl_b32 s14, {sX}, 4
    s_add_u32 s14, s14, {sM}
    s_lshl_b32 s14, s14, 11
    s_add_u32 s14, s14, {XU}
    buffer_store_dwordx4 v[8:11], v5, {S_WS}, s14 offen sc1
    buffer_store_dwordx4 v[8:11], v5, {S_WS}, s14 offen offset:1024 sc1
    v_lshrrev_b32 v4, 1, v1
    v_mul_u32_u24 v4, 3456, v4
    v_and_b32 v12, 1, v1
    v_lshl_add_u32 v4, v12, 4, v4
    s_lshl_b32 s15, {sUP}, 2
    v_cmp_gt_u32 vcc, s15, v1
    s_lshl_b32 s14, {sFC}, 2
    s_add_u32 s14, s14, {sKC}
    v_cndmask_b32 v4, v6, v4, vcc
    s_lshl_b32 s14, s14, 5
    s_add_u32 s14, s14, {XE}
    buffer_store_dwordx4 v[8:11], v4, {S_WS}, s14 offen sc1
    buffer_load_dwordx2 v[12:13], {VZ}, {S_DBG}, 0 offen sc1
    """)
    g.label("L_e_dma")
    I(f"""
    s_and_b32 s12, {sWV}, 1
    s_lshl_b32 s12, s12, 2
    v_add_u32 v4, s12, v2
    v_lshlrev_b32 v4, 1, v4
    v_xor_b32 v4, v4, v3
    v_lshlrev_b32 v4, 4, v4
    v_lshl_add_u32 v4, v2, 13, v4
    s_lshr_b32 s93, {sS}, 2
    s_mul_i32 s12, s93, 80
    s_lshl_b32 s13, {sWV}, 2
    s_add_u32 s12, s12, s13
    s_lshl_b32 s12, s12, 13
    s_lshl_b32 s13, {sH}, 8
    s_add_u32 s12, s12, s13
    s_lshl_b32 s13, {sWV}, 10
    s_add_u32 s13, s13, {L_WQ}
    """)
    srd("WQ")
    I(f"s_cmp_ge_u32 {sWV}, 4\ns_cbranch_scc1 L_e_d2")
    dma("v4", S_WQ, NT, 8192, 32 * 8192)
    g.label("L_e_d2")
    for i in range(2):
        dma("v4", S_WQ, NT, 8192, 32 * 8192)
    def ckv_block():
        for i in range(4):
            dma("v5", S_CKV, NT, CPITCH if i < 3 else 29 * CPITCH, 1024 if i < 3 else 29 * 1024)
    I(f"s_cmp_lt_u32 {sS}, 16\ns_cbranch_scc1 L_e_B")
    srd("CKV")
    I(f"""
    s_lshl_b32 s12, {sX}, 11
    s_lshl_b32 s13, {sM}, 7
    s_add_u32 s12, s12, s13
    s_lshl_b32 s13, {sWV}, 2
    s_add_u32 s12, s12, s13
    s_lshl_b32 s12, s12, 10
    s_mul_i32 s13, {sWV}, {4*CPITCH}
    s_add_u32 s13, s13, {L_CKV}
    """)
    for i in range(P["pre"]):
        ckv_block()
    I("s_mov_b32 s100, s12\ns_mov_b32 s101, s13\ns_branch L_e_srd")
    g.label("L_e_B")
    srd("WUK")
    I(f"""
    v_xor_b32 v4, v3, v2
    v_lshlrev_b32 v4, 4, v4
    v_lshl_add_u32 v4, v2, 13, v4
    s_lshl_b32 s12, {sSUB}, 7
    s_lshl_b32 s13, {sWV}, 4
    s_add_u32 s12, s12, s13
    s_lshl_b32 s12, s12, 13
    s_lshl_b32 s13, {sH}, 8
    s_add_u32 s12, s12, s13
    s_lshl_b32 s13, {sWV}, 12
    s_add_u32 s13, s13, {L_WUK}
    """)
    for i in range(4):
        dma("v4", S_WUK, NT, 1024, 4 * 8192)
        if i < 3:
            I(f"v_xor_b32 v4, {64 if i != 1 else 192}, v4")
    g.label("L_e_srd")
    srd("X", "CKV", "WUV", "WO", "W1", "W3", "W2", "OUT", "DBG", "WS")
    zero_stamps()
    g.stamp(0)
    I("s_barrier")
    I(f"""
    s_cmp_lg_u32 {sWV}, 7
    s_cbranch_scc1 L_s_n7
    s_cmp_lt_u32 {sS}, 16
    s_cbranch_scc1 L_stA
    """)
    nonce_and_flag(f"vmcnt({2+4*P['pre']})")
    I("s_branch L_stA")
    g.label("L_s_n7")
    I(f"s_and_b32 s12, {sWV}, 6\ns_cmp_lg_u32 s12, 4\ns_cbranch_scc1 L_stA")
    I(f"""
    s_cmp_ge_u32 {sS}, 16
    s_cbranch_scc1 L_ln_A
    s_waitcnt vmcnt(6)
    s_branch L_ln
    L_ln_A:
    s_waitcnt vmcnt({2+4*P['pre']})
    L_ln:
    """)
    for i in range(5):
        I(f"v_lshlrev_b32 v{32+2*i}, 16, v{8+i}\nv_and_b32 v{33+2*i}, 0xffff0000, v{8+i}")
    I("v_add_f32 v5, v32, v33\nv_add_f32 v6, v34, v35")
    for i in range(2, 5):
        I(f"v_add_f32 v5, v5, v{32+2*i}\nv_add_f32 v6, v6, v{33+2*i}")
    I("v_add_f32 v5, v5, v6")
    g.wave_allreduce(5, 6)
    I(f"v_mul_f32 v5, {f2u(1.0/640):#x}, v5")
    for i in range(10):
        I(f"v_sub_f32 v{32+i}, v{32+i}, v5")
    I("v_mul_f32 v5, v32, v32\nv_mul_f32 v6, v33, v33")
    for i in range(1, 5):
        I(f"v_fmac_f32 v5, v{32+2*i}, v{32+2*i}\nv_fmac_f32 v6, v{33+2*i}, v{33+2*i}")
    I("v_add_f32 v5, v5, v6")
    g.wave_allreduce(5, 6)
    I(f"""
    v_mov_b32 v6, {f2u(1e-5):#x}
    s_mov_b32 s13, {f2u(1.0/640):#x}
    v_fma_f32 v5, v5, s13, v6
    v_rsq_f32 v5, v5
    v_add_u32 v4, s15, v100
    """)
    for i in range(10):
        I(f"v_mul_f32 v{32+i}, v{32+i}, v5")
    for i in range(5):
        I(f"v_cvt_pk_bf16_f32 v{8+i}, v{32+2*i}, v{33+2*i}")
    for i in range(5):
        I(f"ds_write_b32 v4, v{8+i} offset:{L_XN+4*i}")
    g.stamp(16)
    g.label("L_stA")
    if P["mid"]:
        I(f"s_cmp_lt_u32 {sS}, 16\ns_cbranch_scc1 L_stA2")
        g.waitc(C_NON, 1)
        I("s_mov_b32 s12, s100\ns_mov_b32 s13, s101\nv_lshlrev_b32 v5, 4, v1")
        for i in range(P["mid"]):
            ckv_block()
        I("s_mov_b32 s100, s12\ns_mov_b32 s101, s13")
        g.label("L_stA2")
    I(f"""
    v_lshrrev_b32 v4, 2, v1
    v_and_b32 v5, 7, v4
    v_lshlrev_b32 v5, 1, v5
    v_bfe_u32 v6, v1, 1, 1
    s_lshl_b32 s12, {sWV}, 1
    v_add_u32 v6, s12, v6
    v_xor_b32 v6, v6, v5
    v_lshlrev_b32 v6, 4, v6
    v_lshl_add_u32 v6, v4, 8, v6
    v_and_b32 v5, 1, v1
    v_lshl_add_u32 v6, v5, 3, v6
    v_add_u32 v6, {L_WQ}, v6
    v_and_b32 v5, 1, v3
    v_mul_u32_u24 v5, 1280, v5
    v_lshl_add_u32 v5, v2, 3, v5
    s_lshr_b32 s93, {sS}, 2
    s_mul_i32 s12, s93, 160
    v_add_u32 v5, s12, v5
    v_and_b32 v198, 1, v2
    v_lshlrev_b32 v198, 9, v198
    v_lshrrev_b32 v4, 1, v2
    v_lshl_add_u32 v198, v4, 7, v198
    v_lshl_add_u32 v198, v3, 3, v198
    v_mov_b32 v4, {OOB >> 1}
    v_cmp_gt_u32 vcc, 2, v3
    s_lshl_b32 s12, {sH}, 12
    s_lshl_b32 s13, s93, 4
    v_cndmask_b32 v198, v4, v198, vcc
    s_add_u32 s12, s12, s13
    s_lshr_b32 s13, {sWV}, 1
    s_lshl_b32 s13, s13, 10
    s_add_u32 s12, s12, s13
    s_and_b32 s13, {sWV}, 1
    s_lshl_b32 s13, s13, 8
    s_add_u32 s12, s12, s13
    s_lshl_b32 s99, s12, 1
    s_add_u32 s98, s99, {XAF}
    s_add_u32 s99, s99, {XAS}
    v_lshlrev_b32 v199, 1, v198
    v_mov_b32 v8, 0
    v_mov_b32 v9, 0
    v_mov_b32 v10, 0
    v_mov_b32 v11, 0
    s_cmp_lt_u32 {sS}, 16
    s_cbranch_scc1 L_wB
    s_cmp_eq_u32 {sWV}, 7
    s_cbranch_scc1 L_wA7
    s_waitcnt vmcnt({4*P['pre']+4*P['mid']})
    L_wA7:
    s_waitcnt vmcnt({4*P['pre']+4*P['mid']+1})
    s_branch L_wE
    L_wB:
    s_waitcnt vmcnt(4)
    L_wE:
    """)
    g.bar()
    g.stamp(1)
    I(f"ds_read_b64 v[14:15], {VZ} offset:{L_CTRL}")
    for st in range(5):
        I(f"ds_read_b64_tr_b16 v[{32+2*st}:{33+2*st}], v6 offset:{4096*st}")
        I(f"ds_read_b64 v[{44+2*st}:{45+2*st}], v5 offset:{L_XN+32*st}")
    for st in range(5):
        I(f"s_waitcnt lgkmcnt({8-2*st})")
        I(f"v_mfma_f32_16x16x16_bf16 v[8:11], v[{32+2*st}:{33+2*st}], v[{44+2*st}:{45+2*st}], v[8:11]")
    I(f"""
    v_lshlrev_b32 v5, 4, v1
    s_mov_b32 s92, 0
    s_nop 5
    v_cvt_pk_bf16_f32 v12, v8, v9
    v_cvt_pk_bf16_f32 v13, v10, v11
    buffer_store_dwordx4 v[12:15], v199, {S_WS}, s98 offen
    v_mov_b32 v196, v12
    v_mov_b32 v197, v13
    """)
    g.stamp(2)
    I(f"s_cmp_ge_u32 {sS}, 16\ns_cbranch_scc1 L_Awg")
    FT = P['fast_tries']
    I(f"""
    s_lshl_b32 s12, {sH}, 12
    s_lshl_b32 s13, {sWV}, 9
    s_add_u32 s12, s12, s13
    s_lshl_b32 s95, s12, 1
    s_add_u32 s12, s95, {XAF}
    s_add_u32 s95, s95, {XAS}
    v_lshlrev_b32 v102, 3, v1
    v_add_u32 v96, s13, v102
    v_lshlrev_b32 v99, 15, v3
    v_lshl_add_u32 v99, v2, 3, v99
    v_mov_b32 v4, {OOB}
    v_cmp_gt_u32 vcc, 2, v3
    s_lshl_b32 s14, {sH}, 10
    s_lshl_b32 s15, {sSUB}, 8
    v_cndmask_b32 v99, v4, v99, vcc
    s_add_u32 s14, s14, s15
    s_lshl_b32 s15, {sWV}, 5
    s_add_u32 s14, s14, s15
    s_add_u32 s14, s14, {XB}
    v_xor_b32 v98, v3, v2
    v_lshlrev_b32 v98, 4, v98
    v_lshl_add_u32 v98, v3, 8, v98
    s_lshl_b32 s15, {sWV}, 12
    s_add_u32 s15, s15, {L_WUK}
    v_add_u32 v98, s15, v98
    s_mov_b32 s15, 0
    v_lshl_add_u32 v103, v3, 4, s13
    v_mov_b32 v8, 0
    v_mov_b32 v9, 0
    v_mov_b32 v10, 0
    v_mov_b32 v11, 0
    L_xa_loop:
    s_cmp_eq_u32 s15, 1
    s_cbranch_scc1 L_xa_chk
    buffer_load_dwordx2 v[14:15], {VZ}, {S_DBG}, 0 offen sc1
    buffer_load_dwordx2 v[36:37], v103, {S_WS}, 0 offen offset:{FLAGS+256} sc1
    buffer_load_dwordx4 v[32:35], v5, {S_WS}, s12 offen sc1
    s_waitcnt vmcnt(0)
    s_cmp_lg_u32 s92, 0
    s_cbranch_scc1 L_xa_n1
    ds_read_b128 v[16:19], v98
    v_xor_b32 v98, 64, v98
    ds_read_b128 v[20:23], v98
    v_xor_b32 v98, 192, v98
    ds_read_b128 v[24:27], v98
    v_xor_b32 v98, 64, v98
    ds_read_b128 v[28:31], v98
    L_xa_n1:
    v_cmp_ne_u32 vcc, 0, v14
    v_cmp_eq_u64 s[100:101], v[36:37], v[14:15]
    v_max_u32 v4, v32, v33
    s_and_b64 vcc, vcc, s[100:101]
    s_cmp_eq_u64 vcc, exec
    s_cbranch_scc0 L_xa_next
    v_cmp_ne_u32 vcc, -1, v4
    v_cmp_eq_u64 s[100:101], v[34:35], v[14:15]
    s_and_b32 vcc_lo, vcc_lo, 0x00ff00ff
    s_and_b32 vcc_hi, vcc_hi, 0x00ff00ff
    s_and_b32 s100, s100, 0xff00ff00
    s_and_b32 s101, s101, 0xff00ff00
    s_or_b64 vcc, s[100:101], vcc
    s_cmp_eq_u64 vcc, exec
    s_cbranch_scc1 L_xa_got
    s_cmp_le_u32 s92, {FT}
    s_cbranch_scc1 L_xa_next
    buffer_load_dwordx4 v[32:35], v5, {S_WS}, s95 offen sc1
    s_waitcnt vmcnt(0)
    v_cmp_eq_u64 vcc, v[34:35], v[14:15]
    s_cmp_eq_u64 vcc, exec
    s_cbranch_scc0 L_xa_next
    L_xa_got:
    ds_write_b64 v96, v[32:33] offset:{L_XAL}
    s_mov_b32 s15, 1
    """)
    g.signal(C_XA)
    I(f"""
    L_xa_chk:
    ds_read_b32 v4, {VZ} offset:{L_CNT+4*C_XA}
    s_waitcnt lgkmcnt(0)
    v_cmp_gt_u32 vcc, 8, v4
    s_cbranch_vccz L_xa_done
    L_xa_next:
    s_cmp_lg_u32 s92, {FT}
    s_cbranch_scc1 L_xa_nf
    s_mov_b32 s93, 0
    L_xa_non:
    buffer_load_dwordx2 v[14:15], {VZ}, {S_DBG}, 0 offen sc1
    s_waitcnt vmcnt(0)
    v_cmp_ne_u32 vcc, 0, v14
    s_add_u32 s93, s93, 1
    s_cmp_eq_u64 vcc, exec
    s_cbranch_scc1 L_xa_non_d
    s_sleep 4
    s_cmp_lt_u32 s93, {POLL_LIMIT}
    s_cbranch_scc1 L_xa_non
    L_xa_non_d:
    v_mov_b32 v12, v196
    v_mov_b32 v13, v197
    buffer_store_dwordx4 v[12:15], v199, {S_WS}, s99 offen sc1
    L_xa_nf:
    s_and_b32 s93, s92, 3
    s_cmp_lg_u32 s93, 3
    s_cbranch_scc1 L_xa_nr
    buffer_store_dwordx2 v[196:197], v199, {S_WS}, s98 offen
    L_xa_nr:
    s_add_u32 s92, s92, 1
    s_cmp_lt_u32 s92, {POLL_LIMIT}
    s_cbranch_scc1 L_xa_loop
    L_xa_done:
    """)
    g.stamp(3)
    for k in range(8):
        I(f"ds_read_b64 v[{32+2*k}:{33+2*k}], v102 offset:{L_XAL+512*k}")
    for k in range(8):
        I(f"s_waitcnt lgkmcnt({7-k})")
        I(f"v_mfma_f32_16x16x16_bf16 v[8:11], v[{16+2*k}:{17+2*k}], v[{32+2*k}:{33+2*k}], v[8:11]")
    SC = (128 ** -0.5) * 1.4426950408889634
    I("s_nop 7")
    for r in (8, 4, 2):
        for k in range(4):
            I(f"v_add_f32_dpp v{8+k}, v{8+k}, v{8+k} row_ror:{r} row_mask:0xf bank_mask:0xf")
    for k in range(4):
        I(f"v_mul_f32 v{8+k}, {f2u(SC):#x}, v{8+k}")
    I(f"""
    v_cvt_pk_bf16_f32 v104, v8, v9
    v_cvt_pk_bf16_f32 v105, v10, v11
    buffer_store_dwordx2 v[104:105], v99, {S_WS}, s14 offen sc1
    v_mov_b32 v12, v196
    v_mov_b32 v13, v197
    v_mov_b32 v108, v14
    v_mov_b32 v195, v14
    v_mov_b32 v109, v15
    """)
    g.stamp(4)
    I(f"""
    s_barrier
    buffer_store_dwordx4 v[12:15], v199, {S_WS}, s99 offen sc1
    s_cmp_lg_u32 {sWV}, 7
    s_cbranch_scc1 L_B_pr
    v_mov_b32 v4, {OOB}
    v_cmp_eq_u32 vcc, 0, v1
    s_lshl_b32 s14, {sX}, 5
    s_add_u32 s14, s14, {sS}
    v_cndmask_b32 v7, v4, 0, vcc
    s_lshl_b32 s14, s14, 4
    s_add_u32 s14, s14, {FLAGS}
    s_getreg_b32 s15, hwreg(HW_REG_XCC_ID)
    v_mov_b32 v110, s15
    v_mov_b32 v111, 0
    buffer_store_dwordx4 v[108:111], v7, {S_WS}, s14 offen sc1
    L_B_pr:
    """)
    if P["pf_rows"]:
        n = P["pf_rows"] // 64
        I(f"""
        s_lshl_b32 s12, {sX}, 11
        s_lshl_b32 s13, {sM}, 7
        s_add_u32 s12, s12, s13
        s_add_u32 s12, s12, {128 - P["pf_rows"]}
        s_mul_i32 s13, {sWV}, {8*n}
        s_add_u32 s12, s12, s13
        s_lshl_b32 s12, s12, 10
        v_lshlrev_b32 v4, 7, v1
        """)
        for i in range(n):
            I(f"buffer_load_dword v{194+i}, v4, {S_CKV}, s12 offen nt\ns_add_u32 s12, s12, 8192")
    I(f"""
    s_lshl_b32 s12, {sX}, 4
    s_add_u32 s12, s12, {sM}
    s_lshl_b32 s12, s12, 7
    s_add_u32 s12, s12, {XH}
    s_mov_b32 s92, 0
    s_cmp_lg_u32 {sWV}, 0
    s_cbranch_scc1 L_B_hd
    L_B_hp:
    buffer_load_dwordx2 v[12:13], {VZ}, {S_WS}, s12 offen sc1
    s_waitcnt vmcnt(0)
    v_cmp_eq_u64 vcc, v[12:13], v[108:109]
    s_add_u32 s92, s92, 1
    s_cbranch_vccnz L_B_hd
    s_sleep 4
    s_cmp_lt_u32 s92, 200
    s_cbranch_scc1 L_B_hp
    L_B_hd:
    s_barrier
    """)
    g.stamp(26)
    g.label("L_B_p2")
    I(f"""
    s_cmp_ge_u32 {sWV}, 4
    s_cbranch_scc1 L_B_np
    s_lshl_b32 s12, {sX}, 5
    s_lshl_b32 s13, {sM}, 1
    s_add_u32 s12, s12, s13
    s_lshr_b32 s13, {sWV}, 1
    s_add_u32 s12, s12, s13
    s_mul_i32 s12, s12, {C1J}
    s_and_b32 s13, {sWV}, 1
    s_lshl_b32 s13, s13, 13
    s_add_u32 s12, s12, s13
    s_add_u32 s12, s12, {XC1D}
    v_lshlrev_b32 v4, 7, v1
    buffer_load_dword v194, v4, {S_WS}, s12 offen nt
    L_B_np:
    v_lshrrev_b32 v4, 2, v1
    v_lshlrev_b32 v4, 13, v4
    v_and_b32 v6, 3, v1
    v_lshl_add_u32 v4, v6, 4, v4
    s_lshl_b32 s12, {sWV}, 17
    s_lshl_b32 s13, {sH}, 8
    s_add_u32 s12, s12, s13
    s_lshl_b32 s13, {sSUB}, 6
    s_add_u32 s12, s12, s13
    s_lshl_b32 s13, {sWV}, 10
    s_add_u32 s13, s13, {L_WUV}
    """)
    for i in range(4):
        dma("v4", S_WUV, NT, 8192, 1 << 20)
    I(f"""
    s_lshl_b32 s12, {sH}, 7
    s_lshl_b32 s13, {sSUB}, 5
    s_add_u32 s12, s12, s13
    s_mul_i32 s12, s12, 1280
    s_lshl_b32 s13, {sWV}, 10
    s_add_u32 s12, s12, s13
    s_add_u32 s13, s13, {L_WO}
    """)
    for i in range(5):
        dma("v5", S_WO, NT, 8192, 8192)
    I(f"""
    v_bfe_u32 v4, v1, 2, 2
    v_lshl_add_u32 v4, v2, 3, v4
    v_lshlrev_b32 v16, 6, v4
    v_lshl_add_u32 v16, v6, 3, v16
    s_lshl_b32 s12, {sWV}, 12
    s_add_u32 s12, s12, {L_WUV}
    v_add_u32 v16, s12, v16
    v_mul_u32_u24 v17, 1280, v4
    v_lshl_add_u32 v17, v6, 3, v17
    s_mul_i32 s12, {sWV}, 160
    s_add_u32 s12, s12, {L_WO}
    v_add_u32 v17, s12, v17
    v_and_b32 v18, 7, v3
    v_lshlrev_b32 v18, 10, v18
    v_lshl_add_u32 v18, v2, 4, v18
    s_lshl_b32 s12, {sH}, 13
    s_lshl_b32 s13, {sWV}, 7
    s_add_u32 s12, s12, s13
    s_add_u32 s12, s12, {XC2D}
    v_and_b32 v4, 1, v2
    v_lshlrev_b32 v19, 5, v4
    s_lshl_b32 s13, {sH}, 6
    s_add_u32 s13, s13, {XC2M}
    v_lshl_add_u32 v20, v4, 5, v3
    v_lshlrev_b32 v20, 5, v20
    s_lshl_b32 s14, {sWV}, 2
    v_add_u32 v20, s14, v20
    v_lshlrev_b32 v21, 5, v1
    s_lshl_b32 s14, {sWV}, 7
    v_lshl_add_u32 v22, v1, 1, s14
    v_and_b32 v23, 1, v3
    v_lshlrev_b32 v23, 6, v23
    v_lshl_add_u32 v23, v2, 4, v23
    v_add_u32 v23, s14, v23
    v_mul_u32_u24 v24, 2560, v3
    v_lshl_add_u32 v24, v2, 4, v24
    v_mov_b32 v4, {OOB}
    v_cmp_gt_u32 vcc, 2, v3
    s_lshl_b32 s93, {sX}, 4
    s_add_u32 s93, s93, {sM}
    v_cndmask_b32 v24, v4, v24, vcc
    s_mul_i32 s93, s93, 5120
    s_mul_i32 s94, {sWV}, 320
    s_add_u32 s93, s93, s94
    s_add_u32 s93, s93, {XD1}
    """)
    I(f"s_cmp_lg_u32 {sWV}, 7\ns_cbranch_scc1 L_B_nu\nv_mov_b32 v14, v108\nv_mov_b32 v15, v109")
    verify_flags(32, False, False)
    g.label("L_B_nu")
    for r in list(range(8, 16)) + list(range(64, 84)):
        I(f"v_mov_b32 v{r}, 0")
    g.bar("vmcnt(0) lgkmcnt(0)")
    g.stamp(18)
    I(f"""
    ds_read_b32 v4, {VZ} offset:{L_CTRL+8}
    s_cmp_lg_u32 {sWV}, 0
    s_cbranch_scc1 L_B_np3
    s_cmp_ge_u32 {sM}, 10
    s_cbranch_scc1 L_B_np3
    v_lshrrev_b32 v5, 1, v1
    v_mul_u32_u24 v5, 2560, v5
    v_and_b32 v6, 1, v1
    v_lshl_add_u32 v5, v6, 7, v5
    s_mul_i32 s14, {sX}, {16*5120}
    s_lshl_b32 s94, {sM}, 8
    s_add_u32 s14, s14, s94
    s_add_u32 s14, s14, {XD1}
    buffer_load_dword v6, v5, {S_WS}, s14 offen sc1 nt
    L_B_np3:
    """)
    for t in range(2):
        for nu in range(2):
            for tt in range(2):
                r = 96 + (t * 2 + nu) * 4 + 2 * tt
                I(f"ds_read_b64_tr_b16 v[{r}:{r+1}], v16 offset:{(32*t+4*tt)*64+32*nu}")
    for u in range(5):
        for tt in range(2):
            r = 112 + 4 * u + 2 * tt
            I(f"ds_read_b64_tr_b16 v[{r}:{r+1}], v17 offset:{32*u+4*tt*1280}")
    I("s_waitcnt lgkmcnt(0)\nv_readfirstlane_b32 s15, v4")
    until(P["t_c2"], "v195")
    c2l = lambda b: [f"buffer_load_dwordx4 v[{b}:{b+3}], v18, {S_WS}, s12 offen sc1",
                     f"buffer_load_dwordx4 v[{b+4}:{b+7}], v18, {S_WS}, s12 offen offset:64 sc1",
                     f"buffer_load_dwordx4 v[{b+8}:{b+11}], v19, {S_WS}, s13 offen sc1",
                     f"buffer_load_dwordx4 v[{b+12}:{b+15}], v19, {S_WS}, s13 offen offset:16 sc1"]
    if P["pipe"] > 1:
        I("s_waitcnt vmcnt(0)")
        g.poll_pipe(c2l, 16, [32, 136, 152, 168][:P["pipe"]], gap=P["gap"])
    else:
        g.poll(c2l(32), range(32, 48), delay=P["d_c2"], backoff=P["bo_c2"])
    g.stamp(10)
    I(f"""
    v_mfma_f32_16x16x32_bf16 v[8:11], v[32:35], v[96:99], v[8:11]
    v_mfma_f32_16x16x32_bf16 v[12:15], v[32:35], v[100:103], v[12:15]
    v_mfma_f32_16x16x32_bf16 v[8:11], v[36:39], v[104:107], v[8:11]
    v_mfma_f32_16x16x32_bf16 v[12:15], v[36:39], v[108:111], v[12:15]
    v_max_f32 v4, v40, v42
    v_max3_f32 v4, v4, v44, v46
    v_sub_f32 v40, v40, v4
    v_sub_f32 v42, v42, v4
    v_sub_f32 v44, v44, v4
    v_sub_f32 v46, v46, v4
    v_exp_f32 v40, v40
    v_exp_f32 v42, v42
    v_exp_f32 v44, v44
    v_exp_f32 v46, v46
    s_nop 0
    v_mul_f32 v4, v40, v41
    v_fmac_f32 v4, v42, v43
    v_fmac_f32 v4, v44, v45
    v_fmac_f32 v4, v46, v47
    v_rcp_f32 v4, v4
    v_mul_f32 v5, v40, v8
    v_mul_f32 v6, v40, v12
    v_fmac_f32 v5, v42, v9
    v_fmac_f32 v6, v42, v13
    v_fmac_f32 v5, v44, v10
    v_fmac_f32 v6, v44, v14
    v_fmac_f32 v5, v46, v11
    v_fmac_f32 v6, v46, v15
    v_mul_f32 v5, v5, v4
    v_mul_f32 v6, v6, v4
    ds_write_b32 v20, v5 offset:{L_DR}
    ds_write_b32 v20, v6 offset:{L_DR+512}
    """)
    g.bar()
    I(f"""
    ds_read_b128 v[32:35], v21 offset:{L_DR}
    ds_read_b128 v[36:39], v21 offset:{L_DR+16}
    s_waitcnt lgkmcnt(0)
    v_add_f32 v32, v32, v33
    v_add_f32 v34, v34, v35
    v_add_f32 v36, v36, v37
    v_add_f32 v38, v38, v39
    v_add_f32 v32, v32, v34
    v_add_f32 v36, v36, v38
    v_add_f32 v32, v32, v36
    v_cvt_pk_bf16_f32 v32, v32, v32
    ds_write_b16 v22, v32 offset:{L_CT}
    s_waitcnt lgkmcnt(0)
    ds_read_b128 v[12:15], v23 offset:{L_CT}
    s_waitcnt lgkmcnt(0)
    """)
    for u in range(5):
        I(f"v_mfma_f32_16x16x32_bf16 v[{64+4*u}:{67+4*u}], v[{112+4*u}:{115+4*u}], v[12:15], v[{64+4*u}:{67+4*u}]")
    I("s_nop 5\ns_cmp_eq_u32 s15, 1\ns_cbranch_scc1 L_e_fast")
    for fl, lab in (("sc1", None), ("", "L_e_fast")):
        if lab:
            g.label(lab)
        for u in range(5):
            I(f"buffer_store_dwordx4 v[{64+4*u}:{67+4*u}], v24, {S_WS}, s93 offen offset:{64*u} {fl}")
        if not lab:
            I("s_branch L_e_done")
    g.label("L_e_done")
    g.stamp(11)
    if P["wb"] == 1:
        I(f"""
        s_cmp_lg_u32 {sWV}, 1
        s_cbranch_scc1 L_nwb
        s_cmp_lg_u32 {sM}, 15
        s_cbranch_scc1 L_nwb
        s_sleep 40
        buffer_wbl2 sc1
        s_waitcnt vmcnt(0)
        L_nwb:
        """)
    I(f"""
    s_cmp_lg_u32 {sWV}, 0
    s_cbranch_scc1 L_fin
    s_cmp_ge_u32 {sM}, 10
    s_cbranch_scc1 L_fin
    v_mul_u32_u24 v5, 2560, v2
    v_lshl_add_u32 v5, v3, 4, v5
    v_and_b32 v4, 1, v2
    v_mul_u32_u24 v7, 2560, v4
    v_lshl_add_u32 v7, v3, 4, v7
    v_lshrrev_b32 v4, 1, v2
    v_lshl_add_u32 v7, v4, 3, v7
    s_mul_i32 s93, {sX}, 5120
    s_add_u32 s93, s93, s94
    s_add_u32 s93, s93, {XD2}
    """)
    lds = [f"s_add_u32 s13, s14, {i*2*5120}\nbuffer_load_dwordx4 v[{32+4*i}:{35+4*i}], v5, {S_WS}, s13 offen sc1"
           for i in range(8)]
    g.poll(lds, range(32, 64), delay=P["d_d1"], tmp="v6")
    g.tree_add(32, 8, 4, 4)
    I(f"""
    s_nop 1
    v_permlane32_swap_b32 v32, v34
    v_permlane32_swap_b32 v33, v35
    v_add_f32 v32, v32, v34
    v_add_f32 v33, v33, v35
    buffer_store_dwordx2 v[32:33], v7, {S_WS}, s93 offen sc1
    """)
    g.stamp(12)
    I("s_branch L_fin")

    g.label("L_Awg")
    I(f"""
    s_lshl_b32 s12, {sX}, 11
    s_lshl_b32 s13, {sM}, 7
    s_add_u32 s12, s12, s13
    s_lshl_b32 s13, {sWV}, 4
    s_add_u32 s12, s12, s13
    s_lshl_b32 s12, s12, 10
    s_mul_i32 s13, {sWV}, {16*CPITCH}
    s_add_u32 s13, s13, {L_CKV}
    s_lshr_b32 s101, {sWV}, 1
    s_barrier
    buffer_store_dwordx4 v[12:15], v199, {S_WS}, s99 offen sc1
    """)

    def own_tile(cond):
        lab = g.newlab("Lt")
        lp = g.newlab("Ltl")
        I(f"{cond}\ns_cbranch_scc0 {lab}\ns_mov_b32 s14, 0")
        g.label(lp)
        for i in range(4):
            dma("v5", S_CKV, NT, CPITCH, 1024)
        I(f"s_add_u32 s14, s14, 1\ns_cmp_lt_u32 s14, 4\ns_cbranch_scc1 {lp}")
        g.label(lab)

    own_tile(f"s_cmp_lt_u32 s101, {P['ahead']}")
    I(f"""
    v_and_b32 v16, 7, v3
    v_lshlrev_b32 v16, 1, v16
    v_lshrrev_b32 v4, 3, v3
    v_add_u32 v16, v16, v4
    s_lshl_b32 s14, {sWV}, 4
    v_add_u32 v16, s14, v16
    v_mul_u32_u24 v16, {CPITCH}, v16
    v_lshl_add_u32 v16, v2, 8, v16
    v_add_u32 v16, {L_CKV}, v16
    v_and_b32 v17, 1, v2
    v_lshlrev_b32 v17, 3, v17
    v_bfe_u32 v4, v1, 2, 2
    v_lshl_add_u32 v17, v4, 1, v17
    v_lshrrev_b32 v4, 1, v2
    v_add_u32 v17, v17, v4
    v_mul_u32_u24 v17, {CPITCH}, v17
    v_and_b32 v4, 3, v1
    v_lshl_add_u32 v17, v4, 3, v17
    s_lshl_b32 s14, {sWV}, 7
    s_add_u32 s14, s14, {L_CKV}
    v_add_u32 v17, s14, v17
    v_mul_u32_u24 v18, {CPITCH}, v3
    v_lshl_add_u32 v18, v2, 8, v18
    v_lshlrev_b32 v19, 5, v3
    s_lshl_b32 s14, {sWV}, 2
    v_add_u32 v20, s14, v19
    s_lshr_b32 s14, {sWV}, 1
    s_lshl_b32 s14, s14, 10
    s_and_b32 s15, {sWV}, 1
    s_lshl_b32 s15, s15, 3
    s_add_u32 s14, s14, s15
    v_add_u32 v21, s14, v5
    s_mul_i32 s14, {sWV}, {4*CPITCH}
    v_add_u32 v22, s14, v5
    v_lshrrev_b32 v23, 1, v2
    v_and_b32 v4, 7, v3
    v_xor_b32 v23, v23, v4
    v_lshlrev_b32 v23, 4, v23
    v_lshl_add_u32 v23, v3, 7, v23
    v_and_b32 v4, 1, v2
    v_lshl_add_u32 v23, v4, 3, v23
    s_lshl_b32 s14, {sWV}, 12
    s_add_u32 s14, s14, {L_TR}
    v_add_u32 v23, s14, v23
    v_xor_b32 v24, 32, v23
    v_xor_b32 v25, 64, v23
    v_xor_b32 v26, 96, v23
    v_lshrrev_b32 v30, 3, v1
    v_and_b32 v31, 7, v1
    v_xor_b32 v27, v30, v31
    v_lshlrev_b32 v27, 4, v27
    v_lshl_add_u32 v27, v30, 7, v27
    v_add_u32 v27, s14, v27
    s_mov_b32 s14, {C1J}
    v_mul_lo_u32 v28, v30, s14
    v_lshl_add_u32 v28, v31, 4, v28
    v_lshlrev_b32 v29, 7, v1
    v_mov_b32 v4, {OOB}
    v_cmp_gt_u32 vcc, 32, v1
    s_lshr_b32 s94, {sX}, 2
    s_lshl_b32 s94, s94, 15
    v_cndmask_b32 v29, v4, v29, vcc
    s_lshl_b32 s14, {sWV}, 12
    s_add_u32 s94, s94, s14
    s_add_u32 s94, s94, {XB}
    """)
    xb_loads = [f"buffer_load_dwordx4 v[{96+4*t}:{99+4*t}], v5, {S_WS}, s94 offen offset:{1024*t} sc1" for t in range(4)]
    for kb in range(4):
        I(f"s_cmp_lg_u32 s101, {kb}\ns_cbranch_scc1 L_A_na{kb}")
        I(f"s_waitcnt vmcnt({5 if kb == 3 else 0})")
        g.stamp(27)
        for j in range(16):
            I(f"ds_read_b128 v[{32+4*j}:{35+4*j}], v16 offset:{16*j}")
        g.label(f"L_A_na{kb}")
        if kb == 2:
            I(f"s_cmp_lg_u32 {sWV}, 0\ns_cbranch_scc1 L_A_w2")
            verify_flags(112, True, True, first_wait="vmcnt(0)", onlyA=True)
            g.label("L_A_w2")
        if kb in (1, 2):
            g.bar()
        else:
            g.bar(None)
        if kb == P["fl_kb"]:
            I(f"s_cmp_lg_u32 {sWV}, 0\ns_cbranch_scc1 L_A_nf")
            for i in range(4):
                I(f"buffer_load_dwordx4 v[{112+4*i}:{115+4*i}], v5, {S_WS}, 0 offen offset:{FLAGS+1024*i} sc1")
            g.label("L_A_nf")
        if kb + P["ahead"] < 4:
            own_tile(f"s_cmp_eq_u32 s101, {kb + P['ahead']}")
        if kb == 2:
            for l in xb_loads:
                I(l)
            I(f"""
            s_lshl_b32 s14, {sX}, 4
            s_add_u32 s14, s14, {sM}
            s_lshl_b32 s14, s14, 7
            s_add_u32 s14, s14, {XH}
            v_mov_b32 v4, {OOB}
            v_cmp_eq_u32 vcc, 0, v0
            s_nop 1
            v_cndmask_b32 v4, v4, 0, vcc
            buffer_store_dwordx2 v[14:15], v4, {S_WS}, s14 offen sc1
            """)
        if kb == 3:
            g.stamp(6)
        for tau in range(4):
            for t in range(2):
                dst = PVA + (tau * 4 + kb) * 4 + 2 * t
                I(f"ds_read_b64_tr_b16 v[{dst}:{dst+1}], v17 offset:{16*t*CPITCH + 32*tau}")
        if kb < 3:
            I(f"v_add_u32 v17, {32*CPITCH}, v17")
    I(f"ds_read_b32 v6, {VZ} offset:{L_CTRL+8}")
    g.poll(xb_loads, range(96, 112), preissued=True, backoff=P["bo_b"])
    g.stamp(5)
    for t in range(4):
        I(f"ds_write_b128 v22, v[{96+4*t}:{99+4*t}] offset:{L_QA+CPITCH*t}")
    I(f"""
    s_lshl_b32 s93, {sX}, 4
    s_add_u32 s93, s93, {sM}
    s_lshl_b32 s93, s93, 8
    s_add_u32 s93, s93, {XC1M}
    s_cmp_lg_u32 {sWV}, 3
    s_cbranch_scc1 L_A_npm
    v_lshlrev_b32 v4, 2, v1
    buffer_load_dword v194, v4, {S_WS}, s93 offen sc1 nt
    L_A_npm:
    """)
    for r in range(8, 16):
        I(f"v_mov_b32 v{r}, 0")
    g.bar()
    I("v_readfirstlane_b32 s15, v6")
    seq = [(j, ht) for j in range(16) for ht in range(2)]
    def qread(i):
        j, ht = seq[i]
        r = 96 + 4 * (i % 8)
        I(f"ds_read_b128 v[{r}:{r+3}], v18 offset:{L_QA+16*CPITCH*ht+16*j}")
    for i in range(8):
        qread(i)
    for i in range(32):
        j, ht = seq[i]
        r = 96 + 4 * (i % 8)
        I(f"s_waitcnt lgkmcnt({min(7, 31 - i)})")
        I(f"v_mfma_f32_16x16x32_bf16 v[{8+4*ht}:{11+4*ht}], v[{32+4*j}:{35+4*j}], v[{r}:{r+3}], v[{8+4*ht}:{11+4*ht}]")
        if i + 8 < 32:
            qread(i + 8)
    for r in range(32, 40):
        I(f"v_mov_b32 v{r}, 0")
    I(f"""
    v_max_f32 v4, v8, v9
    v_max_f32 v6, v12, v13
    v_max3_f32 v4, v4, v10, v11
    v_max3_f32 v6, v6, v14, v15
    s_nop 1
    v_permlane16_swap_b32 v4, v6
    v_max_f32 v4, v4, v6
    v_mov_b32 v6, v4
    s_nop 1
    v_permlane32_swap_b32 v4, v6
    v_max_f32 v4, v4, v6
    """)
    I(f"""
    v_and_b32 v6, 1, v2
    v_lshl_add_u32 v7, v6, 9, v20
    ds_write_b32 v7, v4 offset:{L_MB}
    """)
    g.stamp(20)
    for r in range(40, 64):
        I(f"v_mov_b32 v{r}, 0")
    g.bar()
    g.stamp(21)
    I(f"""
    ds_read_b128 v[96:99], v19 offset:{L_MB}
    ds_read_b128 v[100:103], v19 offset:{L_MB+16}
    ds_read_b128 v[104:107], v19 offset:{L_MB+512}
    ds_read_b128 v[108:111], v19 offset:{L_MB+528}
    s_waitcnt lgkmcnt(2)
    v_max3_f32 v4, v96, v97, v98
    v_max3_f32 v4, v4, v99, v100
    v_max3_f32 v4, v4, v101, v102
    v_max_f32 v4, v4, v103
    s_waitcnt lgkmcnt(0)
    v_max3_f32 v6, v104, v105, v106
    v_max3_f32 v6, v6, v107, v108
    v_max3_f32 v6, v6, v109, v110
    v_max_f32 v6, v6, v111
    """)
    for k in range(4):
        I(f"v_sub_f32 v{8+k}, v{8+k}, v4\nv_sub_f32 v{12+k}, v{12+k}, v6")
    for k in range(8):
        I(f"v_exp_f32 v{8+k}, v{8+k}")
    I(f"""
    s_nop 0
    v_cvt_pk_bf16_f32 v96, v8, v9
    v_cvt_pk_bf16_f32 v97, v10, v11
    v_cvt_pk_bf16_f32 v98, v12, v13
    v_cvt_pk_bf16_f32 v99, v14, v15
    ds_write_b64 v21, v[96:97] offset:{L_PB}
    ds_write_b64 v21, v[98:99] offset:{L_PB+4096}
    v_add_f32 v4, v8, v9
    v_add_f32 v6, v12, v13
    v_add_f32 v8, v10, v11
    v_add_f32 v9, v14, v15
    v_add_f32 v4, v4, v8
    v_add_f32 v6, v6, v9
    s_nop 1
    v_permlane16_swap_b32 v4, v6
    v_add_f32 v4, v4, v6
    v_mov_b32 v6, v4
    s_nop 1
    v_permlane32_swap_b32 v4, v6
    v_add_f32 v4, v4, v6
    ds_write_b32 v7, v4 offset:{L_LB}
    s_mul_i32 s12, {sX}, {32*C1J}
    s_lshl_b32 s13, {sM}, 10
    s_add_u32 s12, s12, s13
    s_lshl_b32 s13, {sWV}, 7
    s_add_u32 s12, s12, s13
    s_add_u32 s12, s12, {XC1D}
    s_lshl_b32 s13, {sX}, 12
    s_lshl_b32 s14, {sM}, 3
    s_add_u32 s13, s13, s14
    s_add_u32 s13, s13, {XC1M}
    v_and_b32 v6, 31, v1
    v_lshlrev_b32 v6, 5, v6
    """)
    g.bar()
    g.stamp(22)
    for q in range(8):
        I(f"ds_read_b128 v[{64+4*q}:{67+4*q}], v5 offset:{L_PB+1024*q}")
    I("s_cmp_eq_u32 s15, 1\ns_cbranch_scc1 L_pv_fast")
    for fl, lab in (("sc1", None), ("", "L_pv_fast")):
        if lab:
            g.label(lab)
        for ht in range(2):
            I(f"s_waitcnt lgkmcnt({4 if ht == 0 else 0})")
            for tau in range(4):
                for kb in range(4):
                    acc = 32 + (tau * 2 + ht) * 4
                    a = PVA + (tau * 4 + kb) * 4
                    pb = 64 + (ht * 4 + kb) * 4
                    I(f"v_mfma_f32_16x16x32_bf16 v[{acc}:{acc+3}], v[{a}:{a+3}], v[{pb}:{pb+3}], v[{acc}:{acc+3}]")
                if ht == 1:
                    if tau == 0:
                        for tq in range(3):
                            acc = 32 + (tq * 2) * 4
                            I(f"v_cvt_pk_bf16_f32 v{acc}, v{acc}, v{acc+1}\nv_cvt_pk_bf16_f32 v{acc+1}, v{acc+2}, v{acc+3}")
                            I(f"ds_write_b64 v{23+tq}, v[{acc}:{acc+1}]")
                    if tau == 1:
                        acc = 32 + 6 * 4
                        I(f"v_cvt_pk_bf16_f32 v{acc}, v{acc}, v{acc+1}\nv_cvt_pk_bf16_f32 v{acc+1}, v{acc+2}, v{acc+3}")
                        I(f"ds_write_b64 v26, v[{acc}:{acc+1}]")
                        I("s_waitcnt lgkmcnt(0)")
                        I("ds_read_b128 v[96:99], v27\nds_read_b128 v[100:103], v27 offset:1024")
                    if tau == 2:
                        I("s_waitcnt lgkmcnt(1)")
                        I(f"buffer_store_dwordx4 v[96:99], v28, {S_WS}, s12 offen {fl}")
                        I(f"s_add_u32 s12, s12, {8*C1J}")
                        I("s_waitcnt lgkmcnt(0)")
                        I(f"buffer_store_dwordx4 v[100:103], v28, {S_WS}, s12 offen {fl}")
                        I(f"s_add_u32 s12, s12, {8*C1J}")
        I(f"""
        ds_read_b128 v[112:115], v6 offset:{L_MB}
        ds_read_b128 v[116:119], v6 offset:{L_MB+16}
        ds_read_b128 v[120:123], v6 offset:{L_LB}
        ds_read_b128 v[124:127], v6 offset:{L_LB+16}
        """)
        for tau in range(4):
            acc = 32 + (tau * 2 + 1) * 4
            I(f"v_cvt_pk_bf16_f32 v{acc}, v{acc}, v{acc+1}\nv_cvt_pk_bf16_f32 v{acc+1}, v{acc+2}, v{acc+3}")
            I(f"ds_write_b64 v{23+tau}, v[{acc}:{acc+1}] offset:2048")
        I("s_waitcnt lgkmcnt(0)")
        I("ds_read_b128 v[104:107], v27 offset:2048\nds_read_b128 v[108:111], v27 offset:3072")
        g.stamp(23)
        I(f"""
        v_max3_f32 v8, v112, v113, v114
        v_max3_f32 v8, v8, v115, v116
        v_max3_f32 v8, v8, v117, v118
        v_max_f32 v8, v8, v119
        s_waitcnt lgkmcnt(1)
        buffer_store_dwordx4 v[104:107], v28, {S_WS}, s12 offen {fl}
        s_add_u32 s12, s12, {8*C1J}
        s_waitcnt lgkmcnt(0)
        buffer_store_dwordx4 v[108:111], v28, {S_WS}, s12 offen {fl}
        v_add_f32 v9, v120, v121
        v_add_f32 v10, v122, v123
        v_add_f32 v11, v124, v125
        v_add_f32 v12, v126, v127
        v_add_f32 v9, v9, v10
        v_add_f32 v11, v11, v12
        v_add_f32 v9, v9, v11
        """)
        g.bar("vmcnt(0)")
        g.stamp(25)
        I(f"s_cmp_lg_u32 {sWV}, 0\ns_cbranch_scc1 L_c1_done")
        I(f"buffer_store_dwordx2 v[8:9], v29, {S_WS}, s13 offen {fl}")
        if not lab:
            I("s_branch L_c1_done")
    g.label("L_c1_done")
    g.stamp(7)
    I(f"""
    v_lshlrev_b32 v16, 3, v30
    s_lshl_b32 s14, {sX}, 5
    s_lshl_b32 s13, {sM}, 1
    s_add_u32 s14, s14, s13
    s_mul_i32 s12, s14, {C1J}
    v_lshlrev_b32 v7, 10, v30
    v_lshl_add_u32 v7, v31, 4, v7
    v_add_u32 v6, 8192, v7
    s_lshl_b32 s13, {sWV}, 7
    s_add_u32 s12, s12, s13
    s_add_u32 s12, s12, {XC1D}
    s_add_u32 s14, s12, {C1J}
    v_lshlrev_b32 v17, 4, v31
    v_lshl_add_u32 v17, v2, 2, v17
    v_bfe_u32 v4, v1, 3, 1
    v_lshl_add_u32 v17, v4, 13, v17
    s_lshl_b32 s95, {sM}, 4
    s_add_u32 s95, s95, {sX}
    s_lshl_b32 s94, s95, 10
    s_add_u32 s94, s94, s13
    s_add_u32 s94, s94, {XC2D}
    s_lshl_b32 s95, s95, 3
    s_add_u32 s95, s95, {XC2M}
    v_lshlrev_b32 v18, 3, v1
    v_and_b32 v4, 0x1f7, v0
    v_mov_b32 v19, {OOB}
    v_cmp_eq_u32 vcc, 0, v4
    s_nop 1
    v_cndmask_b32 v18, v19, v18, vcc
    """)
    g.poll([f"buffer_load_dwordx2 v[{32+2*q}:{33+2*q}], v16, {S_WS}, s93 offen offset:{64*q} sc1" for q in range(4)],
           range(32, 40), delay=P["d_c1"], backoff=1)
    I(f"""
    buffer_load_dwordx4 v[64:67], v7, {S_WS}, s12 offen sc1
    buffer_load_dwordx4 v[68:71], v6, {S_WS}, s12 offen sc1
    buffer_load_dwordx4 v[72:75], v7, {S_WS}, s14 offen sc1
    buffer_load_dwordx4 v[76:79], v6, {S_WS}, s14 offen sc1
    """)
    g.stamp(8)
    I(f"""
    v_max_f32 v8, v32, v34
    v_max_f32 v10, v36, v38
    s_nop 1
    v_max_f32_dpp v8, v8, v8 row_ror:8 row_mask:0xf bank_mask:0xf
    v_max_f32_dpp v10, v10, v10 row_ror:8 row_mask:0xf bank_mask:0xf
    v_mov_b32 v12, v8
    v_mov_b32 v13, v10
    s_nop 0
    v_permlane16_swap_b32 v8, v12
    v_permlane16_swap_b32 v10, v13
    v_max_f32 v8, v8, v12
    v_max_f32 v10, v10, v13
    v_mov_b32 v12, v8
    v_mov_b32 v13, v10
    s_nop 0
    v_permlane32_swap_b32 v8, v12
    v_permlane32_swap_b32 v10, v13
    v_max_f32 v8, v8, v12
    v_max_f32 v10, v10, v13
    v_sub_f32 v32, v32, v8
    v_sub_f32 v34, v34, v8
    v_sub_f32 v36, v36, v10
    v_sub_f32 v38, v38, v10
    v_exp_f32 v32, v32
    v_exp_f32 v34, v34
    v_exp_f32 v36, v36
    v_exp_f32 v38, v38
    s_nop 0
    v_mul_f32 v9, v32, v33
    v_mul_f32 v11, v36, v37
    v_fmac_f32 v9, v34, v35
    v_fmac_f32 v11, v38, v39
    s_nop 1
    v_add_f32_dpp v9, v9, v9 row_ror:8 row_mask:0xf bank_mask:0xf
    v_add_f32_dpp v11, v11, v11 row_ror:8 row_mask:0xf bank_mask:0xf
    v_mov_b32 v12, v9
    v_mov_b32 v13, v11
    s_nop 0
    v_permlane16_swap_b32 v9, v12
    v_permlane16_swap_b32 v11, v13
    v_add_f32 v9, v9, v12
    v_add_f32 v11, v11, v13
    v_mov_b32 v12, v9
    v_mov_b32 v13, v11
    s_nop 0
    v_permlane32_swap_b32 v9, v12
    v_permlane32_swap_b32 v11, v13
    v_add_f32 v9, v9, v12
    v_add_f32 v11, v11, v13
    v_cmp_eq_u32 vcc, 8, v1
    s_nop 1
    v_cndmask_b32 v8, v8, v10, vcc
    v_cndmask_b32 v9, v9, v11, vcc
    """)
    if diag and not P.get("lite"):
        I("s_waitcnt vmcnt(0)")
        g.stamp(24)
    for q in range(4):
        hh, i = q >> 1, q & 1
        ab = 40 + 8 * hh
        I(f"s_waitcnt vmcnt({3-q})")
        for d in range(4):
            src = 64 + 4 * q + d
            I(f"v_lshlrev_b32 v12, 16, v{src}\nv_and_b32 v13, 0xffff0000, v{src}")
            if i == 0:
                I(f"v_mul_f32 v{ab+2*d}, v{32+2*q}, v12\nv_mul_f32 v{ab+1+2*d}, v{32+2*q}, v13")
            else:
                I(f"v_fmac_f32 v{ab+2*d}, v{32+2*q}, v12\nv_fmac_f32 v{ab+1+2*d}, v{32+2*q}, v13")
    I("s_nop 1")
    for ab in (40, 48):
        for k in (0, 1, 4, 5):
            I(f"v_permlane16_swap_b32 v{ab+k}, v{ab+2+k}")
    for ab in (40, 48):
        for k in (0, 1, 4, 5):
            I(f"v_add_f32 v{ab+k}, v{ab+k}, v{ab+2+k}")
    I("s_nop 0")
    for ab in (40, 48):
        for k in (0, 1):
            I(f"v_permlane32_swap_b32 v{ab+k}, v{ab+4+k}")
    I(f"""
    v_add_f32 v40, v40, v44
    v_add_f32 v41, v41, v45
    v_add_f32 v48, v48, v52
    v_add_f32 v49, v49, v53
    v_cmp_lt_u32 vcc, 7, v3
    v_add_f32_dpp v40, v40, v40 row_ror:8 row_mask:0xf bank_mask:0xf
    v_add_f32_dpp v41, v41, v41 row_ror:8 row_mask:0xf bank_mask:0xf
    v_add_f32_dpp v48, v48, v48 row_ror:8 row_mask:0xf bank_mask:0xf
    v_add_f32_dpp v49, v49, v49 row_ror:8 row_mask:0xf bank_mask:0xf
    v_cvt_pk_bf16_f32 v40, v40, v41
    v_cvt_pk_bf16_f32 v48, v48, v49
    v_cndmask_b32 v40, v40, v48, vcc
    buffer_store_dword v40, v17, {S_WS}, s94 offen sc1
    buffer_store_dwordx2 v[8:9], v18, {S_WS}, s95 offen sc1
    """)
    g.stamp(9)
    g.bar("vmcnt(0)")
    I(f"s_cmp_eq_u32 {sUP}, 0\ns_cbranch_scc1 L_down")
    I(f"""
    v_mul_u32_u24 v4, 3456, v30
    v_and_b32 v6, 1, v2
    s_and_b32 s12, {sWV}, 1
    s_lshl_b32 s12, s12, 1
    v_add_u32 v6, s12, v6
    v_lshlrev_b32 v6, 1, v6
    v_xor_b32 v6, v6, v31
    v_lshl_add_u32 v4, v6, 4, v4
    s_mul_i32 s12, {sKC}, 160
    s_and_b32 s14, {sWV}, 3
    s_lshl_b32 s13, s14, 3
    s_add_u32 s12, s12, s13
    s_mul_i32 s12, s12, 3456
    s_lshl_b32 s13, {sFC}, 7
    s_add_u32 s12, s12, s13
    s_lshl_b32 s13, s14, 10
    s_cmp_ge_u32 {sWV}, 4
    s_cbranch_scc1 L_up_w3
    s_add_u32 s13, s13, {L_W1}
    """)
    for m in range(5):
        dma("v4", S_W1, NT, 4096, 32 * 3456)
    I("s_branch L_up_ld")
    g.label("L_up_w3")
    I(f"s_add_u32 s13, s13, {L_W3}")
    for m in range(5):
        dma("v4", S_W3, NT, 4096, 32 * 3456)
    g.label("L_up_ld")
    I(f"""
    v_bfe_u32 v4, v1, 3, 1
    v_and_b32 v6, 1, v2
    v_lshl_add_u32 v4, v6, 1, v4
    v_xor_b32 v4, s14, v4
    v_lshlrev_b32 v16, 5, v4
    v_bfe_u32 v4, v1, 2, 2
    v_lshl_add_u32 v4, v2, 3, v4
    v_lshl_add_u32 v16, v4, 7, v16
    v_and_b32 v4, 3, v1
    v_lshl_add_u32 v16, v4, 3, v16
    s_lshr_b32 s12, {sWV}, 2
    s_mul_i32 s12, s12, {L_W3-L_W1}
    v_add_u32 v16, s12, v16
    v_min_u32 v17, 2, v3
    v_mul_u32_u24 v17, 320, v17
    v_lshl_add_u32 v17, v2, 4, v17
    v_lshlrev_b32 v18, 2, v4
    v_mov_b32 v4, {OOB}
    v_cmp_gt_u32 vcc, 16, v1
    s_lshl_b32 s93, {sX}, 4
    s_add_u32 s93, s93, {sM}
    v_cndmask_b32 v19, v4, v5, vcc
    s_lshl_b32 s93, s93, 11
    s_andn2_b32 s94, s93, 0x1fff
    s_lshl_b32 s13, {sWV}, 8
    s_add_u32 s93, s93, s13
    s_add_u32 s93, s93, {XU}
    s_lshl_b32 s13, {sKC}, 8
    s_add_u32 s94, s94, s13
    s_add_u32 s94, s94, {XU}
    v_lshlrev_b32 v20, 11, v2
    v_lshl_add_u32 v20, v3, 4, v20
    v_min_u32 v21, 39, v1
    v_mov_b32 v8, 0
    v_mov_b32 v9, 0
    v_mov_b32 v10, 0
    v_mov_b32 v11, 0
    """)
    I(f"""
    s_sub_u32 s12, {sWV}, 1
    s_cmp_ge_u32 s12, 2
    s_cbranch_scc1 L_up_nx
    v_lshlrev_b32 v22, 3, v21
    s_mul_i32 s13, s12, 1280
    s_mul_i32 s14, {sKC}, 320
    s_add_u32 s13, s13, s14
    buffer_load_dwordx2 v[194:195], v22, {S_X}, s13 offen
    L_up_nx:
    s_cmp_lg_u32 {sWV}, 3
    s_cbranch_scc1 L_up_n1
    v_mov_b32 v12, 0x3f803f80
    v_mov_b32 v13, 0x3f803f80
    v_lshlrev_b32 v4, 3, v21
    ds_write_b64 v4, v[12:13] offset:{L_HB+640}
    L_up_n1:
    s_cmp_lg_u32 {sWV}, 0
    s_cbranch_scc1 L_up_n0
    v_lshrrev_b32 v4, 2, v3
    v_lshlrev_b32 v4, 11, v4
    v_bfe_u32 v6, v3, 1, 1
    v_lshl_add_u32 v4, v6, 10, v4
    v_and_b32 v6, 1, v3
    v_lshl_add_u32 v4, v6, 7, v4
    buffer_load_dword v194, v4, {S_WS}, s94 offen sc1 nt
    L_up_n0:
    """)
    g.bar("vmcnt(0) lgkmcnt(0)")
    g.stamp(19)
    for st in range(5):
        for tt in range(2):
            I(f"ds_read_b64_tr_b16 v[{96+4*st+2*tt}:{97+4*st+2*tt}], v16 offset:{L_W1+4096*st+512*tt}")
    I(f"s_cmp_ge_u32 s12, 2\ns_cbranch_scc1 L_up_mm")
    I(f"""
    v_lshlrev_b32 v7, 4, v21
    s_mul_i32 s13, s12, 2560
    s_mul_i32 s14, {sKC}, 640
    s_add_u32 s13, s13, s14
    s_add_u32 s13, s13, {XD2}
    s_mul_i32 s14, s12, 320
    v_add_u32 v22, s14, v22
    """)
    if P["t_d2"]:
        I(f"ds_read_b32 v4, {VZ} offset:{L_CTRL}\ns_waitcnt lgkmcnt(0)")
        until(P["t_d2"], "v4")
    d2l = lambda b: [f"s_add_u32 s14, s13, {i*5120}\nbuffer_load_dwordx4 v[{b+4*i}:{b+3+4*i}], v7, {S_WS}, s14 offen sc1"
                     for i in range(8)]
    if P["pipe"] > 1:
        g.poll_pipe(d2l, 32, [32, 128, 160][:min(3, P["pipe"])], gap=P["gap"])
    else:
        g.poll(d2l(32), range(32, 64), delay=P["d_d2"], tmp="v4", backoff=P["bo_d2"])
    g.stamp(13)
    g.tree_add(32, 8, 4, 4)
    h_from_sum(194)
    I(f"ds_write_b64 v22, v[8:9] offset:{L_HB}")
    g.signal(C_H)
    I(f"""
    v_lshlrev_b32 v32, 16, v8
    v_and_b32 v33, 0xffff0000, v8
    v_lshlrev_b32 v34, 16, v9
    v_and_b32 v35, 0xffff0000, v9
    v_add_f32 v12, v32, v33
    v_add_f32 v13, v34, v35
    v_add_f32 v12, v12, v13
    v_mul_f32 v13, v32, v32
    v_fmac_f32 v13, v33, v33
    v_fmac_f32 v13, v34, v34
    v_fmac_f32 v13, v35, v35
    v_cmp_gt_u32 vcc, 40, v1
    v_mov_b32 v8, 0
    v_mov_b32 v9, 0
    v_cndmask_b32 v12, 0, v12, vcc
    v_cndmask_b32 v13, 0, v13, vcc
    s_nop 1
    v_permlane16_swap_b32 v12, v13
    v_add_f32 v12, v12, v13
    v_mov_b32 v13, v12
    s_nop 1
    v_permlane32_swap_b32 v12, v13
    v_add_f32 v12, v12, v13
    """)
    g.wave_allreduce(12, 13, rows=False)
    I(f"""
    v_and_b32 v4, 1, v2
    v_lshlrev_b32 v4, 2, v4
    s_lshl_b32 s14, s12, 3
    v_add_u32 v4, s14, v4
    ds_write_b32 v4, v12 offset:{L_STAT}
    """)
    g.signal(C_U)
    g.label("L_up_mm")
    g.waitc(C_H, 2)
    for st in range(5):
        I(f"ds_read_b128 v[{32+4*st}:{35+4*st}], v17 offset:{L_HB+64*st}")
    for st in range(5):
        I(f"s_waitcnt lgkmcnt({4-st})")
        I(f"v_mfma_f32_16x16x32_bf16 v[8:11], v[{32+4*st}:{35+4*st}], v[{96+4*st}:{99+4*st}], v[8:11]")
    g.waitc(C_U, 2)
    I(f"""
    ds_read_b32 v12, v18 offset:{L_STAT}
    s_waitcnt lgkmcnt(0)
    s_nop 1
    v_mov_b32 v11, v12
    s_cmp_eq_u32 s15, 1
    s_cbranch_scc1 L_u_fast
    buffer_store_dwordx4 v[8:11], v19, {S_WS}, s93 offen sc1
    s_branch L_u_done
    L_u_fast:
    buffer_store_dwordx4 v[8:11], v19, {S_WS}, s93 offen
    L_u_done:
    """)
    g.stamp(12)
    I(f"s_cmp_lg_u32 {sWV}, 0\ns_cbranch_scc1 L_fin")
    I(f"""
    v_mul_u32_u24 v16, 3456, v2
    v_lshl_add_u32 v16, v3, 1, v16
    v_and_b32 v4, 0x21, v1
    v_mov_b32 v6, {OOB}
    v_cmp_eq_u32 vcc, 0, v4
    s_lshl_b32 s13, {sFC}, 2
    s_add_u32 s13, s13, {sKC}
    v_cndmask_b32 v16, v6, v16, vcc
    s_lshl_b32 s13, s13, 5
    s_add_u32 s13, s13, {XE}
    """)
    g.poll([f"buffer_load_dwordx4 v[32:35], v20, {S_WS}, s94 offen sc1",
            f"buffer_load_dwordx4 v[36:39], v20, {S_WS}, s94 offen offset:1024 sc1"],
           range(32, 40), delay=P["d_u"], backoff=1)
    g.stamp(13)
    for k in range(7):
        I(f"v_mov_b32 v{40+k}, v{32+k}")
    for k in range(7):
        I(f"v_permlane16_swap_b32 v{32+k}, v{40+k}")
    for k in range(7):
        I(f"v_add_f32 v{32+k}, v{32+k}, v{40+k}")
    for k in range(7):
        I(f"v_mov_b32 v{40+k}, v{32+k}")
    for k in range(7):
        I(f"v_permlane32_swap_b32 v{32+k}, v{40+k}")
    for k in range(7):
        I(f"v_add_f32 v{32+k}, v{32+k}, v{40+k}")
    I(f"""
    v_mov_b32_dpp v40, v35 quad_perm:[0,0,0,0] row_mask:0xf bank_mask:0xf
    v_mov_b32_dpp v41, v35 quad_perm:[1,1,1,1] row_mask:0xf bank_mask:0xf
    v_mov_b32_dpp v42, v35 quad_perm:[2,2,2,2] row_mask:0xf bank_mask:0xf
    v_mov_b32_dpp v43, v35 quad_perm:[3,3,3,3] row_mask:0xf bank_mask:0xf
    v_mul_f32 v40, {f2u(1.0/640):#x}, v40
    v_mul_f32 v41, {f2u(1.0/640):#x}, v41
    v_mul_f32 v42, {f2u(1.0/640):#x}, v42
    v_mul_f32 v43, {f2u(1.0/640):#x}, v43
    v_fma_f32 v41, -v40, v40, v41
    v_fma_f32 v43, -v42, v42, v43
    v_max_f32 v41, 0, v41
    v_max_f32 v43, 0, v43
    v_add_f32 v41, {f2u(1e-5):#x}, v41
    v_add_f32 v43, {f2u(1e-5):#x}, v43
    v_rsq_f32 v41, v41
    v_rsq_f32 v43, v43
    v_fma_f32 v32, -v40, v34, v32
    v_fma_f32 v33, -v42, v34, v33
    v_fma_f32 v36, -v40, v38, v36
    v_fma_f32 v37, -v42, v38, v37
    v_mul_f32 v32, v32, v41
    v_mul_f32 v33, v33, v43
    v_mul_f32 v36, v36, v41
    v_mul_f32 v37, v37, v43
    v_cvt_pk_bf16_f32 v8, v32, v33
    v_cvt_pk_bf16_f32 v9, v36, v37
    v_lshlrev_b32 v32, 16, v8
    v_and_b32 v33, 0xffff0000, v8
    v_lshlrev_b32 v34, 16, v9
    v_and_b32 v35, 0xffff0000, v9
    v_mul_f32 v36, {f2u(-1.4426950408889634):#x}, v32
    v_mul_f32 v37, {f2u(-1.4426950408889634):#x}, v33
    v_exp_f32 v36, v36
    v_exp_f32 v37, v37
    s_nop 0
    v_add_f32 v36, 1.0, v36
    v_add_f32 v37, 1.0, v37
    v_rcp_f32 v36, v36
    v_rcp_f32 v37, v37
    s_nop 0
    v_mul_f32 v32, v32, v36
    v_mul_f32 v33, v33, v37
    v_cvt_pk_bf16_f32 v8, v32, v33
    v_lshlrev_b32 v32, 16, v8
    v_and_b32 v33, 0xffff0000, v8
    v_mul_f32 v32, v32, v34
    v_mul_f32 v33, v33, v35
    v_cmp_eq_u32 vcc, 1, v2
    s_nop 0
    v_mov_b32_dpp v34, v32 row_ror:15 row_mask:0xf bank_mask:0xf
    v_mov_b32_dpp v35, v33 row_ror:15 row_mask:0xf bank_mask:0xf
    v_cvt_pk_bf16_f32 v8, v32, v34
    v_cvt_pk_bf16_f32 v9, v33, v35
    v_cndmask_b32 v8, v8, v9, vcc
    buffer_store_dword v8, v16, {S_WS}, s13 offen sc1
    """)
    g.stamp(14)
    I("s_branch L_fin")
    g.label("L_down")
    I(f"""
    v_lshrrev_b32 v4, 2, v1
    v_mul_u32_u24 v4, 1280, v4
    v_and_b32 v6, 3, v1
    v_lshl_add_u32 v4, v6, 4, v4
    s_mul_i32 s12, {sWV}, {16*1280}
    s_lshl_b32 s13, {sFC}, 6
    s_add_u32 s12, s12, s13
    s_lshl_b32 s13, {sWV}, 10
    s_add_u32 s13, s13, {L_W2}
    """)
    for m in range(13):
        dma("v4", S_W2, NT, 8192, 128 * 1280)
    I(f"s_cmp_ge_u32 {sWV}, 4\ns_cbranch_scc1 L_dn_ld")
    dma("v4", S_W2, NT, 8192, 128 * 1280)
    g.label("L_dn_ld")
    I(f"""
    v_bfe_u32 v4, v1, 2, 2
    v_lshl_add_u32 v4, v2, 3, v4
    v_lshlrev_b32 v16, 6, v4
    v_lshl_add_u32 v16, v6, 3, v16
    s_lshl_b32 s12, {sWV}, 11
    s_add_u32 s12, s12, {L_W2}
    v_add_u32 v16, s12, v16
    v_add_u32 v17, 0x10000, v16
    v_and_b32 v18, 1, v3
    v_mul_u32_u24 v18, 3456, v18
    v_lshl_add_u32 v18, v2, 4, v18
    s_lshl_b32 s93, {sWV}, 6
    s_add_u32 s93, s93, {XE}
    s_cmp_lt_u32 {sWV}, 6
    s_cselect_b32 s94, {512*6}, 0
    s_add_u32 s94, s94, s93
    s_lshl_b32 s14, {sWV}, 8
    v_lshl_add_u32 v19, v1, 4, s14
    """)
    for r in range(8, 16):
        I(f"v_mov_b32 v{r}, 0")
    I(f"""
    s_cmp_lg_u32 {sWV}, 1
    s_cbranch_scc1 L_dn_nx
    v_lshrrev_b32 v6, 3, v3
    v_mul_u32_u24 v7, 2560, v6
    v_lshl_add_u32 v7, v31, 4, v7
    v_mul_u32_u24 v20, 1280, v6
    v_lshl_add_u32 v20, v31, 3, v20
    v_lshlrev_b32 v22, 3, v3
    s_lshl_b32 s12, {sFC}, 6
    buffer_load_dwordx2 v[194:195], v20, {S_X}, s12 offen
    L_dn_nx:
    """)
    g.bar("vmcnt(0) lgkmcnt(0)")
    g.stamp(19)
    for i in range(7):
        for nu in range(2):
            for tt in range(2):
                r = 96 + (i * 2 + nu) * 4 + 2 * tt
                off = 16384 * i + 256 * tt + 32 * nu
                va = "v16" if off < 65536 else "v17"
                I(f"ds_read_b64_tr_b16 v[{r}:{r+1}], {va} offset:{off & 65535}")
    I(f"s_cmp_lg_u32 {sWV}, 1\ns_cbranch_scc1 L_dn_e")
    I(f"s_lshl_b32 s13, {sFC}, 7\ns_add_u32 s13, s13, {XD2}")
    lds = [f"s_add_u32 s14, s13, {i*5120}\nbuffer_load_dwordx4 v[{32+4*i}:{35+4*i}], v7, {S_WS}, s14 offen sc1"
           for i in range(8)]
    g.poll(lds, range(32, 64), delay=P["d_d2"], tmp="v4", backoff=P["bo_d2"])
    g.stamp(13)
    g.tree_add(32, 8, 4, 4)
    h_from_sum(194)
    I(f"ds_write_b64 v22, v[8:9] offset:{L_HB}\nv_mov_b32 v8, 0\nv_mov_b32 v9, 0")
    g.signal(C_H)
    g.label("L_dn_e")
    g.waitc(C_H, 1)
    if P["t_e"]:
        I(f"ds_read_b32 v4, {VZ} offset:{L_CTRL}\ns_waitcnt lgkmcnt(0)")
        until(P["t_e"], "v4")
    el = lambda b: [f"buffer_load_dwordx4 v[{b+4*i}:{b+3+4*i}], v18, {S_WS}, s93 offen offset:{512*i} sc1" for i in range(6)] + \
                   [f"buffer_load_dwordx4 v[{b+24}:{b+27}], v18, {S_WS}, s94 offen sc1"]
    if P["pipe"] > 1:
        g.poll_pipe(el, 28, [32, 64, 160][:min(3, P["pipe"])], tmp="v6", gap=P["gap"])
    else:
        g.poll(el(32), range(32, 60), delay=P["d_e"], tmp="v6", backoff=P["bo_e"])
    g.stamp(14)
    for i in range(7):
        if i == 6:
            I(f"s_cmp_ge_u32 {sWV}, 6\ns_cbranch_scc1 L_dn6")
        for nu in range(2):
            r = 96 + (i * 2 + nu) * 4
            I(f"v_mfma_f32_16x16x32_bf16 v[{8+4*nu}:{11+4*nu}], v[{32+4*i}:{35+4*i}], v[{r}:{r+3}], v[{8+4*nu}:{11+4*nu}]")
    g.label("L_dn6")
    I(f"""
    s_mov_b64 exec, 0xffff
    s_nop 6
    v_mov_b32 v10, v12
    v_mov_b32 v11, v13
    ds_write_b128 v19, v[8:11] offset:{L_UR}
    s_mov_b64 exec, -1
    """)
    g.bar()
    I(f"s_cmp_lg_u32 {sWV}, 0\ns_cbranch_scc1 L_fin")
    I(f"""
    v_lshlrev_b32 v16, 4, v3
    v_lshl_add_u32 v16, v2, 2, v16
    v_and_b32 v4, 1, v2
    v_lshrrev_b32 v6, 1, v2
    v_lshlrev_b32 v7, 6, v4
    v_lshl_add_u32 v7, v6, 5, v7
    v_lshl_add_u32 v7, v3, 1, v7
    ds_read_u16 v191, v7 offset:{L_HB}
    """)
    for v in range(8):
        I(f"ds_read_b32 v{32+v}, v16 offset:{L_UR+256*v}")
    I(f"""
    v_mul_u32_u24 v17, 1280, v4
    v_lshl_add_u32 v17, v6, 5, v17
    v_lshl_add_u32 v17, v3, 1, v17
    v_and_b32 v5, 1, v1
    v_mov_b32 v6, {OOB}
    v_cmp_eq_u32 vcc, 0, v5
    s_lshl_b32 s12, {sFC}, 6
    s_waitcnt lgkmcnt(0)
    v_cndmask_b32 v17, v6, v17, vcc
    v_lshlrev_b32 v191, 16, v191
    """)
    g.tree_add(32, 8, 1, 1)
    I(f"""
    v_cvt_pk_bf16_f32 v8, v32, v32
    v_lshlrev_b32 v32, 16, v8
    v_add_f32 v32, v32, v191
    s_nop 1
    v_mov_b32_dpp v34, v32 row_ror:15 row_mask:0xf bank_mask:0xf
    v_cvt_pk_bf16_f32 v8, v32, v34
    buffer_store_dword v8, v17, {S_OUT}, s12 offen
    """)
    g.stamp(15)
    g.label("L_fin")
    if diag:
        I(f"""
        s_mul_i32 s96, s2, 10
        s_add_u32 s96, s96, {sWV}
        s_lshl_b32 s96, s96, 7
        s_add_u32 s96, s96, {TS}
        s_mov_b64 exec, 1
        """)
        for i in range(0, 28, 4):
            I(f"v_mov_b32 v4, s{64+i}\nv_mov_b32 v5, s{65+i}\nv_mov_b32 v6, s{66+i}\nv_mov_b32 v7, s{67+i}")
            I(f"buffer_store_dwordx4 v[4:7], {VZ}, {S_WS}, s96 offen offset:{4*i}\ns_nop 2")
    g.label("L_end")
    I("s_endpgm")

    tail = f"""
.section .rodata,"a"
.p2align 6
.amdhsa_kernel {KNAME}
  .amdhsa_next_free_vgpr {NVGPR}
  .amdhsa_next_free_sgpr 102
  .amdhsa_accum_offset {NVGPR}
  .amdhsa_group_segment_fixed_size 0
  .amdhsa_kernarg_size 104
  .amdhsa_user_sgpr_count 2
  .amdhsa_user_sgpr_kernarg_segment_ptr 1
  .amdhsa_system_sgpr_workgroup_id_x 1
.end_amdhsa_kernel
"""
    return "\n".join(hdr) + "\n" + "\n".join(g.L) + "\n" + tail


if __name__ == "__main__":
    diag = "--diag" in sys.argv
    out = [a for a in sys.argv[1:] if not a.startswith("--")]
    P = {}
    for a in sys.argv[1:]:
        if a.startswith("--P:"):
            k, v = a[4:].split("=")
            P[k] = int(v) if v.lstrip("-").isdigit() else v
    txt = build(diag=diag, P=P)
    if out:
        open(out[0], "w").write(txt)
    else:
        sys.stdout.write(txt)
```

```python
import sys
from genlib import *

KNAME = "sequential_preLN__compressed_kv_cla__glu_gated_swiglu__decode_kernel"

FLAGS = 0x000000
XH    = 0x008000
XB    = 0x010000
XC2M  = 0x020000
XD2   = 0x030000
XE    = 0x040000
XC1M  = 0x050000
XAF   = 0x080000
XAS   = 0x0C0000
XU    = 0x100000
XC2D  = 0x180000
XD1   = 0x200000
TS    = 0x380000
XC1D  = 0x400000
C1J   = 16640
WS_BYTES = 0x1000000

CPITCH = 1040
L_CTRL = 0
L_CNT = 64
L_STAT = 192
(C_NON, C_H, C_U, C_XA, C_AG, C_VER) = range(6)
L_XN  = 2304
L_XAL = 4864
L_DR  = 8960
L_CT  = 11008
L_WUV = 12288
L_WO  = 45056
L_WUK = 45056
L_MB  = 256
L_LB  = 1280
L_UR  = 256
L_HB  = 2304
L_CKV = 5120
L_QA  = L_CKV
L_TR  = L_CKV + 64 * CPITCH
L_W1  = L_CKV
L_W3  = L_CKV + 20480
L_W2  = L_CKV
L_PB  = L_CKV + 32 * CPITCH
L_WQ  = L_CKV + 128 * CPITCH
LDS_BYTES = 158720
PVA = 128
VZ, VO = "v192", "v193"
NVGPR = 200

DEFAULTS = dict(d_a=2, d_c1=1, d_c2=0, d_d1=2, d_d2=0, d_u=2, d_e=0, backoff=2, nt="nt", fast_tries=200,
                d_non=4, d_p2=10, bo_c2=4, bo_d2=4, bo_e=4, bo_b=4, W2=8, d_A=40, init_blocks=1, hint_kb=2, pf_rows=0, pre=0, mid=0, ahead=4, fl_kb=1, wb=0, cpf=0, pipe=1, gap=2, t_c2=0, t_d2=0, t_e=0)


def build(diag=False, P=None):
    PP = dict(DEFAULTS)
    if P:
        PP.update(P)
    P = PP
    g = Gen(diag, P, L_CNT, VZ, VO)
    I = g.I
    NT = P["nt"]
    names = ["X", "CKV", "WQ", "WUK", "WUV", "WO", "W1", "W3", "W2", "OUT", "DBG", "WS"]
    S_X, S_CKV, S_WQ, S_WUK, S_WUV, S_WO, S_W1, S_W3, S_W2, S_OUT, S_DBG, S_WS = [
        f"s[{16+4*i}:{19+4*i}]" for i in range(12)]
    ptr = {0: 64, 1: 66, 2: 68, 3: 70, 4: 72, 5: 74, 6: 78, 7: 80, 8: 82, 9: 84, 10: 86, 11: 88}
    sizes = [2560, 16777216, 5242880, 4194304, 4194304, 5242880, 2211840, 2211840, 2211840, 2560, 256, WS_BYTES]

    def srd(*which):
        for nm in which:
            i = names.index(nm)
            b = 16 + 4 * i
            I(f"s_mov_b64 s[{b}:{b+1}], s[{ptr[i]}:{ptr[i]+1}]\ns_mov_b32 s{b+2}, {sizes[i]}\ns_mov_b32 s{b+3}, 0x20000")

    def dma(voff, srd_, flag, dm0, dso):
        I(f"s_mov_b32 m0, s13")
        I(f"s_add_u32 s13, s13, {dm0}")
        I(f"buffer_load_dwordx4 {voff}, {srd_}, s12 offen {flag} lds")
        I(f"s_add_u32 s12, s12, {dso}")

    def zero_stamps():
        if diag:
            for i in range(0, 28):
                I(f"s_mov_b32 s{64+i}, 0")

    sWV, sX, sS, sM, sH, sSUB, sFC, sUP, sKC = "s3", "s4", "s5", "s6", "s7", "s8", "s9", "s10", "s11"
    hdr = [f"; @launch grid=(256,1,1) block=(512,1,1) lds={LDS_BYTES}",
           '.amdgcn_target "amdgcn-amd-amdhsa--gfx950"', ".text", f".globl {KNAME}", ".p2align 8",
           f".type {KNAME},@function", f"{KNAME}:"]

    I(f"""
    s_cmp_ge_u32 s2, 256
    s_cbranch_scc1 L_end
    s_load_dwordx16 s[64:79], s[0:1], 0
    s_load_dwordx8 s[80:87], s[0:1], 64
    s_load_dwordx2 s[88:89], s[0:1], 96
    s_memrealtime s[90:91]
    v_lshrrev_b32 v4, 6, v0
    v_and_b32 v1, 63, v0
    v_readfirstlane_b32 {sWV}, v4
    v_lshrrev_b32 v2, 4, v1
    v_and_b32 v3, 15, v1
    v_mov_b32 {VZ}, 0
    v_mov_b32 {VO}, 1
    v_lshlrev_b32 v4, 2, v3
    ds_write_b32 v4, {VZ} offset:{L_CNT}
    s_and_b32 {sX}, s2, 7
    s_lshr_b32 {sS}, s2, 3
    s_and_b32 {sM}, {sS}, 15
    v_lshlrev_b32 v5, 4, v1
    v_mov_b32 v6, {OOB}
    v_mov_b32 v8, -1
    v_mov_b32 v9, -1
    v_mov_b32 v10, -1
    v_mov_b32 v11, -1
    v_cmp_eq_u32 vcc, 0, v1
    s_and_b32 s12, {sS}, 3
    s_lshl_b32 s12, s12, 3
    v_cndmask_b32 v7, v6, 0, vcc
    s_add_u32 {sH}, {sX}, s12
    s_lshr_b32 {sSUB}, {sM}, 2
    s_lshr_b32 s12, {sM}, 2
    s_lshl_b32 s12, s12, 3
    s_add_u32 s12, s12, {sX}
    s_cmp_lt_u32 s12, 27
    s_cselect_b32 {sUP}, 1, 0
    s_and_b32 {sKC}, {sM}, 3
    s_sub_u32 s14, {sX}, 3
    s_lshl_b32 s14, s14, 2
    s_add_u32 s14, s14, {sKC}
    s_cmp_eq_u32 {sUP}, 1
    s_cselect_b32 {sFC}, s12, s14
    """)

    def nonce_and_flag(first_wait):
        lp, dn, ent = g.newlab("Lp"), g.newlab("Ld"), g.newlab("Le")
        I(f"""
        s_mov_b32 s92, 0
        s_lshl_b32 s14, {sX}, 5
        s_add_u32 s14, s14, {sS}
        s_lshl_b32 s14, s14, 4
        s_add_u32 s14, s14, {FLAGS}
        s_getreg_b32 s15, hwreg(HW_REG_XCC_ID)
        v_mov_b32 v14, s15
        v_mov_b32 v15, 0
        s_waitcnt {first_wait}
        s_branch {ent}
        """)
        g.label(lp)
        I(f"""
        buffer_load_dwordx2 v[12:13], {VZ}, {S_DBG}, 0 offen sc1
        s_waitcnt vmcnt(0)
        """)
        g.label(ent)
        I(f"""
        v_cmp_ne_u32 vcc, 0, v12
        s_add_u32 s92, s92, 1
        s_cmp_eq_u64 vcc, exec
        s_cbranch_scc1 {dn}
        s_sleep {P['d_non']}
        s_cmp_lt_u32 s92, {POLL_LIMIT}
        s_cbranch_scc1 {lp}
        """)
        g.label(dn)
        I(f"""
        ds_write_b64 {VZ}, v[12:13] offset:{L_CTRL}
        buffer_store_dwordx4 v[12:15], v7, {S_WS}, s14 offen sc1
        """)
        g.signal(C_NON)
        g.stamp(16)

    def verify_flags(r0, kindA, preissued, first_wait="vmcnt(0)", onlyA=False, uniform=True):
        lp, dn, ent = g.newlab("Lp"), g.newlab("Ld"), g.newlab("Le")
        I("s_mov_b32 s92, 0")
        if preissued:
            I(f"s_waitcnt {first_wait}\ns_branch {ent}")
        g.label(lp)
        for i in range(4):
            I(f"buffer_load_dwordx4 v[{r0+4*i}:{r0+3+4*i}], v5, {S_WS}, 0 offen offset:{FLAGS+1024*i} sc1")
        I("s_waitcnt vmcnt(0)")
        if preissued:
            g.label(ent)
        I("v_mov_b32 v8, 0")
        for i in range(4):
            I(f"v_xor_b32 v9, v{r0+4*i}, v14\nv_xor_b32 v10, v{r0+1+4*i}, v15\nv_or3_b32 v8, v8, v9, v10")
        I("v_cmp_eq_u32 vcc, 0, v8\ns_add_u32 s92, s92, 1")
        if onlyA:
            I("s_or_b32 vcc_lo, vcc_lo, 0xffff\ns_or_b32 vcc_hi, vcc_hi, 0xffff")
        I(f"""
        s_cmp_eq_u64 vcc, exec
        s_cbranch_scc1 {dn}
        s_sleep 4
        s_cmp_lt_u32 s92, {POLL_LIMIT}
        s_cbranch_scc1 {lp}
        """)
        g.label(dn)
        if not uniform:
            g.stamp(17)
            return
        I(f"""
        s_lshr_b32 s14, {sX}, 1
        s_cmp_eq_u32 s14, 1
        v_mov_b32 v8, v{r0+2}
        s_cbranch_scc0 {dn}a
        v_mov_b32 v8, v{r0+6}
        {dn}a:
        s_cmp_eq_u32 s14, 2
        s_cbranch_scc0 {dn}b
        v_mov_b32 v8, v{r0+10}
        {dn}b:
        s_cmp_eq_u32 s14, 3
        s_cbranch_scc0 {dn}c
        v_mov_b32 v8, v{r0+14}
        {dn}c:
        s_getreg_b32 s14, hwreg(HW_REG_XCC_ID)
        v_xor_b32 v8, s14, v8
        s_and_b32 s14, {sX}, 1
        s_lshl_b32 s14, s14, 1
        s_add_u32 s14, s14, {1 if kindA else 0}
        v_cmp_eq_u32 vcc, s14, v2
        s_nop 1
        v_cndmask_b32 v8, 0, v8, vcc
        v_cmp_eq_u32 vcc, 0, v8
        s_cmp_eq_u64 vcc, exec
        s_cselect_b32 s14, 1, 0
        v_mov_b32 v8, s14
        ds_write_b32 {VZ}, v8 offset:{L_CTRL+8}
        """)
        g.stamp(17)

    def until(T, nreg):
        if not T:
            return
        lp = g.newlab("Lt")
        I(f"v_readfirstlane_b32 s100, {nreg}")
        g.label(lp)
        I(f"""
        s_memrealtime s[96:97]
        s_waitcnt lgkmcnt(0)
        s_sub_u32 s96, s96, s100
        s_cmp_lt_u32 s96, {T}
        s_cbranch_scc1 {lp}
        """)

    def h_from_sum(xr):
        I(f"""
        v_cvt_pk_bf16_f32 v8, v32, v33
        v_cvt_pk_bf16_f32 v9, v34, v35
        v_lshlrev_b32 v36, 16, v{xr}
        v_and_b32 v37, 0xffff0000, v{xr}
        v_lshlrev_b32 v38, 16, v{xr+1}
        v_and_b32 v39, 0xffff0000, v{xr+1}
        v_lshlrev_b32 v32, 16, v8
        v_and_b32 v33, 0xffff0000, v8
        v_lshlrev_b32 v34, 16, v9
        v_and_b32 v35, 0xffff0000, v9
        v_add_f32 v32, v32, v36
        v_add_f32 v33, v33, v37
        v_add_f32 v34, v34, v38
        v_add_f32 v35, v35, v39
        v_cvt_pk_bf16_f32 v8, v32, v33
        v_cvt_pk_bf16_f32 v9, v34, v35
        """)

    I(f"""
    s_waitcnt lgkmcnt(0)
    s_cmp_ge_u32 {sWV}, 4
    s_cbranch_scc1 L_e_hi
    s_or_b32 s14, s2, {sWV}
    s_cmp_lg_u32 s14, 0
    s_cbranch_scc1 L_e_dma
    """)
    srd("DBG")
    I(f"""
    s_or_b32 s90, s90, 1
    v_mov_b32 v14, s90
    v_mov_b32 v15, s91
    buffer_store_dwordx2 v[14:15], v7, {S_DBG}, 0 offen sc1
    s_branch L_e_dma
    L_e_hi:
    s_cmp_ge_u32 {sWV}, 6
    s_cbranch_scc1 L_e_67
    s_sub_u32 s15, {sWV}, 4
    s_mul_i32 s15, s15, 1280
    v_mul_u32_u24 v100, 20, v1
    """)
    srd("X")
    I(f"""
    buffer_load_dwordx4 v[8:11], v100, {S_X}, s15 offen
    buffer_load_dword v12, v100, {S_X}, s15 offen offset:16
    s_branch L_e_dma
    L_e_67:
    """)
    srd("DBG", "WS")
    I(f"""
    s_cmp_ge_u32 {sS}, 16
    s_cbranch_scc1 L_e_A67
    s_cmp_eq_u32 {sWV}, 6
    s_cbranch_scc1 L_e_B6
    """)
    I(f"""
    s_lshl_b32 s13, {sX}, 4
    s_add_u32 s13, s13, {sM}
    s_mul_i32 s13, s13, 5120
    s_add_u32 s13, s13, {XD1}
    """)
    for i in range(4):
        I(f"buffer_store_dwordx4 v[8:11], v5, {S_WS}, s13 offen offset:{1024*i} sc1")
    I(f"""
    s_add_u32 s13, s13, 4096
    buffer_store_dwordx4 v[8:11], v5, {S_WS}, s13 offen sc1
    v_mul_u32_u24 v4, 2560, v2
    v_lshl_add_u32 v4, v3, 4, v4
    s_cmp_lt_u32 {sM}, 10
    s_cselect_b32 s15, 32, 0
    v_cmp_gt_u32 vcc, s15, v1
    s_mul_i32 s13, {sX}, 5120
    s_lshl_b32 s14, {sM}, 8
    v_cndmask_b32 v4, v6, v4, vcc
    s_add_u32 s13, s13, s14
    s_add_u32 s13, s13, {XD2}
    buffer_store_dwordx4 v[8:11], v4, {S_WS}, s13 offen sc1
    s_branch L_e_dma
    L_e_B6:
    s_lshl_b32 s12, {sH}, 13
    s_add_u32 s12, s12, {XAF}
    v_lshlrev_b32 v4, 7, v1
    buffer_load_dword v14, v4, {S_WS}, s12 offen nt
    v_lshrrev_b32 v4, 3, v1
    v_lshlrev_b32 v4, 8, v4
    v_and_b32 v12, 7, v1
    v_lshl_add_u32 v4, v12, 4, v4
    s_add_u32 s13, s12, 4096
    buffer_store_dwordx4 v[8:11], v4, {S_WS}, s12 offen
    buffer_store_dwordx4 v[8:11], v4, {S_WS}, s12 offen offset:2048
    buffer_store_dwordx4 v[8:11], v4, {S_WS}, s13 offen
    buffer_store_dwordx4 v[8:11], v4, {S_WS}, s13 offen offset:2048
    """)
    I(f"""
    s_branch L_e_dma
    L_e_A67:
    s_cmp_eq_u32 {sWV}, 7
    s_cbranch_scc1 L_e_A7
    """)
    if P["cpf"]:
        I(f"""
        s_cmp_ge_u32 {sM}, 4
        s_cbranch_scc1 L_e_dma
        s_getpc_b64 s[12:13]
        L_pc:
        s_sub_u32 s12, s12, L_pc-{KNAME}
        s_subb_u32 s13, s13, 0
        v_lshlrev_b32 v4, 7, v1
        global_load_dword v194, v4, s[12:13]
        v_add_u32 v4, 8192, v4
        global_load_dword v194, v4, s[12:13]
        v_add_u32 v4, 8192, v4
        v_min_u32 v4, L_end-{KNAME}, v4
        global_load_dword v194, v4, s[12:13]
        """)
    I("s_branch L_e_dma\nL_e_A7:")
    I(f"""
    v_lshlrev_b32 v4, 7, v1
    v_cmp_gt_u32 vcc, 32, v1
    s_lshl_b32 s14, {sX}, 12
    s_lshl_b32 s15, {sM}, 3
    v_cndmask_b32 v4, v6, v4, vcc
    v_cndmask_b32 v12, v6, v5, vcc
    s_add_u32 s14, s14, s15
    s_add_u32 s14, s14, {XC1M}
    buffer_store_dwordx2 v[8:9], v4, {S_WS}, s14 offen sc1
    s_lshl_b32 s14, {sX}, 4
    s_add_u32 s14, s14, {sM}
    s_lshl_b32 s14, s14, 9
    s_add_u32 s14, s14, {XB}
    buffer_store_dwordx4 v[8:11], v12, {S_WS}, s14 offen sc1
    s_lshl_b32 s14, {sM}, 4
    s_add_u32 s14, s14, {sX}
    s_lshl_b32 s15, s14, 10
    s_add_u32 s15, s15, {XC2D}
    buffer_store_dwordx4 v[8:11], v5, {S_WS}, s15 offen sc1
    s_add_u32 s15, s15, 8192
    buffer_store_dwordx4 v[8:11], v5, {S_WS}, s15 offen sc1
    v_lshlrev_b32 v4, 6, v1
    v_cmp_gt_u32 vcc, 2, v1
    s_lshl_b32 s15, s14, 3
    s_add_u32 s15, s15, {XC2M}
    v_cndmask_b32 v4, v6, v4, vcc
    buffer_store_dwordx2 v[8:9], v4, {S_WS}, s15 offen sc1
    s_lshl_b32 s14, {sX}, 4
    s_add_u32 s14, s14, {sM}
    s_lshl_b32 s14, s14, 11
    s_add_u32 s14, s14, {XU}
    buffer_store_dwordx4 v[8:11], v5, {S_WS}, s14 offen sc1
    buffer_store_dwordx4 v[8:11], v5, {S_WS}, s14 offen offset:1024 sc1
    v_lshrrev_b32 v4, 1, v1
    v_mul_u32_u24 v4, 3456, v4
    v_and_b32 v12, 1, v1
    v_lshl_add_u32 v4, v12, 4, v4
    s_lshl_b32 s15, {sUP}, 2
    v_cmp_gt_u32 vcc, s15, v1
    s_lshl_b32 s14, {sFC}, 2
    s_add_u32 s14, s14, {sKC}
    v_cndmask_b32 v4, v6, v4, vcc
    s_lshl_b32 s14, s14, 5
    s_add_u32 s14, s14, {XE}
    buffer_store_dwordx4 v[8:11], v4, {S_WS}, s14 offen sc1
    buffer_load_dwordx2 v[12:13], {VZ}, {S_DBG}, 0 offen sc1
    """)
    g.label("L_e_dma")
    I(f"""
    s_and_b32 s12, {sWV}, 1
    s_lshl_b32 s12, s12, 2
    v_add_u32 v4, s12, v2
    v_lshlrev_b32 v4, 1, v4
    v_xor_b32 v4, v4, v3
    v_lshlrev_b32 v4, 4, v4
    v_lshl_add_u32 v4, v2, 13, v4
    s_lshr_b32 s93, {sS}, 2
    s_mul_i32 s12, s93, 80
    s_lshl_b32 s13, {sWV}, 2
    s_add_u32 s12, s12, s13
    s_lshl_b32 s12, s12, 13
    s_lshl_b32 s13, {sH}, 8
    s_add_u32 s12, s12, s13
    s_lshl_b32 s13, {sWV}, 10
    s_add_u32 s13, s13, {L_WQ}
    """)
    srd("WQ")
    I(f"s_cmp_ge_u32 {sWV}, 4\ns_cbranch_scc1 L_e_d2")
    dma("v4", S_WQ, NT, 8192, 32 * 8192)
    g.label("L_e_d2")
    for i in range(2):
        dma("v4", S_WQ, NT, 8192, 32 * 8192)
    def ckv_block():
        for i in range(4):
            dma("v5", S_CKV, NT, CPITCH if i < 3 else 29 * CPITCH, 1024 if i < 3 else 29 * 1024)
    I(f"s_cmp_lt_u32 {sS}, 16\ns_cbranch_scc1 L_e_B")
    srd("CKV")
    I(f"""
    s_lshl_b32 s12, {sX}, 11
    s_lshl_b32 s13, {sM}, 7
    s_add_u32 s12, s12, s13
    s_lshl_b32 s13, {sWV}, 2
    s_add_u32 s12, s12, s13
    s_lshl_b32 s12, s12, 10
    s_mul_i32 s13, {sWV}, {4*CPITCH}
    s_add_u32 s13, s13, {L_CKV}
    """)
    for i in range(P["pre"]):
        ckv_block()
    I("s_mov_b32 s100, s12\ns_mov_b32 s101, s13\ns_branch L_e_srd")
    g.label("L_e_B")
    srd("WUK")
    I(f"""
    v_xor_b32 v4, v3, v2
    v_lshlrev_b32 v4, 4, v4
    v_lshl_add_u32 v4, v2, 13, v4
    s_lshl_b32 s12, {sSUB}, 7
    s_lshl_b32 s13, {sWV}, 4
    s_add_u32 s12, s12, s13
    s_lshl_b32 s12, s12, 13
    s_lshl_b32 s13, {sH}, 8
    s_add_u32 s12, s12, s13
    s_lshl_b32 s13, {sWV}, 12
    s_add_u32 s13, s13, {L_WUK}
    """)
    for i in range(4):
        dma("v4", S_WUK, NT, 1024, 4 * 8192)
        if i < 3:
            I(f"v_xor_b32 v4, {64 if i != 1 else 192}, v4")
    g.label("L_e_srd")
    srd("X", "CKV", "WUV", "WO", "W1", "W3", "W2", "OUT", "DBG", "WS")
    zero_stamps()
    g.stamp(0)
    I("s_barrier")
    I(f"""
    s_cmp_lg_u32 {sWV}, 7
    s_cbranch_scc1 L_s_n7
    s_cmp_lt_u32 {sS}, 16
    s_cbranch_scc1 L_stA
    """)
    nonce_and_flag(f"vmcnt({2+4*P['pre']})")
    I("s_branch L_stA")
    g.label("L_s_n7")
    I(f"s_and_b32 s12, {sWV}, 6\ns_cmp_lg_u32 s12, 4\ns_cbranch_scc1 L_stA")
    I(f"""
    s_cmp_ge_u32 {sS}, 16
    s_cbranch_scc1 L_ln_A
    s_waitcnt vmcnt(6)
    s_branch L_ln
    L_ln_A:
    s_waitcnt vmcnt({2+4*P['pre']})
    L_ln:
    """)
    for i in range(5):
        I(f"v_lshlrev_b32 v{32+2*i}, 16, v{8+i}\nv_and_b32 v{33+2*i}, 0xffff0000, v{8+i}")
    I("v_add_f32 v5, v32, v33\nv_add_f32 v6, v34, v35")
    for i in range(2, 5):
        I(f"v_add_f32 v5, v5, v{32+2*i}\nv_add_f32 v6, v6, v{33+2*i}")
    I("v_add_f32 v5, v5, v6")
    g.wave_allreduce(5, 6)
    I(f"v_mul_f32 v5, {f2u(1.0/640):#x}, v5")
    for i in range(10):
        I(f"v_sub_f32 v{32+i}, v{32+i}, v5")
    I("v_mul_f32 v5, v32, v32\nv_mul_f32 v6, v33, v33")
    for i in range(1, 5):
        I(f"v_fmac_f32 v5, v{32+2*i}, v{32+2*i}\nv_fmac_f32 v6, v{33+2*i}, v{33+2*i}")
    I("v_add_f32 v5, v5, v6")
    g.wave_allreduce(5, 6)
    I(f"""
    v_mov_b32 v6, {f2u(1e-5):#x}
    s_mov_b32 s13, {f2u(1.0/640):#x}
    v_fma_f32 v5, v5, s13, v6
    v_rsq_f32 v5, v5
    v_add_u32 v4, s15, v100
    """)
    for i in range(10):
        I(f"v_mul_f32 v{32+i}, v{32+i}, v5")
    for i in range(5):
        I(f"v_cvt_pk_bf16_f32 v{8+i}, v{32+2*i}, v{33+2*i}")
    for i in range(5):
        I(f"ds_write_b32 v4, v{8+i} offset:{L_XN+4*i}")
    g.stamp(16)
    g.label("L_stA")
    if P["mid"]:
        I(f"s_cmp_lt_u32 {sS}, 16\ns_cbranch_scc1 L_stA2")
        g.waitc(C_NON, 1)
        I("s_mov_b32 s12, s100\ns_mov_b32 s13, s101\nv_lshlrev_b32 v5, 4, v1")
        for i in range(P["mid"]):
            ckv_block()
        I("s_mov_b32 s100, s12\ns_mov_b32 s101, s13")
        g.label("L_stA2")
    I(f"""
    v_lshrrev_b32 v4, 2, v1
    v_and_b32 v5, 7, v4
    v_lshlrev_b32 v5, 1, v5
    v_bfe_u32 v6, v1, 1, 1
    s_lshl_b32 s12, {sWV}, 1
    v_add_u32 v6, s12, v6
    v_xor_b32 v6, v6, v5
    v_lshlrev_b32 v6, 4, v6
    v_lshl_add_u32 v6, v4, 8, v6
    v_and_b32 v5, 1, v1
    v_lshl_add_u32 v6, v5, 3, v6
    v_add_u32 v6, {L_WQ}, v6
    v_and_b32 v5, 1, v3
    v_mul_u32_u24 v5, 1280, v5
    v_lshl_add_u32 v5, v2, 3, v5
    s_lshr_b32 s93, {sS}, 2
    s_mul_i32 s12, s93, 160
    v_add_u32 v5, s12, v5
    v_and_b32 v198, 1, v2
    v_lshlrev_b32 v198, 9, v198
    v_lshrrev_b32 v4, 1, v2
    v_lshl_add_u32 v198, v4, 7, v198
    v_lshl_add_u32 v198, v3, 3, v198
    v_mov_b32 v4, {OOB >> 1}
    v_cmp_gt_u32 vcc, 2, v3
    s_lshl_b32 s12, {sH}, 12
    s_lshl_b32 s13, s93, 4
    v_cndmask_b32 v198, v4, v198, vcc
    s_add_u32 s12, s12, s13
    s_lshr_b32 s13, {sWV}, 1
    s_lshl_b32 s13, s13, 10
    s_add_u32 s12, s12, s13
    s_and_b32 s13, {sWV}, 1
    s_lshl_b32 s13, s13, 8
    s_add_u32 s12, s12, s13
    s_lshl_b32 s99, s12, 1
    s_add_u32 s98, s99, {XAF}
    s_add_u32 s99, s99, {XAS}
    v_lshlrev_b32 v199, 1, v198
    v_mov_b32 v8, 0
    v_mov_b32 v9, 0
    v_mov_b32 v10, 0
    v_mov_b32 v11, 0
    s_cmp_lt_u32 {sS}, 16
    s_cbranch_scc1 L_wB
    s_cmp_eq_u32 {sWV}, 7
    s_cbranch_scc1 L_wA7
    s_waitcnt vmcnt({4*P['pre']+4*P['mid']})
    L_wA7:
    s_waitcnt vmcnt({4*P['pre']+4*P['mid']+1})
    s_branch L_wE
    L_wB:
    s_waitcnt vmcnt(4)
    L_wE:
    """)
    g.bar()
    g.stamp(1)
    I(f"ds_read_b64 v[14:15], {VZ} offset:{L_CTRL}")
    for st in range(5):
        I(f"ds_read_b64_tr_b16 v[{32+2*st}:{33+2*st}], v6 offset:{4096*st}")
        I(f"ds_read_b64 v[{44+2*st}:{45+2*st}], v5 offset:{L_XN+32*st}")
    for st in range(5):
        I(f"s_waitcnt lgkmcnt({8-2*st})")
        I(f"v_mfma_f32_16x16x16_bf16 v[8:11], v[{32+2*st}:{33+2*st}], v[{44+2*st}:{45+2*st}], v[8:11]")
    I(f"""
    v_lshlrev_b32 v5, 4, v1
    s_mov_b32 s92, 0
    s_nop 5
    v_cvt_pk_bf16_f32 v12, v8, v9
    v_cvt_pk_bf16_f32 v13, v10, v11
    buffer_store_dwordx4 v[12:15], v199, {S_WS}, s98 offen
    v_mov_b32 v196, v12
    v_mov_b32 v197, v13
    """)
    g.stamp(2)
    I(f"s_cmp_ge_u32 {sS}, 16\ns_cbranch_scc1 L_Awg")
    FT = P['fast_tries']
    I(f"""
    s_lshl_b32 s12, {sH}, 12
    s_lshl_b32 s13, {sWV}, 9
    s_add_u32 s12, s12, s13
    s_lshl_b32 s95, s12, 1
    s_add_u32 s12, s95, {XAF}
    s_add_u32 s95, s95, {XAS}
    v_lshlrev_b32 v102, 3, v1
    v_add_u32 v96, s13, v102
    v_lshlrev_b32 v99, 15, v3
    v_lshl_add_u32 v99, v2, 3, v99
    v_mov_b32 v4, {OOB}
    v_cmp_gt_u32 vcc, 2, v3
    s_lshl_b32 s14, {sH}, 10
    s_lshl_b32 s15, {sSUB}, 8
    v_cndmask_b32 v99, v4, v99, vcc
    s_add_u32 s14, s14, s15
    s_lshl_b32 s15, {sWV}, 5
    s_add_u32 s14, s14, s15
    s_add_u32 s14, s14, {XB}
    v_xor_b32 v98, v3, v2
    v_lshlrev_b32 v98, 4, v98
    v_lshl_add_u32 v98, v3, 8, v98
    s_lshl_b32 s15, {sWV}, 12
    s_add_u32 s15, s15, {L_WUK}
    v_add_u32 v98, s15, v98
    s_mov_b32 s15, 0
    v_lshl_add_u32 v103, v3, 4, s13
    v_mov_b32 v8, 0
    v_mov_b32 v9, 0
    v_mov_b32 v10, 0
    v_mov_b32 v11, 0
    L_xa_loop:
    s_cmp_eq_u32 s15, 1
    s_cbranch_scc1 L_xa_chk
    buffer_load_dwordx2 v[14:15], {VZ}, {S_DBG}, 0 offen sc1
    buffer_load_dwordx2 v[36:37], v103, {S_WS}, 0 offen offset:{FLAGS+256} sc1
    buffer_load_dwordx4 v[32:35], v5, {S_WS}, s12 offen sc1
    s_waitcnt vmcnt(0)
    s_cmp_lg_u32 s92, 0
    s_cbranch_scc1 L_xa_n1
    ds_read_b128 v[16:19], v98
    v_xor_b32 v98, 64, v98
    ds_read_b128 v[20:23], v98
    v_xor_b32 v98, 192, v98
    ds_read_b128 v[24:27], v98
    v_xor_b32 v98, 64, v98
    ds_read_b128 v[28:31], v98
    L_xa_n1:
    v_cmp_ne_u32 vcc, 0, v14
    v_cmp_eq_u64 s[100:101], v[36:37], v[14:15]
    v_max_u32 v4, v32, v33
    s_and_b64 vcc, vcc, s[100:101]
    s_cmp_eq_u64 vcc, exec
    s_cbranch_scc0 L_xa_next
    v_cmp_ne_u32 vcc, -1, v4
    v_cmp_eq_u64 s[100:101], v[34:35], v[14:15]
    s_and_b32 vcc_lo, vcc_lo, 0x00ff00ff
    s_and_b32 vcc_hi, vcc_hi, 0x00ff00ff
    s_and_b32 s100, s100, 0xff00ff00
    s_and_b32 s101, s101, 0xff00ff00
    s_or_b64 vcc, s[100:101], vcc
    s_cmp_eq_u64 vcc, exec
    s_cbranch_scc1 L_xa_got
    s_cmp_le_u32 s92, {FT}
    s_cbranch_scc1 L_xa_next
    buffer_load_dwordx4 v[32:35], v5, {S_WS}, s95 offen sc1
    s_waitcnt vmcnt(0)
    v_cmp_eq_u64 vcc, v[34:35], v[14:15]
    s_cmp_eq_u64 vcc, exec
    s_cbranch_scc0 L_xa_next
    L_xa_got:
    ds_write_b64 v96, v[32:33] offset:{L_XAL}
    s_mov_b32 s15, 1
    """)
    g.signal(C_XA)
    I(f"""
    L_xa_chk:
    ds_read_b32 v4, {VZ} offset:{L_CNT+4*C_XA}
    s_waitcnt lgkmcnt(0)
    v_cmp_gt_u32 vcc, 8, v4
    s_cbranch_vccz L_xa_done
    L_xa_next:
    s_cmp_lg_u32 s92, {FT}
    s_cbranch_scc1 L_xa_nf
    s_mov_b32 s93, 0
    L_xa_non:
    buffer_load_dwordx2 v[14:15], {VZ}, {S_DBG}, 0 offen sc1
    s_waitcnt vmcnt(0)
    v_cmp_ne_u32 vcc, 0, v14
    s_add_u32 s93, s93, 1
    s_cmp_eq_u64 vcc, exec
    s_cbranch_scc1 L_xa_non_d
    s_sleep 4
    s_cmp_lt_u32 s93, {POLL_LIMIT}
    s_cbranch_scc1 L_xa_non
    L_xa_non_d:
    v_mov_b32 v12, v196
    v_mov_b32 v13, v197
    buffer_store_dwordx4 v[12:15], v199, {S_WS}, s99 offen sc1
    L_xa_nf:
    s_and_b32 s93, s92, 3
    s_cmp_lg_u32 s93, 3
    s_cbranch_scc1 L_xa_nr
    buffer_store_dwordx2 v[196:197], v199, {S_WS}, s98 offen
    L_xa_nr:
    s_add_u32 s92, s92, 1
    s_cmp_lt_u32 s92, {POLL_LIMIT}
    s_cbranch_scc1 L_xa_loop
    L_xa_done:
    """)
    g.stamp(3)
    for k in range(8):
        I(f"ds_read_b64 v[{32+2*k}:{33+2*k}], v102 offset:{L_XAL+512*k}")
    for k in range(8):
        I(f"s_waitcnt lgkmcnt({7-k})")
        I(f"v_mfma_f32_16x16x16_bf16 v[8:11], v[{16+2*k}:{17+2*k}], v[{32+2*k}:{33+2*k}], v[8:11]")
    SC = (128 ** -0.5) * 1.4426950408889634
    I("s_nop 7")
    for r in (8, 4, 2):
        for k in range(4):
            I(f"v_add_f32_dpp v{8+k}, v{8+k}, v{8+k} row_ror:{r} row_mask:0xf bank_mask:0xf")
    for k in range(4):
        I(f"v_mul_f32 v{8+k}, {f2u(SC):#x}, v{8+k}")
    I(f"""
    v_cvt_pk_bf16_f32 v104, v8, v9
    v_cvt_pk_bf16_f32 v105, v10, v11
    buffer_store_dwordx2 v[104:105], v99, {S_WS}, s14 offen sc1
    v_mov_b32 v12, v196
    v_mov_b32 v13, v197
    v_mov_b32 v108, v14
    v_mov_b32 v195, v14
    v_mov_b32 v109, v15
    """)
    g.stamp(4)
    I(f"""
    s_barrier
    buffer_store_dwordx4 v[12:15], v199, {S_WS}, s99 offen sc1
    s_cmp_lg_u32 {sWV}, 7
    s_cbranch_scc1 L_B_pr
    v_mov_b32 v4, {OOB}
    v_cmp_eq_u32 vcc, 0, v1
    s_lshl_b32 s14, {sX}, 5
    s_add_u32 s14, s14, {sS}
    v_cndmask_b32 v7, v4, 0, vcc
    s_lshl_b32 s14, s14, 4
    s_add_u32 s14, s14, {FLAGS}
    s_getreg_b32 s15, hwreg(HW_REG_XCC_ID)
    v_mov_b32 v110, s15
    v_mov_b32 v111, 0
    buffer_store_dwordx4 v[108:111], v7, {S_WS}, s14 offen sc1
    L_B_pr:
    """)
    if P["pf_rows"]:
        n = P["pf_rows"] // 64
        I(f"""
        s_lshl_b32 s12, {sX}, 11
        s_lshl_b32 s13, {sM}, 7
        s_add_u32 s12, s12, s13
        s_add_u32 s12, s12, {128 - P["pf_rows"]}
        s_mul_i32 s13, {sWV}, {8*n}
        s_add_u32 s12, s12, s13
        s_lshl_b32 s12, s12, 10
        v_lshlrev_b32 v4, 7, v1
        """)
        for i in range(n):
            I(f"buffer_load_dword v{194+i}, v4, {S_CKV}, s12 offen nt\ns_add_u32 s12, s12, 8192")
    I(f"""
    s_lshl_b32 s12, {sX}, 4
    s_add_u32 s12, s12, {sM}
    s_lshl_b32 s12, s12, 7
    s_add_u32 s12, s12, {XH}
    s_mov_b32 s92, 0
    s_cmp_lg_u32 {sWV}, 0
    s_cbranch_scc1 L_B_hd
    L_B_hp:
    buffer_load_dwordx2 v[12:13], {VZ}, {S_WS}, s12 offen sc1
    s_waitcnt vmcnt(0)
    v_cmp_eq_u64 vcc, v[12:13], v[108:109]
    s_add_u32 s92, s92, 1
    s_cbranch_vccnz L_B_hd
    s_sleep 4
    s_cmp_lt_u32 s92, 200
    s_cbranch_scc1 L_B_hp
    L_B_hd:
    s_barrier
    """)
    g.stamp(26)
    g.label("L_B_p2")
    I(f"""
    s_cmp_ge_u32 {sWV}, 4
    s_cbranch_scc1 L_B_np
    s_lshl_b32 s12, {sX}, 5
    s_lshl_b32 s13, {sM}, 1
    s_add_u32 s12, s12, s13
    s_lshr_b32 s13, {sWV}, 1
    s_add_u32 s12, s12, s13
    s_mul_i32 s12, s12, {C1J}
    s_and_b32 s13, {sWV}, 1
    s_lshl_b32 s13, s13, 13
    s_add_u32 s12, s12, s13
    s_add_u32 s12, s12, {XC1D}
    v_lshlrev_b32 v4, 7, v1
    buffer_load_dword v194, v4, {S_WS}, s12 offen nt
    L_B_np:
    v_lshrrev_b32 v4, 2, v1
    v_lshlrev_b32 v4, 13, v4
    v_and_b32 v6, 3, v1
    v_lshl_add_u32 v4, v6, 4, v4
    s_lshl_b32 s12, {sWV}, 17
    s_lshl_b32 s13, {sH}, 8
    s_add_u32 s12, s12, s13
    s_lshl_b32 s13, {sSUB}, 6
    s_add_u32 s12, s12, s13
    s_lshl_b32 s13, {sWV}, 10
    s_add_u32 s13, s13, {L_WUV}
    """)
    for i in range(4):
        dma("v4", S_WUV, NT, 8192, 1 << 20)
    I(f"""
    s_lshl_b32 s12, {sH}, 7
    s_lshl_b32 s13, {sSUB}, 5
    s_add_u32 s12, s12, s13
    s_mul_i32 s12, s12, 1280
    s_lshl_b32 s13, {sWV}, 10
    s_add_u32 s12, s12, s13
    s_add_u32 s13, s13, {L_WO}
    """)
    for i in range(5):
        dma("v5", S_WO, NT, 8192, 8192)
    I(f"""
    v_bfe_u32 v4, v1, 2, 2
    v_lshl_add_u32 v4, v2, 3, v4
    v_lshlrev_b32 v16, 6, v4
    v_lshl_add_u32 v16, v6, 3, v16
    s_lshl_b32 s12, {sWV}, 12
    s_add_u32 s12, s12, {L_WUV}
    v_add_u32 v16, s12, v16
    v_mul_u32_u24 v17, 1280, v4
    v_lshl_add_u32 v17, v6, 3, v17
    s_mul_i32 s12, {sWV}, 160
    s_add_u32 s12, s12, {L_WO}
    v_add_u32 v17, s12, v17
    v_and_b32 v18, 7, v3
    v_lshlrev_b32 v18, 10, v18
    v_lshl_add_u32 v18, v2, 4, v18
    s_lshl_b32 s12, {sH}, 13
    s_lshl_b32 s13, {sWV}, 7
    s_add_u32 s12, s12, s13
    s_add_u32 s12, s12, {XC2D}
    v_and_b32 v4, 1, v2
    v_lshlrev_b32 v19, 5, v4
    s_lshl_b32 s13, {sH}, 6
    s_add_u32 s13, s13, {XC2M}
    v_lshl_add_u32 v20, v4, 5, v3
    v_lshlrev_b32 v20, 5, v20
    s_lshl_b32 s14, {sWV}, 2
    v_add_u32 v20, s14, v20
    v_lshlrev_b32 v21, 5, v1
    s_lshl_b32 s14, {sWV}, 7
    v_lshl_add_u32 v22, v1, 1, s14
    v_and_b32 v23, 1, v3
    v_lshlrev_b32 v23, 6, v23
    v_lshl_add_u32 v23, v2, 4, v23
    v_add_u32 v23, s14, v23
    v_mul_u32_u24 v24, 2560, v3
    v_lshl_add_u32 v24, v2, 4, v24
    v_mov_b32 v4, {OOB}
    v_cmp_gt_u32 vcc, 2, v3
    s_lshl_b32 s93, {sX}, 4
    s_add_u32 s93, s93, {sM}
    v_cndmask_b32 v24, v4, v24, vcc
    s_mul_i32 s93, s93, 5120
    s_mul_i32 s94, {sWV}, 320
    s_add_u32 s93, s93, s94
    s_add_u32 s93, s93, {XD1}
    """)
    I(f"s_cmp_lg_u32 {sWV}, 7\ns_cbranch_scc1 L_B_nu\nv_mov_b32 v14, v108\nv_mov_b32 v15, v109")
    verify_flags(32, False, False)
    g.label("L_B_nu")
    for r in list(range(8, 16)) + list(range(64, 84)):
        I(f"v_mov_b32 v{r}, 0")
    g.bar("vmcnt(0) lgkmcnt(0)")
    g.stamp(18)
    I(f"""
    ds_read_b32 v4, {VZ} offset:{L_CTRL+8}
    s_cmp_lg_u32 {sWV}, 0
    s_cbranch_scc1 L_B_np3
    s_cmp_ge_u32 {sM}, 10
    s_cbranch_scc1 L_B_np3
    v_lshrrev_b32 v5, 1, v1
    v_mul_u32_u24 v5, 2560, v5
    v_and_b32 v6, 1, v1
    v_lshl_add_u32 v5, v6, 7, v5
    s_mul_i32 s14, {sX}, {16*5120}
    s_lshl_b32 s94, {sM}, 8
    s_add_u32 s14, s14, s94
    s_add_u32 s14, s14, {XD1}
    buffer_load_dword v6, v5, {S_WS}, s14 offen sc1 nt
    L_B_np3:
    """)
    for t in range(2):
        for nu in range(2):
            for tt in range(2):
                r = 96 + (t * 2 + nu) * 4 + 2 * tt
                I(f"ds_read_b64_tr_b16 v[{r}:{r+1}], v16 offset:{(32*t+4*tt)*64+32*nu}")
    for u in range(5):
        for tt in range(2):
            r = 112 + 4 * u + 2 * tt
            I(f"ds_read_b64_tr_b16 v[{r}:{r+1}], v17 offset:{32*u+4*tt*1280}")
    I("s_waitcnt lgkmcnt(0)\nv_readfirstlane_b32 s15, v4")
    until(P["t_c2"], "v195")
    c2l = lambda b: [f"buffer_load_dwordx4 v[{b}:{b+3}], v18, {S_WS}, s12 offen sc1",
                     f"buffer_load_dwordx4 v[{b+4}:{b+7}], v18, {S_WS}, s12 offen offset:64 sc1",
                     f"buffer_load_dwordx4 v[{b+8}:{b+11}], v19, {S_WS}, s13 offen sc1",
                     f"buffer_load_dwordx4 v[{b+12}:{b+15}], v19, {S_WS}, s13 offen offset:16 sc1"]
    if P["pipe"] > 1:
        I("s_waitcnt vmcnt(0)")
        g.poll_pipe(c2l, 16, [32, 136, 152, 168][:P["pipe"]], gap=P["gap"])
    else:
        g.poll(c2l(32), range(32, 48), delay=P["d_c2"], backoff=P["bo_c2"])
    g.stamp(10)
    I(f"""
    v_mfma_f32_16x16x32_bf16 v[8:11], v[32:35], v[96:99], v[8:11]
    v_mfma_f32_16x16x32_bf16 v[12:15], v[32:35], v[100:103], v[12:15]
    v_mfma_f32_16x16x32_bf16 v[8:11], v[36:39], v[104:107], v[8:11]
    v_mfma_f32_16x16x32_bf16 v[12:15], v[36:39], v[108:111], v[12:15]
    v_max_f32 v4, v40, v42
    v_max3_f32 v4, v4, v44, v46
    v_sub_f32 v40, v40, v4
    v_sub_f32 v42, v42, v4
    v_sub_f32 v44, v44, v4
    v_sub_f32 v46, v46, v4
    v_exp_f32 v40, v40
    v_exp_f32 v42, v42
    v_exp_f32 v44, v44
    v_exp_f32 v46, v46
    s_nop 0
    v_mul_f32 v4, v40, v41
    v_fmac_f32 v4, v42, v43
    v_fmac_f32 v4, v44, v45
    v_fmac_f32 v4, v46, v47
    v_rcp_f32 v4, v4
    v_mul_f32 v5, v40, v8
    v_mul_f32 v6, v40, v12
    v_fmac_f32 v5, v42, v9
    v_fmac_f32 v6, v42, v13
    v_fmac_f32 v5, v44, v10
    v_fmac_f32 v6, v44, v14
    v_fmac_f32 v5, v46, v11
    v_fmac_f32 v6, v46, v15
    v_mul_f32 v5, v5, v4
    v_mul_f32 v6, v6, v4
    ds_write_b32 v20, v5 offset:{L_DR}
    ds_write_b32 v20, v6 offset:{L_DR+512}
    """)
    g.bar()
    I(f"""
    ds_read_b128 v[32:35], v21 offset:{L_DR}
    ds_read_b128 v[36:39], v21 offset:{L_DR+16}
    s_waitcnt lgkmcnt(0)
    v_add_f32 v32, v32, v33
    v_add_f32 v34, v34, v35
    v_add_f32 v36, v36, v37
    v_add_f32 v38, v38, v39
    v_add_f32 v32, v32, v34
    v_add_f32 v36, v36, v38
    v_add_f32 v32, v32, v36
    v_cvt_pk_bf16_f32 v32, v32, v32
    ds_write_b16 v22, v32 offset:{L_CT}
    s_waitcnt lgkmcnt(0)
    ds_read_b128 v[12:15], v23 offset:{L_CT}
    s_waitcnt lgkmcnt(0)
    """)
    for u in range(5):
        I(f"v_mfma_f32_16x16x32_bf16 v[{64+4*u}:{67+4*u}], v[{112+4*u}:{115+4*u}], v[12:15], v[{64+4*u}:{67+4*u}]")
    I("s_nop 5\ns_cmp_eq_u32 s15, 1\ns_cbranch_scc1 L_e_fast")
    for fl, lab in (("sc1", None), ("", "L_e_fast")):
        if lab:
            g.label(lab)
        for u in range(5):
            I(f"buffer_store_dwordx4 v[{64+4*u}:{67+4*u}], v24, {S_WS}, s93 offen offset:{64*u} {fl}")
        if not lab:
            I("s_branch L_e_done")
    g.label("L_e_done")
    g.stamp(11)
    if P["wb"] == 1:
        I(f"""
        s_cmp_lg_u32 {sWV}, 1
        s_cbranch_scc1 L_nwb
        s_cmp_lg_u32 {sM}, 15
        s_cbranch_scc1 L_nwb
        s_sleep 40
        buffer_wbl2 sc1
        s_waitcnt vmcnt(0)
        L_nwb:
        """)
    I(f"""
    s_cmp_lg_u32 {sWV}, 0
    s_cbranch_scc1 L_fin
    s_cmp_ge_u32 {sM}, 10
    s_cbranch_scc1 L_fin
    v_mul_u32_u24 v5, 2560, v2
    v_lshl_add_u32 v5, v3, 4, v5
    v_and_b32 v4, 1, v2
    v_mul_u32_u24 v7, 2560, v4
    v_lshl_add_u32 v7, v3, 4, v7
    v_lshrrev_b32 v4, 1, v2
    v_lshl_add_u32 v7, v4, 3, v7
    s_mul_i32 s93, {sX}, 5120
    s_add_u32 s93, s93, s94
    s_add_u32 s93, s93, {XD2}
    """)
    lds = [f"s_add_u32 s13, s14, {i*2*5120}\nbuffer_load_dwordx4 v[{32+4*i}:{35+4*i}], v5, {S_WS}, s13 offen sc1"
           for i in range(8)]
    g.poll(lds, range(32, 64), delay=P["d_d1"], tmp="v6")
    g.tree_add(32, 8, 4, 4)
    I(f"""
    s_nop 1
    v_permlane32_swap_b32 v32, v34
    v_permlane32_swap_b32 v33, v35
    v_add_f32 v32, v32, v34
    v_add_f32 v33, v33, v35
    buffer_store_dwordx2 v[32:33], v7, {S_WS}, s93 offen sc1
    """)
    g.stamp(12)
    I("s_branch L_fin")

    g.label("L_Awg")
    I(f"""
    s_lshl_b32 s12, {sX}, 11
    s_lshl_b32 s13, {sM}, 7
    s_add_u32 s12, s12, s13
    s_lshl_b32 s13, {sWV}, 4
    s_add_u32 s12, s12, s13
    s_lshl_b32 s12, s12, 10
    s_mul_i32 s13, {sWV}, {16*CPITCH}
    s_add_u32 s13, s13, {L_CKV}
    s_lshr_b32 s101, {sWV}, 1
    s_barrier
    buffer_store_dwordx4 v[12:15], v199, {S_WS}, s99 offen sc1
    """)

    def own_tile(cond):
        lab = g.newlab("Lt")
        lp = g.newlab("Ltl")
        I(f"{cond}\ns_cbranch_scc0 {lab}\ns_mov_b32 s14, 0")
        g.label(lp)
        for i in range(4):
            dma("v5", S_CKV, NT, CPITCH, 1024)
        I(f"s_add_u32 s14, s14, 1\ns_cmp_lt_u32 s14, 4\ns_cbranch_scc1 {lp}")
        g.label(lab)

    own_tile(f"s_cmp_lt_u32 s101, {P['ahead']}")
    I(f"""
    v_and_b32 v16, 7, v3
    v_lshlrev_b32 v16, 1, v16
    v_lshrrev_b32 v4, 3, v3
    v_add_u32 v16, v16, v4
    s_lshl_b32 s14, {sWV}, 4
    v_add_u32 v16, s14, v16
    v_mul_u32_u24 v16, {CPITCH}, v16
    v_lshl_add_u32 v16, v2, 8, v16
    v_add_u32 v16, {L_CKV}, v16
    v_and_b32 v17, 1, v2
    v_lshlrev_b32 v17, 3, v17
    v_bfe_u32 v4, v1, 2, 2
    v_lshl_add_u32 v17, v4, 1, v17
    v_lshrrev_b32 v4, 1, v2
    v_add_u32 v17, v17, v4
    v_mul_u32_u24 v17, {CPITCH}, v17
    v_and_b32 v4, 3, v1
    v_lshl_add_u32 v17, v4, 3, v17
    s_lshl_b32 s14, {sWV}, 7
    s_add_u32 s14, s14, {L_CKV}
    v_add_u32 v17, s14, v17
    v_mul_u32_u24 v18, {CPITCH}, v3
    v_lshl_add_u32 v18, v2, 8, v18
    v_lshlrev_b32 v19, 5, v3
    s_lshl_b32 s14, {sWV}, 2
    v_add_u32 v20, s14, v19
    s_lshr_b32 s14, {sWV}, 1
    s_lshl_b32 s14, s14, 10
    s_and_b32 s15, {sWV}, 1
    s_lshl_b32 s15, s15, 3
    s_add_u32 s14, s14, s15
    v_add_u32 v21, s14, v5
    s_mul_i32 s14, {sWV}, {4*CPITCH}
    v_add_u32 v22, s14, v5
    v_lshrrev_b32 v23, 1, v2
    v_and_b32 v4, 7, v3
    v_xor_b32 v23, v23, v4
    v_lshlrev_b32 v23, 4, v23
    v_lshl_add_u32 v23, v3, 7, v23
    v_and_b32 v4, 1, v2
    v_lshl_add_u32 v23, v4, 3, v23
    s_lshl_b32 s14, {sWV}, 12
    s_add_u32 s14, s14, {L_TR}
    v_add_u32 v23, s14, v23
    v_xor_b32 v24, 32, v23
    v_xor_b32 v25, 64, v23
    v_xor_b32 v26, 96, v23
    v_lshrrev_b32 v30, 3, v1
    v_and_b32 v31, 7, v1
    v_xor_b32 v27, v30, v31
    v_lshlrev_b32 v27, 4, v27
    v_lshl_add_u32 v27, v30, 7, v27
    v_add_u32 v27, s14, v27
    s_mov_b32 s14, {C1J}
    v_mul_lo_u32 v28, v30, s14
    v_lshl_add_u32 v28, v31, 4, v28
    v_lshlrev_b32 v29, 7, v1
    v_mov_b32 v4, {OOB}
    v_cmp_gt_u32 vcc, 32, v1
    s_lshr_b32 s94, {sX}, 2
    s_lshl_b32 s94, s94, 15
    v_cndmask_b32 v29, v4, v29, vcc
    s_lshl_b32 s14, {sWV}, 12
    s_add_u32 s94, s94, s14
    s_add_u32 s94, s94, {XB}
    """)
    xb_loads = [f"buffer_load_dwordx4 v[{96+4*t}:{99+4*t}], v5, {S_WS}, s94 offen offset:{1024*t} sc1" for t in range(4)]
    for kb in range(4):
        I(f"s_cmp_lg_u32 s101, {kb}\ns_cbranch_scc1 L_A_na{kb}")
        I(f"s_waitcnt vmcnt({5 if kb == 3 else 0})")
        g.stamp(27)
        for j in range(16):
            I(f"ds_read_b128 v[{32+4*j}:{35+4*j}], v16 offset:{16*j}")
        g.label(f"L_A_na{kb}")
        if kb == 2:
            I(f"s_cmp_lg_u32 {sWV}, 0\ns_cbranch_scc1 L_A_w2")
            verify_flags(112, True, True, first_wait="vmcnt(0)", onlyA=True)
            g.label("L_A_w2")
        if kb in (1, 2):
            g.bar()
        else:
            g.bar(None)
        if kb == P["fl_kb"]:
            I(f"s_cmp_lg_u32 {sWV}, 0\ns_cbranch_scc1 L_A_nf")
            for i in range(4):
                I(f"buffer_load_dwordx4 v[{112+4*i}:{115+4*i}], v5, {S_WS}, 0 offen offset:{FLAGS+1024*i} sc1")
            g.label("L_A_nf")
        if kb + P["ahead"] < 4:
            own_tile(f"s_cmp_eq_u32 s101, {kb + P['ahead']}")
        if kb == 2:
            for l in xb_loads:
                I(l)
            I(f"""
            s_lshl_b32 s14, {sX}, 4
            s_add_u32 s14, s14, {sM}
            s_lshl_b32 s14, s14, 7
            s_add_u32 s14, s14, {XH}
            v_mov_b32 v4, {OOB}
            v_cmp_eq_u32 vcc, 0, v0
            s_nop 1
            v_cndmask_b32 v4, v4, 0, vcc
            buffer_store_dwordx2 v[14:15], v4, {S_WS}, s14 offen sc1
            """)
        if kb == 3:
            g.stamp(6)
        for tau in range(4):
            for t in range(2):
                dst = PVA + (tau * 4 + kb) * 4 + 2 * t
                I(f"ds_read_b64_tr_b16 v[{dst}:{dst+1}], v17 offset:{16*t*CPITCH + 32*tau}")
        if kb < 3:
            I(f"v_add_u32 v17, {32*CPITCH}, v17")
    I(f"ds_read_b32 v6, {VZ} offset:{L_CTRL+8}")
    g.poll(xb_loads, range(96, 112), preissued=True, backoff=P["bo_b"])
    g.stamp(5)
    for t in range(4):
        I(f"ds_write_b128 v22, v[{96+4*t}:{99+4*t}] offset:{L_QA+CPITCH*t}")
    I(f"""
    s_lshl_b32 s93, {sX}, 4
    s_add_u32 s93, s93, {sM}
    s_lshl_b32 s93, s93, 8
    s_add_u32 s93, s93, {XC1M}
    s_cmp_lg_u32 {sWV}, 3
    s_cbranch_scc1 L_A_npm
    v_lshlrev_b32 v4, 2, v1
    buffer_load_dword v194, v4, {S_WS}, s93 offen sc1 nt
    L_A_npm:
    """)
    for r in range(8, 16):
        I(f"v_mov_b32 v{r}, 0")
    g.bar()
    I("v_readfirstlane_b32 s15, v6")
    seq = [(j, ht) for j in range(16) for ht in range(2)]
    def qread(i):
        j, ht = seq[i]
        r = 96 + 4 * (i % 8)
        I(f"ds_read_b128 v[{r}:{r+3}], v18 offset:{L_QA+16*CPITCH*ht+16*j}")
    for i in range(8):
        qread(i)
    for i in range(32):
        j, ht = seq[i]
        r = 96 + 4 * (i % 8)
        I(f"s_waitcnt lgkmcnt({min(7, 31 - i)})")
        I(f"v_mfma_f32_16x16x32_bf16 v[{8+4*ht}:{11+4*ht}], v[{32+4*j}:{35+4*j}], v[{r}:{r+3}], v[{8+4*ht}:{11+4*ht}]")
        if i + 8 < 32:
            qread(i + 8)
    for r in range(32, 40):
        I(f"v_mov_b32 v{r}, 0")
    I(f"""
    v_max_f32 v4, v8, v9
    v_max_f32 v6, v12, v13
    v_max3_f32 v4, v4, v10, v11
    v_max3_f32 v6, v6, v14, v15
    s_nop 1
    v_permlane16_swap_b32 v4, v6
    v_max_f32 v4, v4, v6
    v_mov_b32 v6, v4
    s_nop 1
    v_permlane32_swap_b32 v4, v6
    v_max_f32 v4, v4, v6
    """)
    I(f"""
    v_and_b32 v6, 1, v2
    v_lshl_add_u32 v7, v6, 9, v20
    ds_write_b32 v7, v4 offset:{L_MB}
    """)
    g.stamp(20)
    for r in range(40, 64):
        I(f"v_mov_b32 v{r}, 0")
    g.bar()
    g.stamp(21)
    I(f"""
    ds_read_b128 v[96:99], v19 offset:{L_MB}
    ds_read_b128 v[100:103], v19 offset:{L_MB+16}
    ds_read_b128 v[104:107], v19 offset:{L_MB+512}
    ds_read_b128 v[108:111], v19 offset:{L_MB+528}
    s_waitcnt lgkmcnt(2)
    v_max3_f32 v4, v96, v97, v98
    v_max3_f32 v4, v4, v99, v100
    v_max3_f32 v4, v4, v101, v102
    v_max_f32 v4, v4, v103
    s_waitcnt lgkmcnt(0)
    v_max3_f32 v6, v104, v105, v106
    v_max3_f32 v6, v6, v107, v108
    v_max3_f32 v6, v6, v109, v110
    v_max_f32 v6, v6, v111
    """)
    for k in range(4):
        I(f"v_sub_f32 v{8+k}, v{8+k}, v4\nv_sub_f32 v{12+k}, v{12+k}, v6")
    for k in range(8):
        I(f"v_exp_f32 v{8+k}, v{8+k}")
    I(f"""
    s_nop 0
    v_cvt_pk_bf16_f32 v96, v8, v9
    v_cvt_pk_bf16_f32 v97, v10, v11
    v_cvt_pk_bf16_f32 v98, v12, v13
    v_cvt_pk_bf16_f32 v99, v14, v15
    ds_write_b64 v21, v[96:97] offset:{L_PB}
    ds_write_b64 v21, v[98:99] offset:{L_PB+4096}
    v_add_f32 v4, v8, v9
    v_add_f32 v6, v12, v13
    v_add_f32 v8, v10, v11
    v_add_f32 v9, v14, v15
    v_add_f32 v4, v4, v8
    v_add_f32 v6, v6, v9
    s_nop 1
    v_permlane16_swap_b32 v4, v6
    v_add_f32 v4, v4, v6
    v_mov_b32 v6, v4
    s_nop 1
    v_permlane32_swap_b32 v4, v6
    v_add_f32 v4, v4, v6
    ds_write_b32 v7, v4 offset:{L_LB}
    s_mul_i32 s12, {sX}, {32*C1J}
    s_lshl_b32 s13, {sM}, 10
    s_add_u32 s12, s12, s13
    s_lshl_b32 s13, {sWV}, 7
    s_add_u32 s12, s12, s13
    s_add_u32 s12, s12, {XC1D}
    s_lshl_b32 s13, {sX}, 12
    s_lshl_b32 s14, {sM}, 3
    s_add_u32 s13, s13, s14
    s_add_u32 s13, s13, {XC1M}
    v_and_b32 v6, 31, v1
    v_lshlrev_b32 v6, 5, v6
    """)
    g.bar()
    g.stamp(22)
    for q in range(8):
        I(f"ds_read_b128 v[{64+4*q}:{67+4*q}], v5 offset:{L_PB+1024*q}")
    I("s_cmp_eq_u32 s15, 1\ns_cbranch_scc1 L_pv_fast")
    for fl, lab in (("sc1", None), ("", "L_pv_fast")):
        if lab:
            g.label(lab)
        for ht in range(2):
            I(f"s_waitcnt lgkmcnt({4 if ht == 0 else 0})")
            for tau in range(4):
                for kb in range(4):
                    acc = 32 + (tau * 2 + ht) * 4
                    a = PVA + (tau * 4 + kb) * 4
                    pb = 64 + (ht * 4 + kb) * 4
                    I(f"v_mfma_f32_16x16x32_bf16 v[{acc}:{acc+3}], v[{a}:{a+3}], v[{pb}:{pb+3}], v[{acc}:{acc+3}]")
                if ht == 1:
                    if tau == 0:
                        for tq in range(3):
                            acc = 32 + (tq * 2) * 4
                            I(f"v_cvt_pk_bf16_f32 v{acc}, v{acc}, v{acc+1}\nv_cvt_pk_bf16_f32 v{acc+1}, v{acc+2}, v{acc+3}")
                            I(f"ds_write_b64 v{23+tq}, v[{acc}:{acc+1}]")
                    if tau == 1:
                        acc = 32 + 6 * 4
                        I(f"v_cvt_pk_bf16_f32 v{acc}, v{acc}, v{acc+1}\nv_cvt_pk_bf16_f32 v{acc+1}, v{acc+2}, v{acc+3}")
                        I(f"ds_write_b64 v26, v[{acc}:{acc+1}]")
                        I("s_waitcnt lgkmcnt(0)")
                        I("ds_read_b128 v[96:99], v27\nds_read_b128 v[100:103], v27 offset:1024")
                    if tau == 2:
                        I("s_waitcnt lgkmcnt(1)")
                        I(f"buffer_store_dwordx4 v[96:99], v28, {S_WS}, s12 offen {fl}")
                        I(f"s_add_u32 s12, s12, {8*C1J}")
                        I("s_waitcnt lgkmcnt(0)")
                        I(f"buffer_store_dwordx4 v[100:103], v28, {S_WS}, s12 offen {fl}")
                        I(f"s_add_u32 s12, s12, {8*C1J}")
        I(f"""
        ds_read_b128 v[112:115], v6 offset:{L_MB}
        ds_read_b128 v[116:119], v6 offset:{L_MB+16}
        ds_read_b128 v[120:123], v6 offset:{L_LB}
        ds_read_b128 v[124:127], v6 offset:{L_LB+16}
        """)
        for tau in range(4):
            acc = 32 + (tau * 2 + 1) * 4
            I(f"v_cvt_pk_bf16_f32 v{acc}, v{acc}, v{acc+1}\nv_cvt_pk_bf16_f32 v{acc+1}, v{acc+2}, v{acc+3}")
            I(f"ds_write_b64 v{23+tau}, v[{acc}:{acc+1}] offset:2048")
        I("s_waitcnt lgkmcnt(0)")
        I("ds_read_b128 v[104:107], v27 offset:2048\nds_read_b128 v[108:111], v27 offset:3072")
        g.stamp(23)
        I(f"""
        v_max3_f32 v8, v112, v113, v114
        v_max3_f32 v8, v8, v115, v116
        v_max3_f32 v8, v8, v117, v118
        v_max_f32 v8, v8, v119
        s_waitcnt lgkmcnt(1)
        buffer_store_dwordx4 v[104:107], v28, {S_WS}, s12 offen {fl}
        s_add_u32 s12, s12, {8*C1J}
        s_waitcnt lgkmcnt(0)
        buffer_store_dwordx4 v[108:111], v28, {S_WS}, s12 offen {fl}
        v_add_f32 v9, v120, v121
        v_add_f32 v10, v122, v123
        v_add_f32 v11, v124, v125
        v_add_f32 v12, v126, v127
        v_add_f32 v9, v9, v10
        v_add_f32 v11, v11, v12
        v_add_f32 v9, v9, v11
        """)
        g.bar("vmcnt(0)")
        g.stamp(25)
        I(f"s_cmp_lg_u32 {sWV}, 0\ns_cbranch_scc1 L_c1_done")
        I(f"buffer_store_dwordx2 v[8:9], v29, {S_WS}, s13 offen {fl}")
        if not lab:
            I("s_branch L_c1_done")
    g.label("L_c1_done")
    g.stamp(7)
    I(f"""
    v_lshlrev_b32 v16, 3, v30
    s_lshl_b32 s14, {sX}, 5
    s_lshl_b32 s13, {sM}, 1
    s_add_u32 s14, s14, s13
    s_mul_i32 s12, s14, {C1J}
    v_lshlrev_b32 v7, 10, v30
    v_lshl_add_u32 v7, v31, 4, v7
    v_add_u32 v6, 8192, v7
    s_lshl_b32 s13, {sWV}, 7
    s_add_u32 s12, s12, s13
    s_add_u32 s12, s12, {XC1D}
    s_add_u32 s14, s12, {C1J}
    v_lshlrev_b32 v17, 4, v31
    v_lshl_add_u32 v17, v2, 2, v17
    v_bfe_u32 v4, v1, 3, 1
    v_lshl_add_u32 v17, v4, 13, v17
    s_lshl_b32 s95, {sM}, 4
    s_add_u32 s95, s95, {sX}
    s_lshl_b32 s94, s95, 10
    s_add_u32 s94, s94, s13
    s_add_u32 s94, s94, {XC2D}
    s_lshl_b32 s95, s95, 3
    s_add_u32 s95, s95, {XC2M}
    v_lshlrev_b32 v18, 3, v1
    v_and_b32 v4, 0x1f7, v0
    v_mov_b32 v19, {OOB}
    v_cmp_eq_u32 vcc, 0, v4
    s_nop 1
    v_cndmask_b32 v18, v19, v18, vcc
    """)
    g.poll([f"buffer_load_dwordx2 v[{32+2*q}:{33+2*q}], v16, {S_WS}, s93 offen offset:{64*q} sc1" for q in range(4)],
           range(32, 40), delay=P["d_c1"], backoff=1)
    I(f"""
    buffer_load_dwordx4 v[64:67], v7, {S_WS}, s12 offen sc1
    buffer_load_dwordx4 v[68:71], v6, {S_WS}, s12 offen sc1
    buffer_load_dwordx4 v[72:75], v7, {S_WS}, s14 offen sc1
    buffer_load_dwordx4 v[76:79], v6, {S_WS}, s14 offen sc1
    """)
    g.stamp(8)
    I(f"""
    v_max_f32 v8, v32, v34
    v_max_f32 v10, v36, v38
    s_nop 1
    v_max_f32_dpp v8, v8, v8 row_ror:8 row_mask:0xf bank_mask:0xf
    v_max_f32_dpp v10, v10, v10 row_ror:8 row_mask:0xf bank_mask:0xf
    v_mov_b32 v12, v8
    v_mov_b32 v13, v10
    s_nop 0
    v_permlane16_swap_b32 v8, v12
    v_permlane16_swap_b32 v10, v13
    v_max_f32 v8, v8, v12
    v_max_f32 v10, v10, v13
    v_mov_b32 v12, v8
    v_mov_b32 v13, v10
    s_nop 0
    v_permlane32_swap_b32 v8, v12
    v_permlane32_swap_b32 v10, v13
    v_max_f32 v8, v8, v12
    v_max_f32 v10, v10, v13
    v_sub_f32 v32, v32, v8
    v_sub_f32 v34, v34, v8
    v_sub_f32 v36, v36, v10
    v_sub_f32 v38, v38, v10
    v_exp_f32 v32, v32
    v_exp_f32 v34, v34
    v_exp_f32 v36, v36
    v_exp_f32 v38, v38
    s_nop 0
    v_mul_f32 v9, v32, v33
    v_mul_f32 v11, v36, v37
    v_fmac_f32 v9, v34, v35
    v_fmac_f32 v11, v38, v39
    s_nop 1
    v_add_f32_dpp v9, v9, v9 row_ror:8 row_mask:0xf bank_mask:0xf
    v_add_f32_dpp v11, v11, v11 row_ror:8 row_mask:0xf bank_mask:0xf
    v_mov_b32 v12, v9
    v_mov_b32 v13, v11
    s_nop 0
    v_permlane16_swap_b32 v9, v12
    v_permlane16_swap_b32 v11, v13
    v_add_f32 v9, v9, v12
    v_add_f32 v11, v11, v13
    v_mov_b32 v12, v9
    v_mov_b32 v13, v11
    s_nop 0
    v_permlane32_swap_b32 v9, v12
    v_permlane32_swap_b32 v11, v13
    v_add_f32 v9, v9, v12
    v_add_f32 v11, v11, v13
    v_cmp_eq_u32 vcc, 8, v1
    s_nop 1
    v_cndmask_b32 v8, v8, v10, vcc
    v_cndmask_b32 v9, v9, v11, vcc
    """)
    if diag and not P.get("lite"):
        I("s_waitcnt vmcnt(0)")
        g.stamp(24)
    for q in range(4):
        hh, i = q >> 1, q & 1
        ab = 40 + 8 * hh
        I(f"s_waitcnt vmcnt({3-q})")
        for d in range(4):
            src = 64 + 4 * q + d
            I(f"v_lshlrev_b32 v12, 16, v{src}\nv_and_b32 v13, 0xffff0000, v{src}")
            if i == 0:
                I(f"v_mul_f32 v{ab+2*d}, v{32+2*q}, v12\nv_mul_f32 v{ab+1+2*d}, v{32+2*q}, v13")
            else:
                I(f"v_fmac_f32 v{ab+2*d}, v{32+2*q}, v12\nv_fmac_f32 v{ab+1+2*d}, v{32+2*q}, v13")
    I("s_nop 1")
    for ab in (40, 48):
        for k in (0, 1, 4, 5):
            I(f"v_permlane16_swap_b32 v{ab+k}, v{ab+2+k}")
    for ab in (40, 48):
        for k in (0, 1, 4, 5):
            I(f"v_add_f32 v{ab+k}, v{ab+k}, v{ab+2+k}")
    I("s_nop 0")
    for ab in (40, 48):
        for k in (0, 1):
            I(f"v_permlane32_swap_b32 v{ab+k}, v{ab+4+k}")
    I(f"""
    v_add_f32 v40, v40, v44
    v_add_f32 v41, v41, v45
    v_add_f32 v48, v48, v52
    v_add_f32 v49, v49, v53
    v_cmp_lt_u32 vcc, 7, v3
    v_add_f32_dpp v40, v40, v40 row_ror:8 row_mask:0xf bank_mask:0xf
    v_add_f32_dpp v41, v41, v41 row_ror:8 row_mask:0xf bank_mask:0xf
    v_add_f32_dpp v48, v48, v48 row_ror:8 row_mask:0xf bank_mask:0xf
    v_add_f32_dpp v49, v49, v49 row_ror:8 row_mask:0xf bank_mask:0xf
    v_cvt_pk_bf16_f32 v40, v40, v41
    v_cvt_pk_bf16_f32 v48, v48, v49
    v_cndmask_b32 v40, v40, v48, vcc
    buffer_store_dword v40, v17, {S_WS}, s94 offen sc1
    buffer_store_dwordx2 v[8:9], v18, {S_WS}, s95 offen sc1
    """)
    g.stamp(9)
    g.bar("vmcnt(0)")
    I(f"s_cmp_eq_u32 {sUP}, 0\ns_cbranch_scc1 L_down")
    I(f"""
    v_mul_u32_u24 v4, 3456, v30
    v_and_b32 v6, 1, v2
    s_and_b32 s12, {sWV}, 1
    s_lshl_b32 s12, s12, 1
    v_add_u32 v6, s12, v6
    v_lshlrev_b32 v6, 1, v6
    v_xor_b32 v6, v6, v31
    v_lshl_add_u32 v4, v6, 4, v4
    s_mul_i32 s12, {sKC}, 160
    s_and_b32 s14, {sWV}, 3
    s_lshl_b32 s13, s14, 3
    s_add_u32 s12, s12, s13
    s_mul_i32 s12, s12, 3456
    s_lshl_b32 s13, {sFC}, 7
    s_add_u32 s12, s12, s13
    s_lshl_b32 s13, s14, 10
    s_cmp_ge_u32 {sWV}, 4
    s_cbranch_scc1 L_up_w3
    s_add_u32 s13, s13, {L_W1}
    """)
    for m in range(5):
        dma("v4", S_W1, NT, 4096, 32 * 3456)
    I("s_branch L_up_ld")
    g.label("L_up_w3")
    I(f"s_add_u32 s13, s13, {L_W3}")
    for m in range(5):
        dma("v4", S_W3, NT, 4096, 32 * 3456)
    g.label("L_up_ld")
    I(f"""
    v_bfe_u32 v4, v1, 3, 1
    v_and_b32 v6, 1, v2
    v_lshl_add_u32 v4, v6, 1, v4
    v_xor_b32 v4, s14, v4
    v_lshlrev_b32 v16, 5, v4
    v_bfe_u32 v4, v1, 2, 2
    v_lshl_add_u32 v4, v2, 3, v4
    v_lshl_add_u32 v16, v4, 7, v16
    v_and_b32 v4, 3, v1
    v_lshl_add_u32 v16, v4, 3, v16
    s_lshr_b32 s12, {sWV}, 2
    s_mul_i32 s12, s12, {L_W3-L_W1}
    v_add_u32 v16, s12, v16
    v_min_u32 v17, 2, v3
    v_mul_u32_u24 v17, 320, v17
    v_lshl_add_u32 v17, v2, 4, v17
    v_lshlrev_b32 v18, 2, v4
    v_mov_b32 v4, {OOB}
    v_cmp_gt_u32 vcc, 16, v1
    s_lshl_b32 s93, {sX}, 4
    s_add_u32 s93, s93, {sM}
    v_cndmask_b32 v19, v4, v5, vcc
    s_lshl_b32 s93, s93, 11
    s_andn2_b32 s94, s93, 0x1fff
    s_lshl_b32 s13, {sWV}, 8
    s_add_u32 s93, s93, s13
    s_add_u32 s93, s93, {XU}
    s_lshl_b32 s13, {sKC}, 8
    s_add_u32 s94, s94, s13
    s_add_u32 s94, s94, {XU}
    v_lshlrev_b32 v20, 11, v2
    v_lshl_add_u32 v20, v3, 4, v20
    v_min_u32 v21, 39, v1
    v_mov_b32 v8, 0
    v_mov_b32 v9, 0
    v_mov_b32 v10, 0
    v_mov_b32 v11, 0
    """)
    I(f"""
    s_sub_u32 s12, {sWV}, 1
    s_cmp_ge_u32 s12, 2
    s_cbranch_scc1 L_up_nx
    v_lshlrev_b32 v22, 3, v21
    s_mul_i32 s13, s12, 1280
    s_mul_i32 s14, {sKC}, 320
    s_add_u32 s13, s13, s14
    buffer_load_dwordx2 v[194:195], v22, {S_X}, s13 offen
    L_up_nx:
    s_cmp_lg_u32 {sWV}, 3
    s_cbranch_scc1 L_up_n1
    v_mov_b32 v12, 0x3f803f80
    v_mov_b32 v13, 0x3f803f80
    v_lshlrev_b32 v4, 3, v21
    ds_write_b64 v4, v[12:13] offset:{L_HB+640}
    L_up_n1:
    s_cmp_lg_u32 {sWV}, 0
    s_cbranch_scc1 L_up_n0
    v_lshrrev_b32 v4, 2, v3
    v_lshlrev_b32 v4, 11, v4
    v_bfe_u32 v6, v3, 1, 1
    v_lshl_add_u32 v4, v6, 10, v4
    v_and_b32 v6, 1, v3
    v_lshl_add_u32 v4, v6, 7, v4
    buffer_load_dword v194, v4, {S_WS}, s94 offen sc1 nt
    L_up_n0:
    """)
    g.bar("vmcnt(0) lgkmcnt(0)")
    g.stamp(19)
    for st in range(5):
        for tt in range(2):
            I(f"ds_read_b64_tr_b16 v[{96+4*st+2*tt}:{97+4*st+2*tt}], v16 offset:{L_W1+4096*st+512*tt}")
    I(f"s_cmp_ge_u32 s12, 2\ns_cbranch_scc1 L_up_mm")
    I(f"""
    v_lshlrev_b32 v7, 4, v21
    s_mul_i32 s13, s12, 2560
    s_mul_i32 s14, {sKC}, 640
    s_add_u32 s13, s13, s14
    s_add_u32 s13, s13, {XD2}
    s_mul_i32 s14, s12, 320
    v_add_u32 v22, s14, v22
    """)
    if P["t_d2"]:
        I(f"ds_read_b32 v4, {VZ} offset:{L_CTRL}\ns_waitcnt lgkmcnt(0)")
        until(P["t_d2"], "v4")
    d2l = lambda b: [f"s_add_u32 s14, s13, {i*5120}\nbuffer_load_dwordx4 v[{b+4*i}:{b+3+4*i}], v7, {S_WS}, s14 offen sc1"
                     for i in range(8)]
    if P["pipe"] > 1:
        g.poll_pipe(d2l, 32, [32, 128, 160][:min(3, P["pipe"])], gap=P["gap"])
    else:
        g.poll(d2l(32), range(32, 64), delay=P["d_d2"], tmp="v4", backoff=P["bo_d2"])
    g.stamp(13)
    g.tree_add(32, 8, 4, 4)
    h_from_sum(194)
    I(f"ds_write_b64 v22, v[8:9] offset:{L_HB}")
    g.signal(C_H)
    I(f"""
    v_lshlrev_b32 v32, 16, v8
    v_and_b32 v33, 0xffff0000, v8
    v_lshlrev_b32 v34, 16, v9
    v_and_b32 v35, 0xffff0000, v9
    v_add_f32 v12, v32, v33
    v_add_f32 v13, v34, v35
    v_add_f32 v12, v12, v13
    v_mul_f32 v13, v32, v32
    v_fmac_f32 v13, v33, v33
    v_fmac_f32 v13, v34, v34
    v_fmac_f32 v13, v35, v35
    v_cmp_gt_u32 vcc, 40, v1
    v_mov_b32 v8, 0
    v_mov_b32 v9, 0
    v_cndmask_b32 v12, 0, v12, vcc
    v_cndmask_b32 v13, 0, v13, vcc
    s_nop 1
    v_permlane16_swap_b32 v12, v13
    v_add_f32 v12, v12, v13
    v_mov_b32 v13, v12
    s_nop 1
    v_permlane32_swap_b32 v12, v13
    v_add_f32 v12, v12, v13
    """)
    g.wave_allreduce(12, 13, rows=False)
    I(f"""
    v_and_b32 v4, 1, v2
    v_lshlrev_b32 v4, 2, v4
    s_lshl_b32 s14, s12, 3
    v_add_u32 v4, s14, v4
    ds_write_b32 v4, v12 offset:{L_STAT}
    """)
    g.signal(C_U)
    g.label("L_up_mm")
    g.waitc(C_H, 2)
    for st in range(5):
        I(f"ds_read_b128 v[{32+4*st}:{35+4*st}], v17 offset:{L_HB+64*st}")
    for st in range(5):
        I(f"s_waitcnt lgkmcnt({4-st})")
        I(f"v_mfma_f32_16x16x32_bf16 v[8:11], v[{32+4*st}:{35+4*st}], v[{96+4*st}:{99+4*st}], v[8:11]")
    g.waitc(C_U, 2)
    I(f"""
    ds_read_b32 v12, v18 offset:{L_STAT}
    s_waitcnt lgkmcnt(0)
    s_nop 1
    v_mov_b32 v11, v12
    s_cmp_eq_u32 s15, 1
    s_cbranch_scc1 L_u_fast
    buffer_store_dwordx4 v[8:11], v19, {S_WS}, s93 offen sc1
    s_branch L_u_done
    L_u_fast:
    buffer_store_dwordx4 v[8:11], v19, {S_WS}, s93 offen
    L_u_done:
    """)
    g.stamp(12)
    I(f"s_cmp_lg_u32 {sWV}, 0\ns_cbranch_scc1 L_fin")
    I(f"""
    v_mul_u32_u24 v16, 3456, v2
    v_lshl_add_u32 v16, v3, 1, v16
    v_and_b32 v4, 0x21, v1
    v_mov_b32 v6, {OOB}
    v_cmp_eq_u32 vcc, 0, v4
    s_lshl_b32 s13, {sFC}, 2
    s_add_u32 s13, s13, {sKC}
    v_cndmask_b32 v16, v6, v16, vcc
    s_lshl_b32 s13, s13, 5
    s_add_u32 s13, s13, {XE}
    """)
    g.poll([f"buffer_load_dwordx4 v[32:35], v20, {S_WS}, s94 offen sc1",
            f"buffer_load_dwordx4 v[36:39], v20, {S_WS}, s94 offen offset:1024 sc1"],
           range(32, 40), delay=P["d_u"], backoff=1)
    g.stamp(13)
    for k in range(7):
        I(f"v_mov_b32 v{40+k}, v{32+k}")
    for k in range(7):
        I(f"v_permlane16_swap_b32 v{32+k}, v{40+k}")
    for k in range(7):
        I(f"v_add_f32 v{32+k}, v{32+k}, v{40+k}")
    for k in range(7):
        I(f"v_mov_b32 v{40+k}, v{32+k}")
    for k in range(7):
        I(f"v_permlane32_swap_b32 v{32+k}, v{40+k}")
    for k in range(7):
        I(f"v_add_f32 v{32+k}, v{32+k}, v{40+k}")
    I(f"""
    v_mov_b32_dpp v40, v35 quad_perm:[0,0,0,0] row_mask:0xf bank_mask:0xf
    v_mov_b32_dpp v41, v35 quad_perm:[1,1,1,1] row_mask:0xf bank_mask:0xf
    v_mov_b32_dpp v42, v35 quad_perm:[2,2,2,2] row_mask:0xf bank_mask:0xf
    v_mov_b32_dpp v43, v35 quad_perm:[3,3,3,3] row_mask:0xf bank_mask:0xf
    v_mul_f32 v40, {f2u(1.0/640):#x}, v40
    v_mul_f32 v41, {f2u(1.0/640):#x}, v41
    v_mul_f32 v42, {f2u(1.0/640):#x}, v42
    v_mul_f32 v43, {f2u(1.0/640):#x}, v43
    v_fma_f32 v41, -v40, v40, v41
    v_fma_f32 v43, -v42, v42, v43
    v_max_f32 v41, 0, v41
    v_max_f32 v43, 0, v43
    v_add_f32 v41, {f2u(1e-5):#x}, v41
    v_add_f32 v43, {f2u(1e-5):#x}, v43
    v_rsq_f32 v41, v41
    v_rsq_f32 v43, v43
    v_fma_f32 v32, -v40, v34, v32
    v_fma_f32 v33, -v42, v34, v33
    v_fma_f32 v36, -v40, v38, v36
    v_fma_f32 v37, -v42, v38, v37
    v_mul_f32 v32, v32, v41
    v_mul_f32 v33, v33, v43
    v_mul_f32 v36, v36, v41
    v_mul_f32 v37, v37, v43
    v_cvt_pk_bf16_f32 v8, v32, v33
    v_cvt_pk_bf16_f32 v9, v36, v37
    v_lshlrev_b32 v32, 16, v8
    v_and_b32 v33, 0xffff0000, v8
    v_lshlrev_b32 v34, 16, v9
    v_and_b32 v35, 0xffff0000, v9
    v_mul_f32 v36, {f2u(-1.4426950408889634):#x}, v32
    v_mul_f32 v37, {f2u(-1.4426950408889634):#x}, v33
    v_exp_f32 v36, v36
    v_exp_f32 v37, v37
    s_nop 0
    v_add_f32 v36, 1.0, v36
    v_add_f32 v37, 1.0, v37
    v_rcp_f32 v36, v36
    v_rcp_f32 v37, v37
    s_nop 0
    v_mul_f32 v32, v32, v36
    v_mul_f32 v33, v33, v37
    v_cvt_pk_bf16_f32 v8, v32, v33
    v_lshlrev_b32 v32, 16, v8
    v_and_b32 v33, 0xffff0000, v8
    v_mul_f32 v32, v32, v34
    v_mul_f32 v33, v33, v35
    v_cmp_eq_u32 vcc, 1, v2
    s_nop 0
    v_mov_b32_dpp v34, v32 row_ror:15 row_mask:0xf bank_mask:0xf
    v_mov_b32_dpp v35, v33 row_ror:15 row_mask:0xf bank_mask:0xf
    v_cvt_pk_bf16_f32 v8, v32, v34
    v_cvt_pk_bf16_f32 v9, v33, v35
    v_cndmask_b32 v8, v8, v9, vcc
    buffer_store_dword v8, v16, {S_WS}, s13 offen sc1
    """)
    g.stamp(14)
    I("s_branch L_fin")
    g.label("L_down")
    I(f"""
    v_lshrrev_b32 v4, 2, v1
    v_mul_u32_u24 v4, 1280, v4
    v_and_b32 v6, 3, v1
    v_lshl_add_u32 v4, v6, 4, v4
    s_mul_i32 s12, {sWV}, {16*1280}
    s_lshl_b32 s13, {sFC}, 6
    s_add_u32 s12, s12, s13
    s_lshl_b32 s13, {sWV}, 10
    s_add_u32 s13, s13, {L_W2}
    """)
    for m in range(13):
        dma("v4", S_W2, NT, 8192, 128 * 1280)
    I(f"s_cmp_ge_u32 {sWV}, 4\ns_cbranch_scc1 L_dn_ld")
    dma("v4", S_W2, NT, 8192, 128 * 1280)
    g.label("L_dn_ld")
    I(f"""
    v_bfe_u32 v4, v1, 2, 2
    v_lshl_add_u32 v4, v2, 3, v4
    v_lshlrev_b32 v16, 6, v4
    v_lshl_add_u32 v16, v6, 3, v16
    s_lshl_b32 s12, {sWV}, 11
    s_add_u32 s12, s12, {L_W2}
    v_add_u32 v16, s12, v16
    v_add_u32 v17, 0x10000, v16
    v_and_b32 v18, 1, v3
    v_mul_u32_u24 v18, 3456, v18
    v_lshl_add_u32 v18, v2, 4, v18
    s_lshl_b32 s93, {sWV}, 6
    s_add_u32 s93, s93, {XE}
    s_cmp_lt_u32 {sWV}, 6
    s_cselect_b32 s94, {512*6}, 0
    s_add_u32 s94, s94, s93
    s_lshl_b32 s14, {sWV}, 8
    v_lshl_add_u32 v19, v1, 4, s14
    """)
    for r in range(8, 16):
        I(f"v_mov_b32 v{r}, 0")
    I(f"""
    s_cmp_lg_u32 {sWV}, 1
    s_cbranch_scc1 L_dn_nx
    v_lshrrev_b32 v6, 3, v3
    v_mul_u32_u24 v7, 2560, v6
    v_lshl_add_u32 v7, v31, 4, v7
    v_mul_u32_u24 v20, 1280, v6
    v_lshl_add_u32 v20, v31, 3, v20
    v_lshlrev_b32 v22, 3, v3
    s_lshl_b32 s12, {sFC}, 6
    buffer_load_dwordx2 v[194:195], v20, {S_X}, s12 offen
    L_dn_nx:
    """)
    g.bar("vmcnt(0) lgkmcnt(0)")
    g.stamp(19)
    for i in range(7):
        for nu in range(2):
            for tt in range(2):
                r = 96 + (i * 2 + nu) * 4 + 2 * tt
                off = 16384 * i + 256 * tt + 32 * nu
                va = "v16" if off < 65536 else "v17"
                I(f"ds_read_b64_tr_b16 v[{r}:{r+1}], {va} offset:{off & 65535}")
    I(f"s_cmp_lg_u32 {sWV}, 1\ns_cbranch_scc1 L_dn_e")
    I(f"s_lshl_b32 s13, {sFC}, 7\ns_add_u32 s13, s13, {XD2}")
    lds = [f"s_add_u32 s14, s13, {i*5120}\nbuffer_load_dwordx4 v[{32+4*i}:{35+4*i}], v7, {S_WS}, s14 offen sc1"
           for i in range(8)]
    g.poll(lds, range(32, 64), delay=P["d_d2"], tmp="v4", backoff=P["bo_d2"])
    g.stamp(13)
    g.tree_add(32, 8, 4, 4)
    h_from_sum(194)
    I(f"ds_write_b64 v22, v[8:9] offset:{L_HB}\nv_mov_b32 v8, 0\nv_mov_b32 v9, 0")
    g.signal(C_H)
    g.label("L_dn_e")
    g.waitc(C_H, 1)
    if P["t_e"]:
        I(f"ds_read_b32 v4, {VZ} offset:{L_CTRL}\ns_waitcnt lgkmcnt(0)")
        until(P["t_e"], "v4")
    el = lambda b: [f"buffer_load_dwordx4 v[{b+4*i}:{b+3+4*i}], v18, {S_WS}, s93 offen offset:{512*i} sc1" for i in range(6)] + \
                   [f"buffer_load_dwordx4 v[{b+24}:{b+27}], v18, {S_WS}, s94 offen sc1"]
    if P["pipe"] > 1:
        g.poll_pipe(el, 28, [32, 64, 160][:min(3, P["pipe"])], tmp="v6", gap=P["gap"])
    else:
        g.poll(el(32), range(32, 60), delay=P["d_e"], tmp="v6", backoff=P["bo_e"])
    g.stamp(14)
    for i in range(7):
        if i == 6:
            I(f"s_cmp_ge_u32 {sWV}, 6\ns_cbranch_scc1 L_dn6")
        for nu in range(2):
            r = 96 + (i * 2 + nu) * 4
            I(f"v_mfma_f32_16x16x32_bf16 v[{8+4*nu}:{11+4*nu}], v[{32+4*i}:{35+4*i}], v[{r}:{r+3}], v[{8+4*nu}:{11+4*nu}]")
    g.label("L_dn6")
    I(f"""
    s_mov_b64 exec, 0xffff
    s_nop 6
    v_mov_b32 v10, v12
    v_mov_b32 v11, v13
    ds_write_b128 v19, v[8:11] offset:{L_UR}
    s_mov_b64 exec, -1
    """)
    g.bar()
    I(f"s_cmp_lg_u32 {sWV}, 0\ns_cbranch_scc1 L_fin")
    I(f"""
    v_lshlrev_b32 v16, 4, v3
    v_lshl_add_u32 v16, v2, 2, v16
    v_and_b32 v4, 1, v2
    v_lshrrev_b32 v6, 1, v2
    v_lshlrev_b32 v7, 6, v4
    v_lshl_add_u32 v7, v6, 5, v7
    v_lshl_add_u32 v7, v3, 1, v7
    ds_read_u16 v191, v7 offset:{L_HB}
    """)
    for v in range(8):
        I(f"ds_read_b32 v{32+v}, v16 offset:{L_UR+256*v}")
    I(f"""
    v_mul_u32_u24 v17, 1280, v4
    v_lshl_add_u32 v17, v6, 5, v17
    v_lshl_add_u32 v17, v3, 1, v17
    v_and_b32 v5, 1, v1
    v_mov_b32 v6, {OOB}
    v_cmp_eq_u32 vcc, 0, v5
    s_lshl_b32 s12, {sFC}, 6
    s_waitcnt lgkmcnt(0)
    v_cndmask_b32 v17, v6, v17, vcc
    v_lshlrev_b32 v191, 16, v191
    """)
    g.tree_add(32, 8, 1, 1)
    I(f"""
    v_cvt_pk_bf16_f32 v8, v32, v32
    v_lshlrev_b32 v32, 16, v8
    v_add_f32 v32, v32, v191
    s_nop 1
    v_mov_b32_dpp v34, v32 row_ror:15 row_mask:0xf bank_mask:0xf
    v_cvt_pk_bf16_f32 v8, v32, v34
    buffer_store_dword v8, v17, {S_OUT}, s12 offen
    """)
    g.stamp(15)
    g.label("L_fin")
    if diag and P.get("dbgout"):
        I(f"""
        s_cmp_lg_u32 {sWV}, 0
        s_cbranch_scc1 L_end
        buffer_load_dword v4, {VZ}, {S_DBG}, 0 offen sc1
        s_waitcnt vmcnt(0)
        v_readfirstlane_b32 s96, v4
        s_mov_b64 exec, 1
        """)
        for k, idx in enumerate([0, 2, 4, 6, 5, 23, 9, 10, 11, 12, 13, 14, 15, 18]):
            lab = g.newlab("Lz")
            I(f"""
            s_cmp_eq_u32 s{64+idx}, 0
            s_cbranch_scc1 {lab}
            s_sub_u32 s97, s{64+idx}, s96
            v_mov_b32 v5, s97
            buffer_atomic_smax v5, {VZ}, {S_DBG}, 0 offen offset:{8+4*k}
            {lab}:
            """)
    elif diag:
        I(f"""
        s_mul_i32 s96, s2, 10
        s_add_u32 s96, s96, {sWV}
        s_lshl_b32 s96, s96, 7
        s_add_u32 s96, s96, {TS}
        s_mov_b64 exec, 1
        """)
        for i in range(0, 28, 4):
            I(f"v_mov_b32 v4, s{64+i}\nv_mov_b32 v5, s{65+i}\nv_mov_b32 v6, s{66+i}\nv_mov_b32 v7, s{67+i}")
            I(f"buffer_store_dwordx4 v[4:7], {VZ}, {S_WS}, s96 offen offset:{4*i}\ns_nop 2")
    g.label("L_end")
    I("s_endpgm")

    tail = f"""
.section .rodata,"a"
.p2align 6
.amdhsa_kernel {KNAME}
  .amdhsa_next_free_vgpr {NVGPR}
  .amdhsa_next_free_sgpr 102
  .amdhsa_accum_offset {NVGPR}
  .amdhsa_group_segment_fixed_size 0
  .amdhsa_kernarg_size 104
  .amdhsa_user_sgpr_count 2
  .amdhsa_user_sgpr_kernarg_segment_ptr 1
  .amdhsa_system_sgpr_workgroup_id_x 1
.end_amdhsa_kernel
"""
    return "\n".join(hdr) + "\n" + "\n".join(g.L) + "\n" + tail


if __name__ == "__main__":
    diag = "--diag" in sys.argv
    out = [a for a in sys.argv[1:] if not a.startswith("--")]
    P = {}
    for a in sys.argv[1:]:
        if a.startswith("--P:"):
            k, v = a[4:].split("=")
            P[k] = int(v) if v.lstrip("-").isdigit() else v
    txt = build(diag=diag, P=P)
    if out:
        open(out[0], "w").write(txt)
    else:
        sys.stdout.write(txt)
```

```python
import sys
from genlib import *

KNAME = "sequential_preLN__compressed_kv_cla__glu_gated_swiglu__decode_kernel"

FLAGS = 0x000000
XH    = 0x008000
XB    = 0x010000
XC2M  = 0x020000
XD2   = 0x030000
XE    = 0x040000
XC1M  = 0x050000
XAF   = 0x080000
XAS   = 0x0C0000
XU    = 0x100000
XC2D  = 0x180000
XD1   = 0x200000
TS    = 0x380000
XC1D  = 0x400000
C1J   = 16640
WS_BYTES = 0x1000000

CPITCH = 1040
L_CTRL = 0
L_CNT = 64
L_STAT = 192
(C_NON, C_H, C_U, C_XA, C_AG, C_VER) = range(6)
L_XN  = 2304
L_XAL = 4864
L_DR  = 8960
L_CT  = 11008
L_D1  = 4864
L_WUV = 12288
L_WO  = 45056
L_WUK = 45056
L_MB  = 256
L_LB  = 1280
L_UR  = 256
L_HB  = 2304
L_CKV = 5120
L_QA  = L_CKV
L_TR  = L_CKV + 64 * CPITCH
L_W1  = L_CKV
L_W3  = L_CKV + 20480
L_W2  = L_CKV
L_PB  = L_CKV + 32 * CPITCH
L_WQ  = L_CKV + 128 * CPITCH
LDS_BYTES = 158720
PVA = 128
VZ, VO = "v192", "v193"
NVGPR = 200

DEFAULTS = dict(d_a=2, d_c1=1, d_c2=0, d_d1=2, d_d2=0, d_u=2, d_e=0, backoff=2, nt="nt", fast_tries=200,
                d_non=4, d_p2=10, bo_c2=2, bo_d2=4, bo_e=4, bo_b=4, W2=8, d_A=40, init_blocks=1, hint_kb=2, pf_rows=0, pre=0, mid=0, ahead=4, fl_kb=1, wb=0, d_w13=0, bo_c2b=2, w2pf=1, w2pf_flag="nt", cpf=0, pipe=1, gap=2, t_c2=0, t_d2=0, t_e=0)


def build(diag=False, P=None):
    PP = dict(DEFAULTS)
    if P:
        PP.update(P)
    P = PP
    g = Gen(diag, P, L_CNT, VZ, VO)
    I = g.I
    NT = P["nt"]
    names = ["X", "CKV", "WQ", "WUK", "WUV", "WO", "W1", "W3", "W2", "OUT", "DBG", "WS"]
    S_X, S_CKV, S_WQ, S_WUK, S_WUV, S_WO, S_W1, S_W3, S_W2, S_OUT, S_DBG, S_WS = [
        f"s[{16+4*i}:{19+4*i}]" for i in range(12)]
    ptr = {0: 64, 1: 66, 2: 68, 3: 70, 4: 72, 5: 74, 6: 78, 7: 80, 8: 82, 9: 84, 10: 86, 11: 88}
    sizes = [2560, 16777216, 5242880, 4194304, 4194304, 5242880, 2211840, 2211840, 2211840, 2560, 256, WS_BYTES]

    def srd(*which):
        for nm in which:
            i = names.index(nm)
            b = 16 + 4 * i
            I(f"s_mov_b64 s[{b}:{b+1}], s[{ptr[i]}:{ptr[i]+1}]\ns_mov_b32 s{b+2}, {sizes[i]}\ns_mov_b32 s{b+3}, 0x20000")

    def dma(voff, srd_, flag, dm0, dso):
        I(f"s_mov_b32 m0, s13")
        I(f"s_add_u32 s13, s13, {dm0}")
        I(f"buffer_load_dwordx4 {voff}, {srd_}, s12 offen {flag} lds")
        I(f"s_add_u32 s12, s12, {dso}")

    def zero_stamps():
        if diag:
            for i in range(0, 28):
                I(f"s_mov_b32 s{64+i}, 0")

    sWV, sX, sS, sM, sH, sSUB, sFC, sUP, sKC = "s3", "s4", "s5", "s6", "s7", "s8", "s9", "s10", "s11"
    hdr = [f"; @launch grid=(256,1,1) block=(512,1,1) lds={LDS_BYTES}",
           '.amdgcn_target "amdgcn-amd-amdhsa--gfx950"', ".text", f".globl {KNAME}", ".p2align 8",
           f".type {KNAME},@function", f"{KNAME}:"]

    I(f"""
    s_cmp_ge_u32 s2, 256
    s_cbranch_scc1 L_end
    s_load_dwordx16 s[64:79], s[0:1], 0
    s_load_dwordx8 s[80:87], s[0:1], 64
    s_load_dwordx2 s[88:89], s[0:1], 96
    s_memrealtime s[90:91]
    v_lshrrev_b32 v4, 6, v0
    v_and_b32 v1, 63, v0
    v_readfirstlane_b32 {sWV}, v4
    v_lshrrev_b32 v2, 4, v1
    v_and_b32 v3, 15, v1
    v_mov_b32 {VZ}, 0
    v_mov_b32 {VO}, 1
    v_lshlrev_b32 v4, 2, v3
    ds_write_b32 v4, {VZ} offset:{L_CNT}
    s_and_b32 {sX}, s2, 7
    s_lshr_b32 {sS}, s2, 3
    s_and_b32 {sM}, {sS}, 15
    v_lshlrev_b32 v5, 4, v1
    v_mov_b32 v6, {OOB}
    v_mov_b32 v8, -1
    v_mov_b32 v9, -1
    v_mov_b32 v10, -1
    v_mov_b32 v11, -1
    v_cmp_eq_u32 vcc, 0, v1
    s_and_b32 s12, {sS}, 3
    s_lshl_b32 s12, s12, 3
    v_cndmask_b32 v7, v6, 0, vcc
    s_add_u32 {sH}, {sX}, s12
    s_lshr_b32 {sSUB}, {sM}, 2
    s_lshr_b32 s12, {sM}, 2
    s_lshl_b32 s12, s12, 3
    s_add_u32 s12, s12, {sX}
    s_cmp_lt_u32 s12, 27
    s_cselect_b32 {sUP}, 1, 0
    s_and_b32 {sKC}, {sM}, 3
    s_sub_u32 s14, {sX}, 3
    s_lshl_b32 s14, s14, 2
    s_add_u32 s14, s14, {sKC}
    s_cmp_eq_u32 {sUP}, 1
    s_cselect_b32 {sFC}, s12, s14
    """)

    def nonce_and_flag(first_wait):
        lp, dn, ent = g.newlab("Lp"), g.newlab("Ld"), g.newlab("Le")
        I(f"""
        s_mov_b32 s92, 0
        s_lshl_b32 s14, {sX}, 5
        s_add_u32 s14, s14, {sS}
        s_lshl_b32 s14, s14, 4
        s_add_u32 s14, s14, {FLAGS}
        s_getreg_b32 s15, hwreg(HW_REG_XCC_ID)
        v_mov_b32 v14, s15
        v_mov_b32 v15, 0
        s_waitcnt {first_wait}
        s_branch {ent}
        """)
        g.label(lp)
        I(f"""
        buffer_load_dwordx2 v[12:13], {VZ}, {S_DBG}, 0 offen sc1
        s_waitcnt vmcnt(0)
        """)
        g.label(ent)
        I(f"""
        v_cmp_ne_u32 vcc, 0, v12
        s_add_u32 s92, s92, 1
        s_cmp_eq_u64 vcc, exec
        s_cbranch_scc1 {dn}
        s_sleep {P['d_non']}
        s_cmp_lt_u32 s92, {POLL_LIMIT}
        s_cbranch_scc1 {lp}
        """)
        g.label(dn)
        I(f"""
        ds_write_b64 {VZ}, v[12:13] offset:{L_CTRL}
        buffer_store_dwordx4 v[12:15], v7, {S_WS}, s14 offen sc1
        """)
        g.signal(C_NON)
        g.stamp(16)

    def verify_flags(r0, kindA, preissued, first_wait="vmcnt(0)", onlyA=False, uniform=True):
        lp, dn, ent = g.newlab("Lp"), g.newlab("Ld"), g.newlab("Le")
        I("s_mov_b32 s92, 0")
        if preissued:
            I(f"s_waitcnt {first_wait}\ns_branch {ent}")
        g.label(lp)
        for i in range(4):
            I(f"buffer_load_dwordx4 v[{r0+4*i}:{r0+3+4*i}], v5, {S_WS}, 0 offen offset:{FLAGS+1024*i} sc1")
        I("s_waitcnt vmcnt(0)")
        if preissued:
            g.label(ent)
        I("v_mov_b32 v8, 0")
        for i in range(4):
            I(f"v_xor_b32 v9, v{r0+4*i}, v14\nv_xor_b32 v10, v{r0+1+4*i}, v15\nv_or3_b32 v8, v8, v9, v10")
        I("v_cmp_eq_u32 vcc, 0, v8\ns_add_u32 s92, s92, 1")
        if onlyA:
            I("s_or_b32 vcc_lo, vcc_lo, 0xffff\ns_or_b32 vcc_hi, vcc_hi, 0xffff")
        I(f"""
        s_cmp_eq_u64 vcc, exec
        s_cbranch_scc1 {dn}
        s_sleep 4
        s_cmp_lt_u32 s92, {POLL_LIMIT}
        s_cbranch_scc1 {lp}
        """)
        g.label(dn)
        if not uniform:
            g.stamp(17)
            return
        I(f"""
        s_lshr_b32 s14, {sX}, 1
        s_cmp_eq_u32 s14, 1
        v_mov_b32 v8, v{r0+2}
        s_cbranch_scc0 {dn}a
        v_mov_b32 v8, v{r0+6}
        {dn}a:
        s_cmp_eq_u32 s14, 2
        s_cbranch_scc0 {dn}b
        v_mov_b32 v8, v{r0+10}
        {dn}b:
        s_cmp_eq_u32 s14, 3
        s_cbranch_scc0 {dn}c
        v_mov_b32 v8, v{r0+14}
        {dn}c:
        s_getreg_b32 s14, hwreg(HW_REG_XCC_ID)
        v_xor_b32 v8, s14, v8
        s_and_b32 s14, {sX}, 1
        s_lshl_b32 s14, s14, 1
        s_add_u32 s14, s14, {1 if kindA else 0}
        v_cmp_eq_u32 vcc, s14, v2
        s_nop 1
        v_cndmask_b32 v8, 0, v8, vcc
        v_cmp_eq_u32 vcc, 0, v8
        s_cmp_eq_u64 vcc, exec
        s_cselect_b32 s14, 1, 0
        v_mov_b32 v8, s14
        ds_write_b32 {VZ}, v8 offset:{L_CTRL+8}
        """)
        g.stamp(17)

    def until(T, nreg):
        if not T:
            return
        lp = g.newlab("Lt")
        I(f"v_readfirstlane_b32 s100, {nreg}")
        g.label(lp)
        I(f"""
        s_memrealtime s[96:97]
        s_waitcnt lgkmcnt(0)
        s_sub_u32 s96, s96, s100
        s_cmp_lt_u32 s96, {T}
        s_cbranch_scc1 {lp}
        """)

    def h_from_sum(xr):
        I(f"""
        v_cvt_pk_bf16_f32 v8, v32, v33
        v_cvt_pk_bf16_f32 v9, v34, v35
        v_lshlrev_b32 v36, 16, v{xr}
        v_and_b32 v37, 0xffff0000, v{xr}
        v_lshlrev_b32 v38, 16, v{xr+1}
        v_and_b32 v39, 0xffff0000, v{xr+1}
        v_lshlrev_b32 v32, 16, v8
        v_and_b32 v33, 0xffff0000, v8
        v_lshlrev_b32 v34, 16, v9
        v_and_b32 v35, 0xffff0000, v9
        v_add_f32 v32, v32, v36
        v_add_f32 v33, v33, v37
        v_add_f32 v34, v34, v38
        v_add_f32 v35, v35, v39
        v_cvt_pk_bf16_f32 v8, v32, v33
        v_cvt_pk_bf16_f32 v9, v34, v35
        """)

    I(f"""
    s_waitcnt lgkmcnt(0)
    s_cmp_ge_u32 {sWV}, 4
    s_cbranch_scc1 L_e_hi
    s_or_b32 s14, s2, {sWV}
    s_cmp_lg_u32 s14, 0
    s_cbranch_scc1 L_e_dma
    """)
    srd("DBG")
    I(f"""
    s_or_b32 s90, s90, 1
    v_mov_b32 v14, s90
    v_mov_b32 v15, s91
    buffer_store_dwordx2 v[14:15], v7, {S_DBG}, 0 offen sc1
    s_branch L_e_dma
    L_e_hi:
    s_cmp_ge_u32 {sWV}, 6
    s_cbranch_scc1 L_e_67
    s_sub_u32 s15, {sWV}, 4
    s_mul_i32 s15, s15, 1280
    v_mul_u32_u24 v100, 20, v1
    """)
    srd("X")
    I(f"""
    buffer_load_dwordx4 v[8:11], v100, {S_X}, s15 offen
    buffer_load_dword v12, v100, {S_X}, s15 offen offset:16
    s_branch L_e_dma
    L_e_67:
    """)
    srd("DBG", "WS")
    I(f"""
    s_cmp_ge_u32 {sS}, 16
    s_cbranch_scc1 L_e_A67
    s_cmp_eq_u32 {sWV}, 6
    s_cbranch_scc1 L_e_B6
    """)
    I(f"""
    s_lshl_b32 s13, {sX}, 4
    s_add_u32 s13, s13, {sM}
    s_mul_i32 s13, s13, 5120
    s_add_u32 s13, s13, {XD1}
    """)
    for i in range(4):
        I(f"buffer_store_dwordx4 v[8:11], v5, {S_WS}, s13 offen offset:{1024*i} sc1")
    I(f"""
    s_add_u32 s13, s13, 4096
    buffer_store_dwordx4 v[8:11], v5, {S_WS}, s13 offen sc1
    v_mul_u32_u24 v4, 2560, v2
    v_lshl_add_u32 v4, v3, 4, v4
    s_cmp_lt_u32 {sM}, 10
    s_cselect_b32 s15, 32, 0
    v_cmp_gt_u32 vcc, s15, v1
    s_mul_i32 s13, {sX}, 5120
    s_lshl_b32 s14, {sM}, 8
    v_cndmask_b32 v4, v6, v4, vcc
    s_add_u32 s13, s13, s14
    s_add_u32 s13, s13, {XD2}
    buffer_store_dwordx4 v[8:11], v4, {S_WS}, s13 offen sc1
    s_branch L_e_dma
    L_e_B6:
    s_lshl_b32 s12, {sH}, 13
    s_add_u32 s12, s12, {XAF}
    v_lshlrev_b32 v4, 7, v1
    buffer_load_dword v14, v4, {S_WS}, s12 offen nt
    v_lshrrev_b32 v4, 3, v1
    v_lshlrev_b32 v4, 8, v4
    v_and_b32 v12, 7, v1
    v_lshl_add_u32 v4, v12, 4, v4
    s_add_u32 s13, s12, 4096
    buffer_store_dwordx4 v[8:11], v4, {S_WS}, s12 offen
    buffer_store_dwordx4 v[8:11], v4, {S_WS}, s12 offen offset:2048
    buffer_store_dwordx4 v[8:11], v4, {S_WS}, s13 offen
    buffer_store_dwordx4 v[8:11], v4, {S_WS}, s13 offen offset:2048
    """)
    I(f"""
    s_branch L_e_dma
    L_e_A67:
    s_cmp_eq_u32 {sWV}, 7
    s_cbranch_scc1 L_e_A7
    """)
    if P["cpf"]:
        I(f"""
        s_cmp_ge_u32 {sM}, 4
        s_cbranch_scc1 L_e_dma
        s_getpc_b64 s[12:13]
        L_pc:
        s_sub_u32 s12, s12, L_pc-{KNAME}
        s_subb_u32 s13, s13, 0
        v_lshlrev_b32 v4, 7, v1
        global_load_dword v194, v4, s[12:13]
        v_add_u32 v4, 8192, v4
        global_load_dword v194, v4, s[12:13]
        v_add_u32 v4, 8192, v4
        v_min_u32 v4, L_end-{KNAME}, v4
        global_load_dword v194, v4, s[12:13]
        """)
    I("s_branch L_e_dma\nL_e_A7:")
    I(f"""
    v_lshlrev_b32 v4, 7, v1
    v_cmp_gt_u32 vcc, 32, v1
    s_lshl_b32 s14, {sX}, 12
    s_lshl_b32 s15, {sM}, 3
    v_cndmask_b32 v4, v6, v4, vcc
    v_cndmask_b32 v12, v6, v5, vcc
    s_add_u32 s14, s14, s15
    s_add_u32 s14, s14, {XC1M}
    buffer_store_dwordx2 v[8:9], v4, {S_WS}, s14 offen sc1
    s_lshl_b32 s14, {sX}, 4
    s_add_u32 s14, s14, {sM}
    s_lshl_b32 s14, s14, 9
    s_add_u32 s14, s14, {XB}
    buffer_store_dwordx4 v[8:11], v12, {S_WS}, s14 offen sc1
    s_lshl_b32 s14, {sM}, 4
    s_add_u32 s14, s14, {sX}
    s_lshl_b32 s15, s14, 10
    s_add_u32 s15, s15, {XC2D}
    buffer_store_dwordx4 v[8:11], v5, {S_WS}, s15 offen sc1
    s_add_u32 s15, s15, 8192
    buffer_store_dwordx4 v[8:11], v5, {S_WS}, s15 offen sc1
    v_lshlrev_b32 v4, 10, v1
    v_cmp_gt_u32 vcc, 2, v1
    s_lshl_b32 s15, s14, 7
    s_add_u32 s15, s15, {XC2M}
    v_cndmask_b32 v4, v6, v4, vcc
    buffer_store_dwordx2 v[8:9], v4, {S_WS}, s15 offen sc1
    s_lshl_b32 s14, {sX}, 4
    s_add_u32 s14, s14, {sM}
    s_lshl_b32 s14, s14, 11
    s_add_u32 s14, s14, {XU}
    buffer_store_dwordx4 v[8:11], v5, {S_WS}, s14 offen sc1
    buffer_store_dwordx4 v[8:11], v5, {S_WS}, s14 offen offset:1024 sc1
    s_lshl_b32 s15, {sUP}, 2
    v_cmp_gt_u32 vcc, s15, v1
    s_lshl_b32 s14, {sFC}, 2
    s_add_u32 s14, s14, {sKC}
    v_cndmask_b32 v4, v6, v5, vcc
    s_lshl_b32 s14, s14, 7
    s_add_u32 s14, s14, {XE}
    buffer_store_dwordx4 v[8:11], v4, {S_WS}, s14 offen sc1
    buffer_load_dwordx2 v[12:13], {VZ}, {S_DBG}, 0 offen sc1
    """)
    g.label("L_e_dma")
    I(f"""
    s_and_b32 s12, {sWV}, 1
    s_lshl_b32 s12, s12, 2
    v_add_u32 v4, s12, v2
    v_lshlrev_b32 v4, 1, v4
    v_xor_b32 v4, v4, v3
    v_lshlrev_b32 v4, 4, v4
    v_lshl_add_u32 v4, v2, 13, v4
    s_lshr_b32 s93, {sS}, 2
    s_mul_i32 s12, s93, 80
    s_lshl_b32 s13, {sWV}, 2
    s_add_u32 s12, s12, s13
    s_lshl_b32 s12, s12, 13
    s_lshl_b32 s13, {sH}, 8
    s_add_u32 s12, s12, s13
    s_lshl_b32 s13, {sWV}, 10
    s_add_u32 s13, s13, {L_WQ}
    """)
    srd("WQ")
    I(f"s_cmp_ge_u32 {sWV}, 4\ns_cbranch_scc1 L_e_d2")
    dma("v4", S_WQ, NT, 8192, 32 * 8192)
    g.label("L_e_d2")
    for i in range(2):
        dma("v4", S_WQ, NT, 8192, 32 * 8192)
    def ckv_block():
        for i in range(4):
            dma("v5", S_CKV, NT, CPITCH if i < 3 else 29 * CPITCH, 1024 if i < 3 else 29 * 1024)
    I(f"s_cmp_lt_u32 {sS}, 16\ns_cbranch_scc1 L_e_B")
    srd("CKV")
    I(f"""
    s_lshl_b32 s12, {sX}, 11
    s_lshl_b32 s13, {sM}, 7
    s_add_u32 s12, s12, s13
    s_lshl_b32 s13, {sWV}, 2
    s_add_u32 s12, s12, s13
    s_lshl_b32 s12, s12, 10
    s_mul_i32 s13, {sWV}, {4*CPITCH}
    s_add_u32 s13, s13, {L_CKV}
    """)
    for i in range(P["pre"]):
        ckv_block()
    I("s_mov_b32 s100, s12\ns_mov_b32 s101, s13\ns_branch L_e_srd")
    g.label("L_e_B")
    srd("WUK")
    I(f"""
    v_xor_b32 v4, v3, v2
    v_lshlrev_b32 v4, 4, v4
    v_lshl_add_u32 v4, v2, 13, v4
    s_lshl_b32 s12, {sSUB}, 7
    s_lshl_b32 s13, {sWV}, 4
    s_add_u32 s12, s12, s13
    s_lshl_b32 s12, s12, 13
    s_lshl_b32 s13, {sH}, 8
    s_add_u32 s12, s12, s13
    s_lshl_b32 s13, {sWV}, 12
    s_add_u32 s13, s13, {L_WUK}
    """)
    for i in range(4):
        dma("v4", S_WUK, NT, 1024, 4 * 8192)
        if i < 3:
            I(f"v_xor_b32 v4, {64 if i != 1 else 192}, v4")
    g.label("L_e_srd")
    srd("X", "CKV", "WUV", "WO", "W1", "W3", "W2", "OUT", "DBG", "WS")
    zero_stamps()
    g.stamp(0)
    I("s_barrier")
    I(f"""
    s_cmp_lg_u32 {sWV}, 7
    s_cbranch_scc1 L_s_n7
    s_cmp_lt_u32 {sS}, 16
    s_cbranch_scc1 L_stA
    """)
    nonce_and_flag(f"vmcnt({2+4*P['pre']})")
    I("s_branch L_stA")
    g.label("L_s_n7")
    I(f"s_and_b32 s12, {sWV}, 6\ns_cmp_lg_u32 s12, 4\ns_cbranch_scc1 L_stA")
    I(f"""
    s_cmp_ge_u32 {sS}, 16
    s_cbranch_scc1 L_ln_A
    s_waitcnt vmcnt(6)
    s_branch L_ln
    L_ln_A:
    s_waitcnt vmcnt({2+4*P['pre']})
    L_ln:
    """)
    for i in range(5):
        I(f"v_lshlrev_b32 v{32+2*i}, 16, v{8+i}\nv_and_b32 v{33+2*i}, 0xffff0000, v{8+i}")
    I("v_add_f32 v5, v32, v33\nv_add_f32 v6, v34, v35")
    for i in range(2, 5):
        I(f"v_add_f32 v5, v5, v{32+2*i}\nv_add_f32 v6, v6, v{33+2*i}")
    I("v_add_f32 v5, v5, v6")
    g.wave_allreduce(5, 6)
    I(f"v_mul_f32 v5, {f2u(1.0/640):#x}, v5")
    for i in range(10):
        I(f"v_sub_f32 v{32+i}, v{32+i}, v5")
    I("v_mul_f32 v5, v32, v32\nv_mul_f32 v6, v33, v33")
    for i in range(1, 5):
        I(f"v_fmac_f32 v5, v{32+2*i}, v{32+2*i}\nv_fmac_f32 v6, v{33+2*i}, v{33+2*i}")
    I("v_add_f32 v5, v5, v6")
    g.wave_allreduce(5, 6)
    I(f"""
    v_mov_b32 v6, {f2u(1e-5):#x}
    s_mov_b32 s13, {f2u(1.0/640):#x}
    v_fma_f32 v5, v5, s13, v6
    v_rsq_f32 v5, v5
    v_add_u32 v4, s15, v100
    """)
    for i in range(10):
        I(f"v_mul_f32 v{32+i}, v{32+i}, v5")
    for i in range(5):
        I(f"v_cvt_pk_bf16_f32 v{8+i}, v{32+2*i}, v{33+2*i}")
    for i in range(5):
        I(f"ds_write_b32 v4, v{8+i} offset:{L_XN+4*i}")
    g.stamp(16)
    g.label("L_stA")
    if P["mid"]:
        I(f"s_cmp_lt_u32 {sS}, 16\ns_cbranch_scc1 L_stA2")
        g.waitc(C_NON, 1)
        I("s_mov_b32 s12, s100\ns_mov_b32 s13, s101\nv_lshlrev_b32 v5, 4, v1")
        for i in range(P["mid"]):
            ckv_block()
        I("s_mov_b32 s100, s12\ns_mov_b32 s101, s13")
        g.label("L_stA2")
    I(f"""
    v_lshrrev_b32 v4, 2, v1
    v_and_b32 v5, 7, v4
    v_lshlrev_b32 v5, 1, v5
    v_bfe_u32 v6, v1, 1, 1
    s_lshl_b32 s12, {sWV}, 1
    v_add_u32 v6, s12, v6
    v_xor_b32 v6, v6, v5
    v_lshlrev_b32 v6, 4, v6
    v_lshl_add_u32 v6, v4, 8, v6
    v_and_b32 v5, 1, v1
    v_lshl_add_u32 v6, v5, 3, v6
    v_add_u32 v6, {L_WQ}, v6
    v_and_b32 v5, 1, v3
    v_mul_u32_u24 v5, 1280, v5
    v_lshl_add_u32 v5, v2, 3, v5
    s_lshr_b32 s93, {sS}, 2
    s_mul_i32 s12, s93, 160
    v_add_u32 v5, s12, v5
    v_and_b32 v198, 1, v2
    v_lshlrev_b32 v198, 9, v198
    v_lshrrev_b32 v4, 1, v2
    v_lshl_add_u32 v198, v4, 7, v198
    v_lshl_add_u32 v198, v3, 3, v198
    v_mov_b32 v4, {OOB >> 1}
    v_cmp_gt_u32 vcc, 2, v3
    s_lshl_b32 s12, {sH}, 12
    s_lshl_b32 s13, s93, 4
    v_cndmask_b32 v198, v4, v198, vcc
    s_add_u32 s12, s12, s13
    s_lshr_b32 s13, {sWV}, 1
    s_lshl_b32 s13, s13, 10
    s_add_u32 s12, s12, s13
    s_and_b32 s13, {sWV}, 1
    s_lshl_b32 s13, s13, 8
    s_add_u32 s12, s12, s13
    s_lshl_b32 s99, s12, 1
    s_add_u32 s98, s99, {XAF}
    s_add_u32 s99, s99, {XAS}
    v_lshlrev_b32 v199, 1, v198
    v_mov_b32 v8, 0
    v_mov_b32 v9, 0
    v_mov_b32 v10, 0
    v_mov_b32 v11, 0
    s_cmp_lt_u32 {sS}, 16
    s_cbranch_scc1 L_wB
    s_cmp_eq_u32 {sWV}, 7
    s_cbranch_scc1 L_wA7
    s_waitcnt vmcnt({4*P['pre']+4*P['mid']})
    L_wA7:
    s_waitcnt vmcnt({4*P['pre']+4*P['mid']+1})
    s_branch L_wE
    L_wB:
    s_waitcnt vmcnt(4)
    L_wE:
    """)
    g.bar()
    g.stamp(1)
    I(f"ds_read_b64 v[14:15], {VZ} offset:{L_CTRL}")
    for st in range(5):
        I(f"ds_read_b64_tr_b16 v[{32+2*st}:{33+2*st}], v6 offset:{4096*st}")
        I(f"ds_read_b64 v[{44+2*st}:{45+2*st}], v5 offset:{L_XN+32*st}")
    for st in range(5):
        I(f"s_waitcnt lgkmcnt({8-2*st})")
        I(f"v_mfma_f32_16x16x16_bf16 v[8:11], v[{32+2*st}:{33+2*st}], v[{44+2*st}:{45+2*st}], v[8:11]")
    I(f"""
    v_lshlrev_b32 v5, 4, v1
    s_mov_b32 s92, 0
    s_nop 5
    v_cvt_pk_bf16_f32 v12, v8, v9
    v_cvt_pk_bf16_f32 v13, v10, v11
    buffer_store_dwordx4 v[12:15], v199, {S_WS}, s98 offen
    v_mov_b32 v196, v12
    v_mov_b32 v197, v13
    """)
    g.stamp(2)
    I(f"s_cmp_ge_u32 {sS}, 16\ns_cbranch_scc1 L_Awg")
    FT = P['fast_tries']
    I(f"""
    s_lshl_b32 s12, {sH}, 12
    s_lshl_b32 s13, {sWV}, 9
    s_add_u32 s12, s12, s13
    s_lshl_b32 s95, s12, 1
    s_add_u32 s12, s95, {XAF}
    s_add_u32 s95, s95, {XAS}
    v_lshlrev_b32 v102, 3, v1
    v_add_u32 v96, s13, v102
    v_lshlrev_b32 v99, 15, v3
    v_lshl_add_u32 v99, v2, 3, v99
    v_mov_b32 v4, {OOB}
    v_cmp_gt_u32 vcc, 2, v3
    s_lshl_b32 s14, {sH}, 10
    s_lshl_b32 s15, {sSUB}, 8
    v_cndmask_b32 v99, v4, v99, vcc
    s_add_u32 s14, s14, s15
    s_lshl_b32 s15, {sWV}, 5
    s_add_u32 s14, s14, s15
    s_add_u32 s14, s14, {XB}
    v_xor_b32 v98, v3, v2
    v_lshlrev_b32 v98, 4, v98
    v_lshl_add_u32 v98, v3, 8, v98
    s_lshl_b32 s15, {sWV}, 12
    s_add_u32 s15, s15, {L_WUK}
    v_add_u32 v98, s15, v98
    s_mov_b32 s15, 0
    v_lshl_add_u32 v103, v3, 4, s13
    v_mov_b32 v8, 0
    v_mov_b32 v9, 0
    v_mov_b32 v10, 0
    v_mov_b32 v11, 0
    L_xa_loop:
    s_cmp_eq_u32 s15, 1
    s_cbranch_scc1 L_xa_chk
    buffer_load_dwordx2 v[14:15], {VZ}, {S_DBG}, 0 offen sc1
    buffer_load_dwordx2 v[36:37], v103, {S_WS}, 0 offen offset:{FLAGS+256} sc1
    buffer_load_dwordx4 v[32:35], v5, {S_WS}, s12 offen sc1
    s_waitcnt vmcnt(0)
    s_cmp_lg_u32 s92, 0
    s_cbranch_scc1 L_xa_n1
    ds_read_b128 v[16:19], v98
    v_xor_b32 v98, 64, v98
    ds_read_b128 v[20:23], v98
    v_xor_b32 v98, 192, v98
    ds_read_b128 v[24:27], v98
    v_xor_b32 v98, 64, v98
    ds_read_b128 v[28:31], v98
    L_xa_n1:
    v_cmp_ne_u32 vcc, 0, v14
    v_cmp_eq_u64 s[100:101], v[36:37], v[14:15]
    v_max_u32 v4, v32, v33
    s_and_b64 vcc, vcc, s[100:101]
    s_cmp_eq_u64 vcc, exec
    s_cbranch_scc0 L_xa_next
    v_cmp_ne_u32 vcc, -1, v4
    v_cmp_eq_u64 s[100:101], v[34:35], v[14:15]
    s_and_b32 vcc_lo, vcc_lo, 0x00ff00ff
    s_and_b32 vcc_hi, vcc_hi, 0x00ff00ff
    s_and_b32 s100, s100, 0xff00ff00
    s_and_b32 s101, s101, 0xff00ff00
    s_or_b64 vcc, s[100:101], vcc
    s_cmp_eq_u64 vcc, exec
    s_cbranch_scc1 L_xa_got
    s_cmp_le_u32 s92, {FT}
    s_cbranch_scc1 L_xa_next
    buffer_load_dwordx4 v[32:35], v5, {S_WS}, s95 offen sc1
    s_waitcnt vmcnt(0)
    v_cmp_eq_u64 vcc, v[34:35], v[14:15]
    s_cmp_eq_u64 vcc, exec
    s_cbranch_scc0 L_xa_next
    L_xa_got:
    ds_write_b64 v96, v[32:33] offset:{L_XAL}
    s_mov_b32 s15, 1
    """)
    g.signal(C_XA)
    I(f"""
    L_xa_chk:
    ds_read_b32 v4, {VZ} offset:{L_CNT+4*C_XA}
    s_waitcnt lgkmcnt(0)
    v_cmp_gt_u32 vcc, 8, v4
    s_cbranch_vccz L_xa_done
    L_xa_next:
    s_cmp_lg_u32 s92, {FT}
    s_cbranch_scc1 L_xa_nf
    s_mov_b32 s93, 0
    L_xa_non:
    buffer_load_dwordx2 v[14:15], {VZ}, {S_DBG}, 0 offen sc1
    s_waitcnt vmcnt(0)
    v_cmp_ne_u32 vcc, 0, v14
    s_add_u32 s93, s93, 1
    s_cmp_eq_u64 vcc, exec
    s_cbranch_scc1 L_xa_non_d
    s_sleep 4
    s_cmp_lt_u32 s93, {POLL_LIMIT}
    s_cbranch_scc1 L_xa_non
    L_xa_non_d:
    v_mov_b32 v12, v196
    v_mov_b32 v13, v197
    buffer_store_dwordx4 v[12:15], v199, {S_WS}, s99 offen sc1
    L_xa_nf:
    s_and_b32 s93, s92, 3
    s_cmp_lg_u32 s93, 3
    s_cbranch_scc1 L_xa_nr
    buffer_store_dwordx2 v[196:197], v199, {S_WS}, s98 offen
    L_xa_nr:
    s_add_u32 s92, s92, 1
    s_cmp_lt_u32 s92, {POLL_LIMIT}
    s_cbranch_scc1 L_xa_loop
    L_xa_done:
    """)
    g.stamp(3)
    for k in range(8):
        I(f"ds_read_b64 v[{32+2*k}:{33+2*k}], v102 offset:{L_XAL+512*k}")
    for k in range(8):
        I(f"s_waitcnt lgkmcnt({7-k})")
        I(f"v_mfma_f32_16x16x16_bf16 v[8:11], v[{16+2*k}:{17+2*k}], v[{32+2*k}:{33+2*k}], v[8:11]")
    SC = (128 ** -0.5) * 1.4426950408889634
    I("s_nop 7")
    for r in (8, 4, 2):
        for k in range(4):
            I(f"v_add_f32_dpp v{8+k}, v{8+k}, v{8+k} row_ror:{r} row_mask:0xf bank_mask:0xf")
    for k in range(4):
        I(f"v_mul_f32 v{8+k}, {f2u(SC):#x}, v{8+k}")
    I(f"""
    v_cvt_pk_bf16_f32 v104, v8, v9
    v_cvt_pk_bf16_f32 v105, v10, v11
    buffer_store_dwordx2 v[104:105], v99, {S_WS}, s14 offen sc1
    v_mov_b32 v12, v196
    v_mov_b32 v13, v197
    v_mov_b32 v108, v14
    v_mov_b32 v195, v14
    v_mov_b32 v109, v15
    """)
    g.stamp(4)
    I(f"""
    s_barrier
    buffer_store_dwordx4 v[12:15], v199, {S_WS}, s99 offen sc1
    s_cmp_lg_u32 {sWV}, 7
    s_cbranch_scc1 L_B_pr
    v_mov_b32 v4, {OOB}
    v_cmp_eq_u32 vcc, 0, v1
    s_lshl_b32 s14, {sX}, 5
    s_add_u32 s14, s14, {sS}
    v_cndmask_b32 v7, v4, 0, vcc
    s_lshl_b32 s14, s14, 4
    s_add_u32 s14, s14, {FLAGS}
    s_getreg_b32 s15, hwreg(HW_REG_XCC_ID)
    v_mov_b32 v110, s15
    v_mov_b32 v111, 0
    buffer_store_dwordx4 v[108:111], v7, {S_WS}, s14 offen sc1
    L_B_pr:
    """)
    if P["pf_rows"]:
        n = P["pf_rows"] // 64
        I(f"""
        s_lshl_b32 s12, {sX}, 11
        s_lshl_b32 s13, {sM}, 7
        s_add_u32 s12, s12, s13
        s_add_u32 s12, s12, {128 - P["pf_rows"]}
        s_mul_i32 s13, {sWV}, {8*n}
        s_add_u32 s12, s12, s13
        s_lshl_b32 s12, s12, 10
        v_lshlrev_b32 v4, 7, v1
        """)
        for i in range(n):
            I(f"buffer_load_dword v{194+i}, v4, {S_CKV}, s12 offen nt\ns_add_u32 s12, s12, 8192")
    I(f"""
    s_lshl_b32 s12, {sX}, 4
    s_add_u32 s12, s12, {sM}
    s_lshl_b32 s12, s12, 7
    s_add_u32 s12, s12, {XH}
    s_mov_b32 s92, 0
    s_cmp_lg_u32 {sWV}, 0
    s_cbranch_scc1 L_B_hd
    L_B_hp:
    buffer_load_dwordx2 v[12:13], {VZ}, {S_WS}, s12 offen sc1
    s_waitcnt vmcnt(0)
    v_cmp_eq_u64 vcc, v[12:13], v[108:109]
    s_add_u32 s92, s92, 1
    s_cbranch_vccnz L_B_hd
    s_sleep 4
    s_cmp_lt_u32 s92, 200
    s_cbranch_scc1 L_B_hp
    L_B_hd:
    s_barrier
    """)
    g.stamp(26)
    g.label("L_B_p2")
    I(f"""
    s_cmp_ge_u32 {sWV}, 4
    s_cbranch_scc1 L_B_np
    s_lshl_b32 s12, {sX}, 5
    s_lshl_b32 s13, {sM}, 1
    s_add_u32 s12, s12, s13
    s_lshr_b32 s13, {sWV}, 1
    s_add_u32 s12, s12, s13
    s_mul_i32 s12, s12, {C1J}
    s_and_b32 s13, {sWV}, 1
    s_lshl_b32 s13, s13, 13
    s_add_u32 s12, s12, s13
    s_add_u32 s12, s12, {XC1D}
    v_lshlrev_b32 v4, 7, v1
    buffer_load_dword v194, v4, {S_WS}, s12 offen nt
    L_B_np:
    v_lshrrev_b32 v4, 2, v1
    v_lshlrev_b32 v4, 13, v4
    v_and_b32 v6, 3, v1
    v_lshl_add_u32 v4, v6, 4, v4
    s_lshl_b32 s12, {sWV}, 17
    s_lshl_b32 s13, {sH}, 8
    s_add_u32 s12, s12, s13
    s_lshl_b32 s13, {sSUB}, 6
    s_add_u32 s12, s12, s13
    s_lshl_b32 s13, {sWV}, 10
    s_add_u32 s13, s13, {L_WUV}
    """)
    for i in range(4):
        dma("v4", S_WUV, NT, 8192, 1 << 20)
    I(f"""
    s_lshl_b32 s12, {sH}, 7
    s_lshl_b32 s13, {sSUB}, 5
    s_add_u32 s12, s12, s13
    s_mul_i32 s12, s12, 1280
    s_lshl_b32 s13, {sWV}, 10
    s_add_u32 s12, s12, s13
    s_add_u32 s13, s13, {L_WO}
    """)
    for i in range(5):
        dma("v5", S_WO, NT, 8192, 8192)
    if P["w2pf"]:
        I(f"""
        s_cmp_lt_u32 {sX}, 3
        s_cbranch_scc1 L_B_npf
        s_cmp_ge_u32 {sWV}, 4
        s_cbranch_scc1 L_B_npf
        v_min_u32 v4, 53, v1
        v_lshrrev_b32 v7, 1, v4
        v_mul_u32_u24 v7, 1280, v7
        v_and_b32 v4, 1, v4
        v_lshl_add_u32 v7, v4, 7, v7
        s_mul_i32 s12, {sM}, 108
        s_mul_i32 s13, {sWV}, 27
        s_add_u32 s12, s12, s13
        s_mul_i32 s12, s12, 1280
        s_sub_u32 s13, {sX}, 3
        s_lshl_b32 s13, s13, 8
        s_add_u32 s12, s12, s13
        buffer_load_dword v194, v7, {S_W2}, s12 offen {P["w2pf_flag"]}
        L_B_npf:
        """)
    I(f"""
    v_bfe_u32 v4, v1, 2, 2
    v_lshl_add_u32 v4, v2, 3, v4
    v_lshlrev_b32 v16, 6, v4
    v_lshl_add_u32 v16, v6, 3, v16
    s_lshl_b32 s12, {sWV}, 12
    s_add_u32 s12, s12, {L_WUV}
    v_add_u32 v16, s12, v16
    v_mul_u32_u24 v17, 1280, v4
    v_lshl_add_u32 v17, v6, 3, v17
    s_mul_i32 s12, {sWV}, 160
    s_add_u32 s12, s12, {L_WO}
    v_add_u32 v17, s12, v17
    v_and_b32 v18, 7, v3
    v_lshlrev_b32 v18, 10, v18
    v_lshl_add_u32 v18, v2, 4, v18
    s_lshl_b32 s12, {sH}, 13
    s_lshl_b32 s13, {sWV}, 7
    s_add_u32 s12, s12, s13
    s_add_u32 s12, s12, {XC2D}
    v_and_b32 v4, 1, v2
    v_lshl_add_u32 v19, v4, 2, v6
    v_lshlrev_b32 v19, 7, v19
    s_lshl_b32 s13, {sH}, 10
    s_add_u32 s13, s13, {XC2M}
    v_lshl_add_u32 v20, v4, 5, v3
    v_lshlrev_b32 v20, 5, v20
    s_lshl_b32 s14, {sWV}, 2
    v_add_u32 v20, s14, v20
    v_lshlrev_b32 v21, 5, v1
    s_lshl_b32 s14, {sWV}, 7
    v_lshl_add_u32 v22, v1, 1, s14
    v_and_b32 v23, 1, v3
    v_lshlrev_b32 v23, 6, v23
    v_lshl_add_u32 v23, v2, 4, v23
    v_add_u32 v23, s14, v23
    v_and_b32 v24, 1, v3
    v_mul_u32_u24 v24, 2560, v24
    v_lshl_add_u32 v24, v2, 4, v24
    v_lshrrev_b32 v7, 1, v3
    v_lshl_add_u32 v24, v7, 6, v24
    v_mov_b32 v4, 1024
    v_cmp_eq_u32 vcc, 0, v7
    v_cmp_eq_u32 s[100:101], 1, v7
    s_nop 0
    v_cndmask_b32 v25, v4, v23, vcc
    v_cndmask_b32 v26, v4, v23, s[100:101]
    v_cmp_eq_u32 vcc, 2, v7
    v_cmp_eq_u32 s[100:101], 3, v7
    s_nop 0
    v_cndmask_b32 v27, v4, v23, vcc
    v_cndmask_b32 v28, v4, v23, s[100:101]
    v_cmp_eq_u32 vcc, 4, v7
    v_lshlrev_b32 v30, 2, v6
    s_nop 0
    v_cndmask_b32 v29, v4, v23, vcc
    ds_write_b32 v30, {VZ} offset:{L_CT+1024}
    v_mov_b32 v4, {OOB}
    v_cmp_gt_u32 vcc, 10, v3
    s_lshl_b32 s93, {sX}, 4
    s_add_u32 s93, s93, {sM}
    v_cndmask_b32 v24, v4, v24, vcc
    s_mul_i32 s93, s93, 5120
    s_mul_i32 s94, {sWV}, 320
    s_add_u32 s93, s93, s94
    s_add_u32 s93, s93, {XD1}
    """)
    I(f"s_cmp_lg_u32 {sWV}, 7\ns_cbranch_scc1 L_B_nu\nv_mov_b32 v14, v108\nv_mov_b32 v15, v109")
    verify_flags(32, False, False)
    g.label("L_B_nu")
    for r in list(range(8, 16)) + list(range(64, 68)):
        I(f"v_mov_b32 v{r}, 0")
    g.bar("vmcnt(0) lgkmcnt(0)")
    g.stamp(18)
    I(f"""
    ds_read_b32 v4, {VZ} offset:{L_CTRL+8}
    s_mul_i32 s14, {sX}, {16*5120}
    s_lshl_b32 s94, {sM}, 8
    s_add_u32 s14, s14, s94
    s_add_u32 s14, s14, {XD1}
    s_cmp_lg_u32 {sWV}, 0
    s_cbranch_scc1 L_B_np3
    s_cmp_ge_u32 {sM}, 10
    s_cbranch_scc1 L_B_np3
    v_lshrrev_b32 v5, 1, v1
    v_mul_u32_u24 v5, 2560, v5
    v_and_b32 v6, 1, v1
    v_lshl_add_u32 v5, v6, 7, v5
    buffer_load_dword v6, v5, {S_WS}, s14 offen sc1 nt
    L_B_np3:
    s_mul_i32 s95, {sWV}, {2*5120}
    s_add_u32 s14, s14, s95
    v_mul_u32_u24 v30, 2560, v2
    v_lshl_add_u32 v30, v3, 4, v30
    v_and_b32 v7, 1, v2
    v_mul_u32_u24 v31, 2560, v7
    v_lshl_add_u32 v31, v3, 4, v31
    v_lshrrev_b32 v7, 1, v2
    v_lshl_add_u32 v31, v7, 3, v31
    s_mul_i32 s95, {sX}, 5120
    s_add_u32 s95, s95, s94
    s_add_u32 s95, s95, {XD2}
    s_lshl_b32 s94, {sWV}, 9
    v_lshl_add_u32 v133, v1, 3, s94
    v_lshlrev_b32 v134, 3, v1
    """)
    for t in range(2):
        for nu in range(2):
            for tt in range(2):
                r = 96 + (t * 2 + nu) * 4 + 2 * tt
                I(f"ds_read_b64_tr_b16 v[{r}:{r+1}], v16 offset:{(32*t+4*tt)*64+32*nu}")
    for u in range(5):
        for tt in range(2):
            r = 112 + 4 * u + 2 * tt
            I(f"ds_read_b64_tr_b16 v[{r}:{r+1}], v17 offset:{32*u+4*tt*1280}")
    I("s_waitcnt lgkmcnt(0)\nv_readfirstlane_b32 s15, v4")
    g.poll([f"buffer_load_dwordx4 v[32:35], v18, {S_WS}, s12 offen sc1",
            f"buffer_load_dwordx4 v[36:39], v18, {S_WS}, s12 offen offset:64 sc1",
            f"buffer_load_dwordx2 v[48:49], v19, {S_WS}, s13 offen sc1"],
           list(range(32, 40)) + [48, 49], delay=P["d_c2"], backoff=P["bo_c2"])
    g.stamp(10)
    I(f"""
    v_mfma_f32_16x16x32_bf16 v[8:11], v[32:35], v[96:99], v[8:11]
    v_mfma_f32_16x16x32_bf16 v[12:15], v[32:35], v[100:103], v[12:15]
    v_max_f32_dpp v4, v48, v48 quad_perm:[1,0,3,2] row_mask:0xf bank_mask:0xf
    v_mfma_f32_16x16x32_bf16 v[8:11], v[36:39], v[104:107], v[8:11]
    v_mfma_f32_16x16x32_bf16 v[12:15], v[36:39], v[108:111], v[12:15]
    v_max_f32_dpp v4, v4, v4 quad_perm:[2,3,0,1] row_mask:0xf bank_mask:0xf
    v_sub_f32 v48, v48, v4
    v_exp_f32 v48, v48
    s_nop 0
    v_mul_f32 v4, v48, v49
    s_nop 1
    v_add_f32_dpp v4, v4, v4 quad_perm:[1,0,3,2] row_mask:0xf bank_mask:0xf
    s_nop 1
    v_add_f32_dpp v4, v4, v4 quad_perm:[2,3,0,1] row_mask:0xf bank_mask:0xf
    v_rcp_f32 v4, v4
    s_nop 0
    v_mul_f32 v48, v48, v4
    s_nop 1
    v_mov_b32_dpp v40, v48 quad_perm:[0,0,0,0] row_mask:0xf bank_mask:0xf
    v_mov_b32_dpp v42, v48 quad_perm:[1,1,1,1] row_mask:0xf bank_mask:0xf
    v_mov_b32_dpp v44, v48 quad_perm:[2,2,2,2] row_mask:0xf bank_mask:0xf
    v_mov_b32_dpp v46, v48 quad_perm:[3,3,3,3] row_mask:0xf bank_mask:0xf
    v_mul_f32 v5, v40, v8
    v_fmac_f32 v5, v42, v9
    v_mul_f32 v6, v40, v12
    v_fmac_f32 v5, v44, v10
    v_fmac_f32 v6, v42, v13
    v_fmac_f32 v5, v46, v11
    v_fmac_f32 v6, v44, v14
    ds_write_b32 v20, v5 offset:{L_DR}
    v_fmac_f32 v6, v46, v15
    ds_write_b32 v20, v6 offset:{L_DR+512}
    """)
    g.bar()
    I(f"""
    ds_read_b128 v[32:35], v21 offset:{L_DR}
    ds_read_b128 v[36:39], v21 offset:{L_DR+16}
    s_waitcnt lgkmcnt(0)
    v_add_f32 v32, v32, v33
    v_add_f32 v34, v34, v35
    v_add_f32 v36, v36, v37
    v_add_f32 v38, v38, v39
    v_add_f32 v32, v32, v34
    v_add_f32 v36, v36, v38
    v_add_f32 v32, v32, v36
    v_cvt_pk_bf16_f32 v32, v32, v32
    ds_write_b16 v22, v32 offset:{L_CT}
    s_waitcnt lgkmcnt(0)
    """)
    for u in range(5):
        I(f"ds_read_b128 v[{40+4*u}:{43+4*u}], v{25+u} offset:{L_CT}")
    for u in range(5):
        I(f"s_waitcnt lgkmcnt({4-u})")
        I(f"v_mfma_f32_16x16x32_bf16 v[64:67], v[{112+4*u}:{115+4*u}], v[{40+4*u}:{43+4*u}], v[64:67]")
    I(f"""
    s_nop 5
    s_cmp_eq_u32 s15, 1
    s_cbranch_scc1 L_e_fast
    buffer_store_dwordx4 v[64:67], v24, {S_WS}, s93 offen sc1
    s_branch L_e_done
    L_e_fast:
    buffer_store_dwordx4 v[64:67], v24, {S_WS}, s93 offen
    L_e_done:
    """)
    g.stamp(11)
    if P["wb"] == 1:
        I(f"""
        s_cmp_lg_u32 {sWV}, 1
        s_cbranch_scc1 L_nwb
        s_cmp_lg_u32 {sM}, 15
        s_cbranch_scc1 L_nwb
        s_sleep 40
        buffer_wbl2 sc1
        s_waitcnt vmcnt(0)
        L_nwb:
        """)
    I(f"s_cmp_ge_u32 {sM}, 10\ns_cbranch_scc1 L_fin")
    g.poll([f"buffer_load_dwordx4 v[32:35], v30, {S_WS}, s14 offen sc1"], range(32, 36), delay=P["d_d1"], tmp="v6", backoff=1)
    I(f"""
    v_permlane32_swap_b32 v32, v34
    v_permlane32_swap_b32 v33, v35
    v_add_f32 v32, v32, v34
    v_add_f32 v33, v33, v35
    ds_write_b64 v133, v[32:33] offset:{L_D1}
    """)
    g.bar()
    I(f"s_cmp_lg_u32 {sWV}, 0\ns_cbranch_scc1 L_fin")
    for v in range(8):
        I(f"ds_read_b64 v[{32+2*v}:{33+2*v}], v134 offset:{L_D1+512*v}")
    I("s_waitcnt lgkmcnt(0)")
    g.tree_add(32, 8, 2, 2)
    I(f"buffer_store_dwordx2 v[32:33], v31, {S_WS}, s95 offen sc1")
    g.stamp(12)
    I("s_branch L_fin")

    g.label("L_Awg")
    I(f"""
    s_lshl_b32 s12, {sX}, 11
    s_lshl_b32 s13, {sM}, 7
    s_add_u32 s12, s12, s13
    s_lshl_b32 s13, {sWV}, 4
    s_add_u32 s12, s12, s13
    s_lshl_b32 s12, s12, 10
    s_mul_i32 s13, {sWV}, {16*CPITCH}
    s_add_u32 s13, s13, {L_CKV}
    s_lshr_b32 s101, {sWV}, 1
    s_barrier
    buffer_store_dwordx4 v[12:15], v199, {S_WS}, s99 offen sc1
    """)

    def own_tile(cond):
        lab = g.newlab("Lt")
        lp = g.newlab("Ltl")
        I(f"{cond}\ns_cbranch_scc0 {lab}\ns_mov_b32 s14, 0")
        g.label(lp)
        for i in range(4):
            dma("v5", S_CKV, NT, CPITCH, 1024)
        I(f"s_add_u32 s14, s14, 1\ns_cmp_lt_u32 s14, 4\ns_cbranch_scc1 {lp}")
        g.label(lab)

    own_tile(f"s_cmp_lt_u32 s101, {P['ahead']}")
    I(f"""
    v_and_b32 v16, 7, v3
    v_lshlrev_b32 v16, 1, v16
    v_lshrrev_b32 v4, 3, v3
    v_add_u32 v16, v16, v4
    s_lshl_b32 s14, {sWV}, 4
    v_add_u32 v16, s14, v16
    v_mul_u32_u24 v16, {CPITCH}, v16
    v_lshl_add_u32 v16, v2, 8, v16
    v_add_u32 v16, {L_CKV}, v16
    v_and_b32 v17, 1, v2
    v_lshlrev_b32 v17, 3, v17
    v_bfe_u32 v4, v1, 2, 2
    v_lshl_add_u32 v17, v4, 1, v17
    v_lshrrev_b32 v4, 1, v2
    v_add_u32 v17, v17, v4
    v_mul_u32_u24 v17, {CPITCH}, v17
    v_and_b32 v4, 3, v1
    v_lshl_add_u32 v17, v4, 3, v17
    s_lshl_b32 s14, {sWV}, 7
    s_add_u32 s14, s14, {L_CKV}
    v_add_u32 v17, s14, v17
    v_mul_u32_u24 v18, {CPITCH}, v3
    v_lshl_add_u32 v18, v2, 8, v18
    v_lshlrev_b32 v19, 5, v3
    s_lshl_b32 s14, {sWV}, 2
    v_add_u32 v20, s14, v19
    s_lshr_b32 s14, {sWV}, 1
    s_lshl_b32 s14, s14, 10
    s_and_b32 s15, {sWV}, 1
    s_lshl_b32 s15, s15, 3
    s_add_u32 s14, s14, s15
    v_add_u32 v21, s14, v5
    s_mul_i32 s14, {sWV}, {4*CPITCH}
    v_add_u32 v22, s14, v5
    v_lshrrev_b32 v23, 1, v2
    v_and_b32 v4, 7, v3
    v_xor_b32 v23, v23, v4
    v_lshlrev_b32 v23, 4, v23
    v_lshl_add_u32 v23, v3, 7, v23
    v_and_b32 v4, 1, v2
    v_lshl_add_u32 v23, v4, 3, v23
    s_lshl_b32 s14, {sWV}, 12
    s_add_u32 s14, s14, {L_TR}
    v_add_u32 v23, s14, v23
    v_xor_b32 v24, 32, v23
    v_xor_b32 v25, 64, v23
    v_xor_b32 v26, 96, v23
    v_lshrrev_b32 v30, 3, v1
    v_and_b32 v31, 7, v1
    v_xor_b32 v27, v30, v31
    v_lshlrev_b32 v27, 4, v27
    v_lshl_add_u32 v27, v30, 7, v27
    v_add_u32 v27, s14, v27
    s_mov_b32 s14, {C1J}
    v_mul_lo_u32 v28, v30, s14
    v_lshl_add_u32 v28, v31, 4, v28
    v_lshlrev_b32 v29, 7, v1
    v_mov_b32 v4, {OOB}
    v_cmp_gt_u32 vcc, 32, v1
    s_lshr_b32 s94, {sX}, 2
    s_lshl_b32 s94, s94, 15
    v_cndmask_b32 v29, v4, v29, vcc
    s_lshl_b32 s14, {sWV}, 12
    s_add_u32 s94, s94, s14
    s_add_u32 s94, s94, {XB}
    """)
    def send_hint():
        I(f"""
        s_lshl_b32 s14, {sX}, 4
        s_add_u32 s14, s14, {sM}
        s_lshl_b32 s14, s14, 7
        s_add_u32 s14, s14, {XH}
        v_mov_b32 v4, {OOB}
        v_cmp_eq_u32 vcc, 0, v0
        s_nop 1
        v_cndmask_b32 v4, v4, 0, vcc
        buffer_store_dwordx2 v[14:15], v4, {S_WS}, s14 offen sc1
        """)
    xb_loads = [f"buffer_load_dwordx4 v[{96+4*t}:{99+4*t}], v5, {S_WS}, s94 offen offset:{1024*t} sc1" for t in range(4)]
    for kb in range(4):
        I(f"s_cmp_lg_u32 s101, {kb}\ns_cbranch_scc1 L_A_na{kb}")
        I(f"s_waitcnt vmcnt({(5 if P['hint_kb'] == 2 else 4) if kb == 3 else 0})")
        g.stamp(27)
        for j in range(16):
            I(f"ds_read_b128 v[{32+4*j}:{35+4*j}], v16 offset:{16*j}")
        g.label(f"L_A_na{kb}")
        if kb == 2:
            I(f"s_cmp_lg_u32 {sWV}, 0\ns_cbranch_scc1 L_A_w2")
            verify_flags(112, True, True, first_wait="vmcnt(0)", onlyA=True)
            g.label("L_A_w2")
        if kb in (1, 2):
            g.bar()
        else:
            g.bar(None)
        if kb == P["fl_kb"]:
            I(f"s_cmp_lg_u32 {sWV}, 0\ns_cbranch_scc1 L_A_nf")
            for i in range(4):
                I(f"buffer_load_dwordx4 v[{112+4*i}:{115+4*i}], v5, {S_WS}, 0 offen offset:{FLAGS+1024*i} sc1")
            g.label("L_A_nf")
        if kb + P["ahead"] < 4:
            own_tile(f"s_cmp_eq_u32 s101, {kb + P['ahead']}")
        if kb == 2:
            for l in xb_loads:
                I(l)
            if P["hint_kb"] == 2:
                send_hint()
        if kb == 3:
            g.stamp(6)
        for tau in range(4):
            for t in range(2):
                dst = PVA + (tau * 4 + kb) * 4 + 2 * t
                I(f"ds_read_b64_tr_b16 v[{dst}:{dst+1}], v17 offset:{16*t*CPITCH + 32*tau}")
        if kb < 3:
            I(f"v_add_u32 v17, {32*CPITCH}, v17")
    I(f"ds_read_b32 v6, {VZ} offset:{L_CTRL+8}")
    g.poll(xb_loads, range(96, 112), preissued=True, backoff=P["bo_b"])
    g.stamp(5)
    for t in range(4):
        I(f"ds_write_b128 v22, v[{96+4*t}:{99+4*t}] offset:{L_QA+CPITCH*t}")
    if P["hint_kb"] == 4:
        send_hint()
    I(f"""
    s_lshl_b32 s93, {sX}, 4
    s_add_u32 s93, s93, {sM}
    s_lshl_b32 s93, s93, 8
    s_add_u32 s93, s93, {XC1M}
    s_cmp_lg_u32 {sWV}, 3
    s_cbranch_scc1 L_A_npm
    v_lshlrev_b32 v4, 2, v1
    buffer_load_dword v194, v4, {S_WS}, s93 offen sc1 nt
    L_A_npm:
    """)
    for r in range(8, 16):
        I(f"v_mov_b32 v{r}, 0")
    g.bar()
    I("v_readfirstlane_b32 s15, v6")
    seq = [(j, ht) for j in range(16) for ht in range(2)]
    def qread(i):
        j, ht = seq[i]
        r = 96 + 4 * (i % 8)
        I(f"ds_read_b128 v[{r}:{r+3}], v18 offset:{L_QA+16*CPITCH*ht+16*j}")
    for i in range(8):
        qread(i)
    for i in range(32):
        j, ht = seq[i]
        r = 96 + 4 * (i % 8)
        I(f"s_waitcnt lgkmcnt({min(7, 31 - i)})")
        I(f"v_mfma_f32_16x16x32_bf16 v[{8+4*ht}:{11+4*ht}], v[{32+4*j}:{35+4*j}], v[{r}:{r+3}], v[{8+4*ht}:{11+4*ht}]")
        if i + 8 < 32:
            qread(i + 8)
    for r in range(32, 40):
        I(f"v_mov_b32 v{r}, 0")
    I(f"""
    v_max_f32 v4, v8, v9
    v_max_f32 v6, v12, v13
    v_max3_f32 v4, v4, v10, v11
    v_max3_f32 v6, v6, v14, v15
    s_nop 1
    v_permlane16_swap_b32 v4, v6
    v_max_f32 v4, v4, v6
    v_mov_b32 v6, v4
    s_nop 1
    v_permlane32_swap_b32 v4, v6
    v_max_f32 v4, v4, v6
    """)
    I(f"""
    v_and_b32 v6, 1, v2
    v_lshl_add_u32 v7, v6, 9, v20
    ds_write_b32 v7, v4 offset:{L_MB}
    """)
    g.stamp(20)
    for r in range(40, 64):
        I(f"v_mov_b32 v{r}, 0")
    g.bar()
    g.stamp(21)
    I(f"""
    ds_read_b128 v[96:99], v19 offset:{L_MB}
    ds_read_b128 v[100:103], v19 offset:{L_MB+16}
    ds_read_b128 v[104:107], v19 offset:{L_MB+512}
    ds_read_b128 v[108:111], v19 offset:{L_MB+528}
    s_waitcnt lgkmcnt(2)
    v_max3_f32 v4, v96, v97, v98
    v_max3_f32 v4, v4, v99, v100
    v_max3_f32 v4, v4, v101, v102
    v_max_f32 v4, v4, v103
    s_waitcnt lgkmcnt(0)
    v_max3_f32 v6, v104, v105, v106
    v_max3_f32 v6, v6, v107, v108
    v_max3_f32 v6, v6, v109, v110
    v_max_f32 v6, v6, v111
    """)
    for k in range(4):
        I(f"v_sub_f32 v{8+k}, v{8+k}, v4\nv_sub_f32 v{12+k}, v{12+k}, v6")
    for k in range(8):
        I(f"v_exp_f32 v{8+k}, v{8+k}")
    I(f"""
    s_nop 0
    v_cvt_pk_bf16_f32 v96, v8, v9
    v_cvt_pk_bf16_f32 v97, v10, v11
    v_cvt_pk_bf16_f32 v98, v12, v13
    v_cvt_pk_bf16_f32 v99, v14, v15
    ds_write_b64 v21, v[96:97] offset:{L_PB}
    ds_write_b64 v21, v[98:99] offset:{L_PB+4096}
    v_add_f32 v4, v8, v9
    v_add_f32 v6, v12, v13
    v_add_f32 v8, v10, v11
    v_add_f32 v9, v14, v15
    v_add_f32 v4, v4, v8
    v_add_f32 v6, v6, v9
    s_nop 1
    v_permlane16_swap_b32 v4, v6
    v_add_f32 v4, v4, v6
    v_mov_b32 v6, v4
    s_nop 1
    v_permlane32_swap_b32 v4, v6
    v_add_f32 v4, v4, v6
    ds_write_b32 v7, v4 offset:{L_LB}
    s_mul_i32 s12, {sX}, {32*C1J}
    s_lshl_b32 s13, {sM}, 10
    s_add_u32 s12, s12, s13
    s_lshl_b32 s13, {sWV}, 7
    s_add_u32 s12, s12, s13
    s_add_u32 s12, s12, {XC1D}
    s_lshl_b32 s13, {sX}, 12
    s_lshl_b32 s14, {sM}, 3
    s_add_u32 s13, s13, s14
    s_add_u32 s13, s13, {XC1M}
    v_and_b32 v6, 31, v1
    v_lshlrev_b32 v6, 5, v6
    """)
    g.bar()
    g.stamp(22)
    for q in range(8):
        I(f"ds_read_b128 v[{64+4*q}:{67+4*q}], v5 offset:{L_PB+1024*q}")
    I("s_cmp_eq_u32 s15, 1\ns_cbranch_scc1 L_pv_fast")
    for fl, lab in (("sc1", None), ("", "L_pv_fast")):
        if lab:
            g.label(lab)
        for ht in range(2):
            I(f"s_waitcnt lgkmcnt({4 if ht == 0 else 0})")
            for tau in range(4):
                for kb in range(4):
                    acc = 32 + (tau * 2 + ht) * 4
                    a = PVA + (tau * 4 + kb) * 4
                    pb = 64 + (ht * 4 + kb) * 4
                    I(f"v_mfma_f32_16x16x32_bf16 v[{acc}:{acc+3}], v[{a}:{a+3}], v[{pb}:{pb+3}], v[{acc}:{acc+3}]")
                if ht == 1:
                    if tau == 0:
                        for tq in range(3):
                            acc = 32 + (tq * 2) * 4
                            I(f"v_cvt_pk_bf16_f32 v{acc}, v{acc}, v{acc+1}\nv_cvt_pk_bf16_f32 v{acc+1}, v{acc+2}, v{acc+3}")
                            I(f"ds_write_b64 v{23+tq}, v[{acc}:{acc+1}]")
                    if tau == 1:
                        acc = 32 + 6 * 4
                        I(f"v_cvt_pk_bf16_f32 v{acc}, v{acc}, v{acc+1}\nv_cvt_pk_bf16_f32 v{acc+1}, v{acc+2}, v{acc+3}")
                        I(f"ds_write_b64 v26, v[{acc}:{acc+1}]")
                        I("s_waitcnt lgkmcnt(0)")
                        I("ds_read_b128 v[96:99], v27\nds_read_b128 v[100:103], v27 offset:1024")
                    if tau == 2:
                        I("s_waitcnt lgkmcnt(1)")
                        I(f"buffer_store_dwordx4 v[96:99], v28, {S_WS}, s12 offen {fl}")
                        I(f"s_add_u32 s12, s12, {8*C1J}")
                        I("s_waitcnt lgkmcnt(0)")
                        I(f"buffer_store_dwordx4 v[100:103], v28, {S_WS}, s12 offen {fl}")
                        I(f"s_add_u32 s12, s12, {8*C1J}")
        I(f"""
        ds_read_b128 v[112:115], v6 offset:{L_MB}
        ds_read_b128 v[116:119], v6 offset:{L_MB+16}
        ds_read_b128 v[120:123], v6 offset:{L_LB}
        ds_read_b128 v[124:127], v6 offset:{L_LB+16}
        """)
        for tau in range(4):
            acc = 32 + (tau * 2 + 1) * 4
            I(f"v_cvt_pk_bf16_f32 v{acc}, v{acc}, v{acc+1}\nv_cvt_pk_bf16_f32 v{acc+1}, v{acc+2}, v{acc+3}")
            I(f"ds_write_b64 v{23+tau}, v[{acc}:{acc+1}] offset:2048")
        I("s_waitcnt lgkmcnt(0)")
        I("ds_read_b128 v[104:107], v27 offset:2048\nds_read_b128 v[108:111], v27 offset:3072")
        g.stamp(23)
        I(f"""
        v_max3_f32 v8, v112, v113, v114
        v_max3_f32 v8, v8, v115, v116
        v_max3_f32 v8, v8, v117, v118
        v_max_f32 v8, v8, v119
        s_waitcnt lgkmcnt(1)
        buffer_store_dwordx4 v[104:107], v28, {S_WS}, s12 offen {fl}
        s_add_u32 s12, s12, {8*C1J}
        s_waitcnt lgkmcnt(0)
        buffer_store_dwordx4 v[108:111], v28, {S_WS}, s12 offen {fl}
        v_add_f32 v9, v120, v121
        v_add_f32 v10, v122, v123
        v_add_f32 v11, v124, v125
        v_add_f32 v12, v126, v127
        v_add_f32 v9, v9, v10
        v_add_f32 v11, v11, v12
        v_add_f32 v9, v9, v11
        """)
        g.bar("vmcnt(0)")
        g.stamp(25)
        I(f"s_cmp_lg_u32 {sWV}, 0\ns_cbranch_scc1 L_c1_done")
        I(f"buffer_store_dwordx2 v[8:9], v29, {S_WS}, s13 offen {fl}")
        if not lab:
            I("s_branch L_c1_done")
    g.label("L_c1_done")
    g.stamp(7)
    I(f"""
    v_lshlrev_b32 v16, 3, v30
    s_lshl_b32 s14, {sX}, 5
    s_lshl_b32 s13, {sM}, 1
    s_add_u32 s14, s14, s13
    s_mul_i32 s12, s14, {C1J}
    v_lshlrev_b32 v7, 10, v30
    v_lshl_add_u32 v7, v31, 4, v7
    v_add_u32 v6, 8192, v7
    s_lshl_b32 s13, {sWV}, 7
    s_add_u32 s12, s12, s13
    s_add_u32 s12, s12, {XC1D}
    s_add_u32 s14, s12, {C1J}
    v_lshlrev_b32 v17, 4, v31
    v_lshl_add_u32 v17, v2, 2, v17
    v_bfe_u32 v4, v1, 3, 1
    v_lshl_add_u32 v17, v4, 13, v17
    s_lshl_b32 s95, {sM}, 4
    s_add_u32 s95, s95, {sX}
    s_lshl_b32 s94, s95, 10
    s_add_u32 s94, s94, s13
    s_add_u32 s94, s94, {XC2D}
    s_lshl_b32 s95, s95, 7
    s_add_u32 s95, s95, {XC2M}
    v_lshlrev_b32 v18, 7, v1
    v_and_b32 v4, 0x1f7, v0
    v_mov_b32 v19, {OOB}
    v_cmp_eq_u32 vcc, 0, v4
    s_nop 1
    v_cndmask_b32 v18, v19, v18, vcc
    """)
    g.poll([f"buffer_load_dwordx2 v[{32+2*q}:{33+2*q}], v16, {S_WS}, s93 offen offset:{64*q} sc1" for q in range(4)],
           range(32, 40), delay=P["d_c1"], backoff=1)
    I(f"""
    buffer_load_dwordx4 v[64:67], v7, {S_WS}, s12 offen sc1
    buffer_load_dwordx4 v[68:71], v6, {S_WS}, s12 offen sc1
    buffer_load_dwordx4 v[72:75], v7, {S_WS}, s14 offen sc1
    buffer_load_dwordx4 v[76:79], v6, {S_WS}, s14 offen sc1
    """)
    g.stamp(8)
    I(f"""
    v_max_f32 v8, v32, v34
    v_max_f32 v10, v36, v38
    s_nop 1
    v_max_f32_dpp v8, v8, v8 row_ror:8 row_mask:0xf bank_mask:0xf
    v_max_f32_dpp v10, v10, v10 row_ror:8 row_mask:0xf bank_mask:0xf
    v_mov_b32 v12, v8
    v_mov_b32 v13, v10
    s_nop 0
    v_permlane16_swap_b32 v8, v12
    v_permlane16_swap_b32 v10, v13
    v_max_f32 v8, v8, v12
    v_max_f32 v10, v10, v13
    v_mov_b32 v12, v8
    v_mov_b32 v13, v10
    s_nop 0
    v_permlane32_swap_b32 v8, v12
    v_permlane32_swap_b32 v10, v13
    v_max_f32 v8, v8, v12
    v_max_f32 v10, v10, v13
    v_sub_f32 v32, v32, v8
    v_sub_f32 v34, v34, v8
    v_sub_f32 v36, v36, v10
    v_sub_f32 v38, v38, v10
    v_exp_f32 v32, v32
    v_exp_f32 v34, v34
    v_exp_f32 v36, v36
    v_exp_f32 v38, v38
    s_nop 0
    v_mul_f32 v9, v32, v33
    v_mul_f32 v11, v36, v37
    v_fmac_f32 v9, v34, v35
    v_fmac_f32 v11, v38, v39
    s_nop 1
    v_add_f32_dpp v9, v9, v9 row_ror:8 row_mask:0xf bank_mask:0xf
    v_add_f32_dpp v11, v11, v11 row_ror:8 row_mask:0xf bank_mask:0xf
    v_mov_b32 v12, v9
    v_mov_b32 v13, v11
    s_nop 0
    v_permlane16_swap_b32 v9, v12
    v_permlane16_swap_b32 v11, v13
    v_add_f32 v9, v9, v12
    v_add_f32 v11, v11, v13
    v_mov_b32 v12, v9
    v_mov_b32 v13, v11
    s_nop 0
    v_permlane32_swap_b32 v9, v12
    v_permlane32_swap_b32 v11, v13
    v_add_f32 v9, v9, v12
    v_add_f32 v11, v11, v13
    v_cmp_eq_u32 vcc, 8, v1
    s_nop 1
    v_cndmask_b32 v8, v8, v10, vcc
    v_cndmask_b32 v9, v9, v11, vcc
    buffer_store_dwordx2 v[8:9], v18, {S_WS}, s95 offen sc1
    """)
    if diag and not P.get("lite"):
        I("s_waitcnt vmcnt(1)")
        g.stamp(24)
    for q in range(4):
        hh, i = q >> 1, q & 1
        ab = 40 + 8 * hh
        I(f"s_waitcnt vmcnt({4-q})")
        for d in range(4):
            src = 64 + 4 * q + d
            I(f"v_lshlrev_b32 v12, 16, v{src}\nv_and_b32 v13, 0xffff0000, v{src}")
            if i == 0:
                I(f"v_mul_f32 v{ab+2*d}, v{32+2*q}, v12\nv_mul_f32 v{ab+1+2*d}, v{32+2*q}, v13")
            else:
                I(f"v_fmac_f32 v{ab+2*d}, v{32+2*q}, v12\nv_fmac_f32 v{ab+1+2*d}, v{32+2*q}, v13")
    I("s_nop 1")
    for ab in (40, 48):
        for k in (0, 1, 4, 5):
            I(f"v_permlane16_swap_b32 v{ab+k}, v{ab+2+k}")
    for ab in (40, 48):
        for k in (0, 1, 4, 5):
            I(f"v_add_f32 v{ab+k}, v{ab+k}, v{ab+2+k}")
    I("s_nop 0")
    for ab in (40, 48):
        for k in (0, 1):
            I(f"v_permlane32_swap_b32 v{ab+k}, v{ab+4+k}")
    I(f"""
    v_add_f32 v40, v40, v44
    v_add_f32 v41, v41, v45
    v_add_f32 v48, v48, v52
    v_add_f32 v49, v49, v53
    v_cmp_lt_u32 vcc, 7, v3
    v_add_f32_dpp v40, v40, v40 row_ror:8 row_mask:0xf bank_mask:0xf
    v_add_f32_dpp v41, v41, v41 row_ror:8 row_mask:0xf bank_mask:0xf
    v_add_f32_dpp v48, v48, v48 row_ror:8 row_mask:0xf bank_mask:0xf
    v_add_f32_dpp v49, v49, v49 row_ror:8 row_mask:0xf bank_mask:0xf
    v_cvt_pk_bf16_f32 v40, v40, v41
    v_cvt_pk_bf16_f32 v48, v48, v49
    v_cndmask_b32 v40, v40, v48, vcc
    buffer_store_dword v40, v17, {S_WS}, s94 offen sc1
    """)
    g.stamp(9)
    g.bar("vmcnt(0)")
    I(f"s_cmp_eq_u32 {sUP}, 0\ns_cbranch_scc1 L_down")
    g.sleep(P["d_w13"])
    I(f"""
    v_mul_u32_u24 v4, 3456, v30
    v_and_b32 v6, 1, v2
    s_and_b32 s12, {sWV}, 1
    s_lshl_b32 s12, s12, 1
    v_add_u32 v6, s12, v6
    v_lshlrev_b32 v6, 1, v6
    v_xor_b32 v6, v6, v31
    v_lshl_add_u32 v4, v6, 4, v4
    s_mul_i32 s12, {sKC}, 160
    s_and_b32 s14, {sWV}, 3
    s_lshl_b32 s13, s14, 3
    s_add_u32 s12, s12, s13
    s_mul_i32 s12, s12, 3456
    s_lshl_b32 s13, {sFC}, 7
    s_add_u32 s12, s12, s13
    s_lshl_b32 s13, s14, 10
    s_cmp_ge_u32 {sWV}, 4
    s_cbranch_scc1 L_up_w3
    s_add_u32 s13, s13, {L_W1}
    """)
    for m in range(5):
        dma("v4", S_W1, NT, 4096, 32 * 3456)
    I("s_branch L_up_ld")
    g.label("L_up_w3")
    I(f"s_add_u32 s13, s13, {L_W3}")
    for m in range(5):
        dma("v4", S_W3, NT, 4096, 32 * 3456)
    g.label("L_up_ld")
    I(f"""
    v_bfe_u32 v4, v1, 3, 1
    v_and_b32 v6, 1, v2
    v_lshl_add_u32 v4, v6, 1, v4
    v_xor_b32 v4, s14, v4
    v_lshlrev_b32 v16, 5, v4
    v_bfe_u32 v4, v1, 2, 2
    v_lshl_add_u32 v4, v2, 3, v4
    v_lshl_add_u32 v16, v4, 7, v16
    v_and_b32 v4, 3, v1
    v_lshl_add_u32 v16, v4, 3, v16
    s_lshr_b32 s12, {sWV}, 2
    s_mul_i32 s12, s12, {L_W3-L_W1}
    v_add_u32 v16, s12, v16
    v_min_u32 v17, 2, v3
    v_mul_u32_u24 v17, 320, v17
    v_lshl_add_u32 v17, v2, 4, v17
    v_lshlrev_b32 v18, 2, v4
    v_mov_b32 v4, {OOB}
    v_cmp_gt_u32 vcc, 16, v1
    s_lshl_b32 s93, {sX}, 4
    s_add_u32 s93, s93, {sM}
    v_cndmask_b32 v19, v4, v5, vcc
    s_lshl_b32 s93, s93, 11
    s_andn2_b32 s94, s93, 0x1fff
    s_lshl_b32 s13, {sWV}, 8
    s_add_u32 s93, s93, s13
    s_add_u32 s93, s93, {XU}
    s_lshl_b32 s13, {sKC}, 8
    s_add_u32 s94, s94, s13
    s_add_u32 s94, s94, {XU}
    v_lshlrev_b32 v20, 11, v2
    v_lshl_add_u32 v20, v3, 4, v20
    v_min_u32 v21, 39, v1
    v_mov_b32 v8, 0
    v_mov_b32 v9, 0
    v_mov_b32 v10, 0
    v_mov_b32 v11, 0
    """)
    I(f"""
    s_sub_u32 s12, {sWV}, 1
    s_cmp_ge_u32 s12, 2
    s_cbranch_scc1 L_up_nx
    v_lshlrev_b32 v22, 3, v21
    s_mul_i32 s13, s12, 1280
    s_mul_i32 s14, {sKC}, 320
    s_add_u32 s13, s13, s14
    buffer_load_dwordx2 v[194:195], v22, {S_X}, s13 offen
    L_up_nx:
    s_cmp_lg_u32 {sWV}, 3
    s_cbranch_scc1 L_up_n1
    v_mov_b32 v12, 0x3f803f80
    v_mov_b32 v13, 0x3f803f80
    v_lshlrev_b32 v4, 3, v21
    ds_write_b64 v4, v[12:13] offset:{L_HB+640}
    L_up_n1:
    s_cmp_lg_u32 {sWV}, 0
    s_cbranch_scc1 L_up_n0
    v_lshrrev_b32 v4, 2, v3
    v_lshlrev_b32 v4, 11, v4
    v_bfe_u32 v6, v3, 1, 1
    v_lshl_add_u32 v4, v6, 10, v4
    v_and_b32 v6, 1, v3
    v_lshl_add_u32 v4, v6, 7, v4
    buffer_load_dword v194, v4, {S_WS}, s94 offen sc1 nt
    L_up_n0:
    """)
    g.bar("vmcnt(0) lgkmcnt(0)")
    g.stamp(19)
    for st in range(5):
        for tt in range(2):
            I(f"ds_read_b64_tr_b16 v[{96+4*st+2*tt}:{97+4*st+2*tt}], v16 offset:{L_W1+4096*st+512*tt}")
    I(f"s_cmp_ge_u32 s12, 2\ns_cbranch_scc1 L_up_mm")
    I(f"""
    v_lshlrev_b32 v7, 4, v21
    s_mul_i32 s13, s12, 2560
    s_mul_i32 s14, {sKC}, 640
    s_add_u32 s13, s13, s14
    s_add_u32 s13, s13, {XD2}
    s_mul_i32 s14, s12, 320
    v_add_u32 v22, s14, v22
    """)
    if P["t_d2"]:
        I(f"ds_read_b32 v4, {VZ} offset:{L_CTRL}\ns_waitcnt lgkmcnt(0)")
        until(P["t_d2"], "v4")
    d2l = lambda b: [f"s_add_u32 s14, s13, {i*5120}\nbuffer_load_dwordx4 v[{b+4*i}:{b+3+4*i}], v7, {S_WS}, s14 offen sc1"
                     for i in range(8)]
    if P["pipe"] > 1:
        g.poll_pipe(d2l, 32, [32, 128, 160][:min(3, P["pipe"])], gap=P["gap"])
    else:
        g.poll(d2l(32), range(32, 64), delay=P["d_d2"], tmp="v4", backoff=P["bo_d2"])
    g.stamp(13)
    g.tree_add(32, 8, 4, 4)
    h_from_sum(194)
    I(f"ds_write_b64 v22, v[8:9] offset:{L_HB}")
    g.signal(C_H)
    I(f"""
    v_lshlrev_b32 v32, 16, v8
    v_and_b32 v33, 0xffff0000, v8
    v_lshlrev_b32 v34, 16, v9
    v_and_b32 v35, 0xffff0000, v9
    v_add_f32 v12, v32, v33
    v_add_f32 v13, v34, v35
    v_add_f32 v12, v12, v13
    v_mul_f32 v13, v32, v32
    v_fmac_f32 v13, v33, v33
    v_fmac_f32 v13, v34, v34
    v_fmac_f32 v13, v35, v35
    v_cmp_gt_u32 vcc, 40, v1
    v_mov_b32 v8, 0
    v_mov_b32 v9, 0
    v_cndmask_b32 v12, 0, v12, vcc
    v_cndmask_b32 v13, 0, v13, vcc
    s_nop 1
    v_permlane16_swap_b32 v12, v13
    v_add_f32 v12, v12, v13
    v_mov_b32 v13, v12
    s_nop 1
    v_permlane32_swap_b32 v12, v13
    v_add_f32 v12, v12, v13
    """)
    g.wave_allreduce(12, 13, rows=False)
    I(f"""
    v_and_b32 v4, 1, v2
    v_lshlrev_b32 v4, 2, v4
    s_lshl_b32 s14, s12, 3
    v_add_u32 v4, s14, v4
    ds_write_b32 v4, v12 offset:{L_STAT}
    """)
    g.signal(C_U)
    g.label("L_up_mm")
    g.waitc(C_H, 2)
    for st in range(5):
        I(f"ds_read_b128 v[{32+4*st}:{35+4*st}], v17 offset:{L_HB+64*st}")
    for st in range(5):
        I(f"s_waitcnt lgkmcnt({4-st})")
        I(f"v_mfma_f32_16x16x32_bf16 v[8:11], v[{32+4*st}:{35+4*st}], v[{96+4*st}:{99+4*st}], v[8:11]")
    g.waitc(C_U, 2)
    I(f"""
    ds_read_b32 v12, v18 offset:{L_STAT}
    s_waitcnt lgkmcnt(0)
    s_nop 1
    v_mov_b32 v11, v12
    s_cmp_eq_u32 s15, 1
    s_cbranch_scc1 L_u_fast
    buffer_store_dwordx4 v[8:11], v19, {S_WS}, s93 offen sc1
    s_branch L_u_done
    L_u_fast:
    buffer_store_dwordx4 v[8:11], v19, {S_WS}, s93 offen
    L_u_done:
    """)
    g.stamp(12)
    I(f"s_cmp_lg_u32 {sWV}, 0\ns_cbranch_scc1 L_fin")
    I(f"""
    v_lshlrev_b32 v16, 5, v2
    v_lshl_add_u32 v16, v3, 1, v16
    v_and_b32 v4, 0x21, v1
    v_mov_b32 v6, {OOB}
    v_cmp_eq_u32 vcc, 0, v4
    s_lshl_b32 s13, {sFC}, 2
    s_add_u32 s13, s13, {sKC}
    v_cndmask_b32 v16, v6, v16, vcc
    s_lshl_b32 s13, s13, 7
    s_add_u32 s13, s13, {XE}
    """)
    g.poll([f"buffer_load_dwordx4 v[32:35], v20, {S_WS}, s94 offen sc1",
            f"buffer_load_dwordx4 v[36:39], v20, {S_WS}, s94 offen offset:1024 sc1"],
           range(32, 40), delay=P["d_u"], backoff=1)
    g.stamp(13)
    for k in range(7):
        I(f"v_mov_b32 v{40+k}, v{32+k}")
    for k in range(7):
        I(f"v_permlane16_swap_b32 v{32+k}, v{40+k}")
    for k in range(7):
        I(f"v_add_f32 v{32+k}, v{32+k}, v{40+k}")
    for k in range(7):
        I(f"v_mov_b32 v{40+k}, v{32+k}")
    for k in range(7):
        I(f"v_permlane32_swap_b32 v{32+k}, v{40+k}")
    for k in range(7):
        I(f"v_add_f32 v{32+k}, v{32+k}, v{40+k}")
    I(f"""
    v_mov_b32_dpp v40, v35 quad_perm:[0,0,0,0] row_mask:0xf bank_mask:0xf
    v_mov_b32_dpp v41, v35 quad_perm:[1,1,1,1] row_mask:0xf bank_mask:0xf
    v_mov_b32_dpp v42, v35 quad_perm:[2,2,2,2] row_mask:0xf bank_mask:0xf
    v_mov_b32_dpp v43, v35 quad_perm:[3,3,3,3] row_mask:0xf bank_mask:0xf
    v_mul_f32 v40, {f2u(1.0/640):#x}, v40
    v_mul_f32 v41, {f2u(1.0/640):#x}, v41
    v_mul_f32 v42, {f2u(1.0/640):#x}, v42
    v_mul_f32 v43, {f2u(1.0/640):#x}, v43
    v_fma_f32 v41, -v40, v40, v41
    v_fma_f32 v43, -v42, v42, v43
    v_max_f32 v41, 0, v41
    v_max_f32 v43, 0, v43
    v_add_f32 v41, {f2u(1e-5):#x}, v41
    v_add_f32 v43, {f2u(1e-5):#x}, v43
    v_rsq_f32 v41, v41
    v_rsq_f32 v43, v43
    v_fma_f32 v32, -v40, v34, v32
    v_fma_f32 v33, -v42, v34, v33
    v_fma_f32 v36, -v40, v38, v36
    v_fma_f32 v37, -v42, v38, v37
    v_mul_f32 v32, v32, v41
    v_mul_f32 v33, v33, v43
    v_mul_f32 v36, v36, v41
    v_mul_f32 v37, v37, v43
    v_cvt_pk_bf16_f32 v8, v32, v33
    v_cvt_pk_bf16_f32 v9, v36, v37
    v_lshlrev_b32 v32, 16, v8
    v_and_b32 v33, 0xffff0000, v8
    v_lshlrev_b32 v34, 16, v9
    v_and_b32 v35, 0xffff0000, v9
    v_mul_f32 v36, {f2u(-1.4426950408889634):#x}, v32
    v_mul_f32 v37, {f2u(-1.4426950408889634):#x}, v33
    v_exp_f32 v36, v36
    v_exp_f32 v37, v37
    s_nop 0
    v_add_f32 v36, 1.0, v36
    v_add_f32 v37, 1.0, v37
    v_rcp_f32 v36, v36
    v_rcp_f32 v37, v37
    s_nop 0
    v_mul_f32 v32, v32, v36
    v_mul_f32 v33, v33, v37
    v_cvt_pk_bf16_f32 v8, v32, v33
    v_lshlrev_b32 v32, 16, v8
    v_and_b32 v33, 0xffff0000, v8
    v_mul_f32 v32, v32, v34
    v_mul_f32 v33, v33, v35
    v_cmp_eq_u32 vcc, 1, v2
    s_nop 0
    v_mov_b32_dpp v34, v32 row_ror:15 row_mask:0xf bank_mask:0xf
    v_mov_b32_dpp v35, v33 row_ror:15 row_mask:0xf bank_mask:0xf
    v_cvt_pk_bf16_f32 v8, v32, v34
    v_cvt_pk_bf16_f32 v9, v33, v35
    v_cndmask_b32 v8, v8, v9, vcc
    buffer_store_dword v8, v16, {S_WS}, s13 offen sc1
    """)
    g.stamp(14)
    I("s_branch L_fin")
    g.label("L_down")
    I(f"""
    v_lshrrev_b32 v4, 2, v1
    v_mul_u32_u24 v4, 1280, v4
    v_and_b32 v6, 3, v1
    v_lshl_add_u32 v4, v6, 4, v4
    s_mul_i32 s12, {sWV}, {16*1280}
    s_lshl_b32 s13, {sFC}, 6
    s_add_u32 s12, s12, s13
    s_lshl_b32 s13, {sWV}, 10
    s_add_u32 s13, s13, {L_W2}
    """)
    for m in range(13):
        dma("v4", S_W2, NT, 8192, 128 * 1280)
    I(f"s_cmp_ge_u32 {sWV}, 4\ns_cbranch_scc1 L_dn_ld")
    dma("v4", S_W2, NT, 8192, 128 * 1280)
    g.label("L_dn_ld")
    I(f"""
    v_bfe_u32 v4, v1, 2, 2
    v_lshl_add_u32 v4, v2, 3, v4
    v_lshlrev_b32 v16, 6, v4
    v_lshl_add_u32 v16, v6, 3, v16
    s_lshl_b32 s12, {sWV}, 11
    s_add_u32 s12, s12, {L_W2}
    v_add_u32 v16, s12, v16
    v_add_u32 v17, 0x10000, v16
    v_and_b32 v18, 1, v3
    v_lshlrev_b32 v18, 5, v18
    v_and_b32 v4, 1, v2
    v_lshl_add_u32 v18, v4, 4, v18
    v_lshrrev_b32 v4, 1, v2
    v_lshl_add_u32 v18, v4, 7, v18
    v_add_u32 v23, 4096, v18
    v_add_u32 v24, 8192, v18
    s_lshl_b32 s93, {sWV}, 8
    s_add_u32 s93, s93, {XE}
    s_cmp_lt_u32 {sWV}, 6
    s_cselect_b32 s94, {2048*6}, 0
    s_add_u32 s94, s94, s93
    s_lshl_b32 s14, {sWV}, 8
    v_lshl_add_u32 v19, v1, 4, s14
    """)
    for r in range(8, 16):
        I(f"v_mov_b32 v{r}, 0")
    I(f"""
    s_cmp_lg_u32 {sWV}, 1
    s_cbranch_scc1 L_dn_nx
    v_lshrrev_b32 v6, 3, v3
    v_mul_u32_u24 v7, 2560, v6
    v_lshl_add_u32 v7, v31, 4, v7
    v_mul_u32_u24 v20, 1280, v6
    v_lshl_add_u32 v20, v31, 3, v20
    v_lshlrev_b32 v22, 3, v3
    s_lshl_b32 s12, {sFC}, 6
    buffer_load_dwordx2 v[194:195], v20, {S_X}, s12 offen
    L_dn_nx:
    """)
    g.bar("vmcnt(0) lgkmcnt(0)")
    g.stamp(19)
    for i in range(7):
        for nu in range(2):
            for tt in range(2):
                r = 96 + (i * 2 + nu) * 4 + 2 * tt
                off = 16384 * i + 256 * tt + 32 * nu
                va = "v16" if off < 65536 else "v17"
                I(f"ds_read_b64_tr_b16 v[{r}:{r+1}], {va} offset:{off & 65535}")
    I(f"s_cmp_lg_u32 {sWV}, 1\ns_cbranch_scc1 L_dn_e")
    I(f"s_lshl_b32 s13, {sFC}, 7\ns_add_u32 s13, s13, {XD2}")
    lds = [f"s_add_u32 s14, s13, {i*5120}\nbuffer_load_dwordx4 v[{32+4*i}:{35+4*i}], v7, {S_WS}, s14 offen sc1"
           for i in range(8)]
    g.poll(lds, range(32, 64), delay=P["d_d2"], tmp="v4", backoff=P["bo_d2"])
    g.stamp(13)
    g.tree_add(32, 8, 4, 4)
    h_from_sum(194)
    I(f"ds_write_b64 v22, v[8:9] offset:{L_HB}\nv_mov_b32 v8, 0\nv_mov_b32 v9, 0")
    g.signal(C_H)
    g.label("L_dn_e")
    g.waitc(C_H, 1)
    if P["t_e"]:
        I(f"ds_read_b32 v4, {VZ} offset:{L_CTRL}\ns_waitcnt lgkmcnt(0)")
        until(P["t_e"], "v4")
    el = lambda b: [f"buffer_load_dwordx4 v[{b+4*i}:{b+3+4*i}], {('v18','v23','v24')[i>>1]}, {S_WS}, s93 offen offset:{2048*(i&1)} sc1" for i in range(6)] + \
                   [f"buffer_load_dwordx4 v[{b+24}:{b+27}], v18, {S_WS}, s94 offen sc1"]
    if P["pipe"] > 1:
        g.poll_pipe(el, 28, [32, 64, 160][:min(3, P["pipe"])], tmp="v6", gap=P["gap"])
    else:
        g.poll(el(32), range(32, 60), delay=P["d_e"], tmp="v6", backoff=P["bo_e"])
    g.stamp(14)
    for i in range(7):
        if i == 6:
            I(f"s_cmp_ge_u32 {sWV}, 6\ns_cbranch_scc1 L_dn6")
        for nu in range(2):
            r = 96 + (i * 2 + nu) * 4
            I(f"v_mfma_f32_16x16x32_bf16 v[{8+4*nu}:{11+4*nu}], v[{32+4*i}:{35+4*i}], v[{r}:{r+3}], v[{8+4*nu}:{11+4*nu}]")
    g.label("L_dn6")
    I(f"""
    s_mov_b64 exec, 0xffff
    s_nop 6
    v_mov_b32 v10, v12
    v_mov_b32 v11, v13
    ds_write_b128 v19, v[8:11] offset:{L_UR}
    s_mov_b64 exec, -1
    """)
    g.bar()
    I(f"s_cmp_lg_u32 {sWV}, 0\ns_cbranch_scc1 L_fin")
    I(f"""
    v_lshlrev_b32 v16, 4, v3
    v_lshl_add_u32 v16, v2, 2, v16
    v_and_b32 v4, 1, v2
    v_lshrrev_b32 v6, 1, v2
    v_lshlrev_b32 v7, 6, v4
    v_lshl_add_u32 v7, v6, 5, v7
    v_lshl_add_u32 v7, v3, 1, v7
    ds_read_u16 v191, v7 offset:{L_HB}
    """)
    for v in range(8):
        I(f"ds_read_b32 v{32+v}, v16 offset:{L_UR+256*v}")
    I(f"""
    v_mul_u32_u24 v17, 1280, v4
    v_lshl_add_u32 v17, v6, 5, v17
    v_lshl_add_u32 v17, v3, 1, v17
    v_and_b32 v5, 1, v1
    v_mov_b32 v6, {OOB}
    v_cmp_eq_u32 vcc, 0, v5
    s_lshl_b32 s12, {sFC}, 6
    s_waitcnt lgkmcnt(0)
    v_cndmask_b32 v17, v6, v17, vcc
    v_lshlrev_b32 v191, 16, v191
    """)
    g.tree_add(32, 8, 1, 1)
    I(f"""
    v_cvt_pk_bf16_f32 v8, v32, v32
    v_lshlrev_b32 v32, 16, v8
    v_add_f32 v32, v32, v191
    s_nop 1
    v_mov_b32_dpp v34, v32 row_ror:15 row_mask:0xf bank_mask:0xf
    v_cvt_pk_bf16_f32 v8, v32, v34
    buffer_store_dword v8, v17, {S_OUT}, s12 offen
    """)
    g.stamp(15)
    g.label("L_fin")
    if diag and P.get("dbgout"):
        I(f"""
        s_cmp_lg_u32 {sWV}, 0
        s_cbranch_scc1 L_end
        buffer_load_dword v4, {VZ}, {S_DBG}, 0 offen sc1
        s_waitcnt vmcnt(0)
        v_readfirstlane_b32 s96, v4
        s_mov_b64 exec, 1
        """)
        for k, idx in enumerate([0, 2, 4, 6, 5, 23, 9, 10, 11, 12, 13, 14, 15, 18]):
            lab = g.newlab("Lz")
            I(f"""
            s_cmp_eq_u32 s{64+idx}, 0
            s_cbranch_scc1 {lab}
            s_sub_u32 s97, s{64+idx}, s96
            v_mov_b32 v5, s97
            buffer_atomic_smax v5, {VZ}, {S_DBG}, 0 offen offset:{8+4*k}
            {lab}:
            """)
    elif diag:
        I(f"""
        s_mul_i32 s96, s2, 10
        s_add_u32 s96, s96, {sWV}
        s_lshl_b32 s96, s96, 7
        s_add_u32 s96, s96, {TS}
        s_mov_b64 exec, 1
        """)
        for i in range(0, 28, 4):
            I(f"v_mov_b32 v4, s{64+i}\nv_mov_b32 v5, s{65+i}\nv_mov_b32 v6, s{66+i}\nv_mov_b32 v7, s{67+i}")
            I(f"buffer_store_dwordx4 v[4:7], {VZ}, {S_WS}, s96 offen offset:{4*i}\ns_nop 2")
    g.label("L_end")
    I("s_endpgm")

    tail = f"""
.section .rodata,"a"
.p2align 6
.amdhsa_kernel {KNAME}
  .amdhsa_next_free_vgpr {NVGPR}
  .amdhsa_next_free_sgpr 102
  .amdhsa_accum_offset {NVGPR}
  .amdhsa_group_segment_fixed_size 0
  .amdhsa_kernarg_size 104
  .amdhsa_user_sgpr_count 2
  .amdhsa_user_sgpr_kernarg_segment_ptr 1
  .amdhsa_system_sgpr_workgroup_id_x 1
.end_amdhsa_kernel
"""
    return "\n".join(hdr) + "\n" + "\n".join(g.L) + "\n" + tail


if __name__ == "__main__":
    diag = "--diag" in sys.argv
    out = [a for a in sys.argv[1:] if not a.startswith("--")]
    P = {}
    for a in sys.argv[1:]:
        if a.startswith("--P:"):
            k, v = a[4:].split("=")
            P[k] = int(v) if v.lstrip("-").isdigit() else v
    txt = build(diag=diag, P=P)
    if out:
        open(out[0], "w").write(txt)
    else:
        sys.stdout.write(txt)
```

```python
import struct
POLL_LIMIT = 60000
OOB = 0x7FFFFF00

def f2u(f):
    return struct.unpack("<I", struct.pack("<f", f))[0]

class Gen:
    def __init__(self, diag, P, L_CNT, VZ, VO):
        self.L = []
        self.diag = diag
        self.lab = 0
        self.P = P
        self.L_CNT = L_CNT
        self.VZ, self.VO = VZ, VO

    def I(self, s):
        for line in s.strip().split("\n"):
            line = line.strip()
            if line:
                self.L.append("  " + line)

    def label(self, name):
        self.L.append(name + ":")

    def newlab(self, p="L"):
        self.lab += 1
        return f"{p}_{self.lab}"

    def sleep(self, n):
        while n > 0:
            k = min(n, 127)
            self.I(f"s_sleep {k}")
            n -= k

    def stamp(self, idx):
        if not self.diag:
            return
        if self.P.get("lite") and idx not in (0, 15):
            return
        self.I(f"""
        s_memrealtime s[96:97]
        s_waitcnt lgkmcnt(0)
        s_mov_b32 s{64+idx}, s96
        """)

    def bar(self, wait="lgkmcnt(0)"):
        if wait:
            self.I(f"s_waitcnt {wait}")
        self.I("s_barrier")

    def signal(self, cnt, wait="lgkmcnt(0)"):
        if wait:
            self.I(f"s_waitcnt {wait}")
        self.I(f"""
        s_mov_b64 exec, 1
        ds_add_u32 {self.VZ}, {self.VO} offset:{self.L_CNT+4*cnt}
        s_mov_b64 exec, -1
        """)

    def waitc(self, cnt, n, tmp="v4", nap=0):
        lp = self.newlab("Lw")
        if nap:
            dn = self.newlab("Lx")
            self.label(lp)
            self.I(f"""
            ds_read_b32 {tmp}, {self.VZ} offset:{self.L_CNT+4*cnt}
            s_waitcnt lgkmcnt(0)
            v_cmp_gt_u32 vcc, {n}, {tmp}
            s_cbranch_vccz {dn}
            s_sleep {nap}
            s_branch {lp}
            """)
            self.label(dn)
            return
        self.label(lp)
        self.I(f"""
        ds_read_b32 {tmp}, {self.VZ} offset:{self.L_CNT+4*cnt}
        s_waitcnt lgkmcnt(0)
        v_cmp_gt_u32 vcc, {n}, {tmp}
        s_cbranch_vccnz {lp}
        """)

    def maxchain(self, regs, tmp):
        r = list(regs)
        self.I(f"v_max_u32 {tmp}, v{r[0]}, v{r[1]}")
        r = r[2:]
        while len(r) >= 2:
            self.I(f"v_max3_u32 {tmp}, {tmp}, v{r[0]}, v{r[1]}")
            r = r[2:]
        if r:
            self.I(f"v_max_u32 {tmp}, {tmp}, v{r[0]}")

    def poll(self, loads, regs, delay=0, tmp="v4", preissued=False, backoff=None):
        if delay:
            self.sleep(delay)
        lp = self.newlab("Lp")
        dn = self.newlab("Ld")
        ent = self.newlab("Le")
        self.I("s_mov_b32 s92, 0")
        if preissued:
            self.I(f"s_branch {ent}")
        self.label(lp)
        for l in loads:
            self.I(l)
        if preissued:
            self.label(ent)
        self.I("s_waitcnt vmcnt(0)")
        self.maxchain(regs, tmp)
        self.I(f"""
        v_cmp_ne_u32 vcc, -1, {tmp}
        s_add_u32 s92, s92, 1
        s_cmp_eq_u64 vcc, exec
        s_cbranch_scc1 {dn}
        s_sleep {backoff if backoff is not None else self.P['backoff']}
        s_cmp_lt_u32 s92, {POLL_LIMIT}
        s_cbranch_scc1 {lp}
        """)
        self.label(dn)

    def wave_allreduce(self, v, t, op="v_add_f32", rors=(8, 4, 2, 1), rows=True):
        for r in rors:
            self.I(f"s_nop 1\n{op}_dpp v{v}, v{v}, v{v} row_ror:{r} row_mask:0xf bank_mask:0xf")
        if rows:
            self.I(f"""
            v_mov_b32 v{t}, v{v}
            s_nop 1
            v_permlane16_swap_b32 v{v}, v{t}
            {op} v{v}, v{v}, v{t}
            v_mov_b32 v{t}, v{v}
            s_nop 1
            v_permlane32_swap_b32 v{v}, v{t}
            {op} v{v}, v{v}, v{t}
            """)

    def tree_add(self, base, n, stride, width):
        step = 1
        while step < n:
            for a in range(0, n - step, 2 * step):
                for k in range(width):
                    self.I(f"v_add_f32 v{base+a*stride+k}, v{base+a*stride+k}, v{base+(a+step)*stride+k}")
            step *= 2

    def poll_pipe(self, mk_loads, nregs, bases, tmp="v4", gap=2):
        K = len(bases)
        nl = sum(1 for l in mk_loads(bases[0]) for x in l.split("\n") if x.strip().startswith("buffer_load"))
        st, lp, dn, fin = self.newlab("Ls"), self.newlab("Lp"), self.newlab("Ld"), self.newlab("Lf")
        got = [self.newlab("Lg") for _ in bases]
        self.I("s_mov_b32 s92, 0")
        self.label(st)
        for k in range(K):
            for l in mk_loads(bases[k]):
                self.I(l)
            if k < K - 1:
                self.I(f"s_sleep {gap}")
        self.label(lp)
        for k in range(K):
            self.I(f"s_waitcnt vmcnt({nl*(K-1)})")
            self.maxchain(range(bases[k], bases[k] + nregs), tmp)
            self.I(f"""
            v_cmp_ne_u32 vcc, -1, {tmp}
            s_cmp_eq_u64 vcc, exec
            s_cbranch_scc1 {got[k] if k else dn}
            s_sleep {gap}
            """)
            for l in mk_loads(bases[k]):
                self.I(l)
        self.I(f"""
        s_add_u32 s92, s92, 1
        s_cmp_lt_u32 s92, {POLL_LIMIT//2}
        s_cbranch_scc1 {lp}
        s_waitcnt vmcnt(0)
        s_branch {dn}
        """)
        for k in range(K - 1, 0, -1):
            self.label(got[k])
            self.I(f"s_waitcnt vmcnt({nl*(k-1)})")
            if k > 1:
                self.I(f"s_branch {fin}")
        self.label(fin)
        self.maxchain(range(bases[0], bases[0] + nregs), tmp)
        self.I(f"""
        v_cmp_ne_u32 vcc, -1, {tmp}
        s_add_u32 s92, s92, 1
        s_cmp_eq_u64 vcc, exec
        s_cbranch_scc1 {dn}
        s_waitcnt vmcnt(0)
        s_cmp_lt_u32 s92, {POLL_LIMIT//2}
        s_cbranch_scc1 {st}
        """)
        self.label(dn)
```

```python
import sys
from genlib import *

KNAME = "sequential_preLN__compressed_kv_cla__glu_gated_swiglu__decode_kernel"

FLAGS = 0x000000
XH    = 0x008000
XB    = 0x010000
XC2M  = 0x020000
XD2   = 0x030000
XE    = 0x040000
XC1M  = 0x050000
XAF   = 0x080000
XAS   = 0x0C0000
XU    = 0x100000
XC2D  = 0x180000
XD1   = 0x200000
TS    = 0x380000
XC1D  = 0x400000
C1J   = 16640
WS_BYTES = 0x1000000

CPITCH = 1040
L_CTRL = 0
L_CNT = 64
L_STAT = 192
(C_NON, C_H, C_U, C_XA, C_AG, C_VER) = range(6)
L_XN  = 2304
L_XAL = 4864
L_DR  = 8960
L_CT  = 11008
L_D1  = 4864
L_WUV = 12288
L_WO  = 45056
L_WUK = 45056
L_MB  = 256
L_LB  = 1280
L_UR  = 256
L_HB  = 2304
L_CKV = 5120
L_QA  = L_CKV
L_TR  = L_CKV + 64 * CPITCH
L_W1  = L_CKV
L_W3  = L_CKV + 20480
L_W2  = L_CKV
L_PB  = L_CKV + 32 * CPITCH
L_WQ  = L_CKV + 128 * CPITCH
LDS_BYTES = 158720
PVA = 128
VZ, VO = "v192", "v193"
NVGPR = 200

DEFAULTS = dict(d_a=2, d_c1=1, d_c2=0, d_d1=2, d_d2=0, d_u=2, d_e=0, backoff=2, nt="nt", fast_tries=200,
                d_non=4, d_p2=10, bo_c2=2, bo_d2=4, bo_e=4, bo_b=4, W2=8, d_A=40, init_blocks=1, hint_kb=2, pf_rows=0, pre=0, mid=0, ahead=4, fl_kb=1, wb=0, d_w13=0, bo_c2b=2, w2pf=1, w2pf_flag="nt", cpf=0, pipe=1, gap=2, t_c2=0, t_d2=0, t_e=0)


def build(diag=False, P=None):
    PP = dict(DEFAULTS)
    if P:
        PP.update(P)
    P = PP
    g = Gen(diag, P, L_CNT, VZ, VO)
    I = g.I
    NT = P["nt"]
    names = ["X", "CKV", "WQ", "WUK", "WUV", "WO", "W1", "W3", "W2", "OUT", "DBG", "WS"]
    S_X, S_CKV, S_WQ, S_WUK, S_WUV, S_WO, S_W1, S_W3, S_W2, S_OUT, S_DBG, S_WS = [
        f"s[{16+4*i}:{19+4*i}]" for i in range(12)]
    ptr = {0: 64, 1: 66, 2: 68, 3: 70, 4: 72, 5: 74, 6: 78, 7: 80, 8: 82, 9: 84, 10: 86, 11: 88}
    sizes = [2560, 16777216, 5242880, 4194304, 4194304, 5242880, 2211840, 2211840, 2211840, 2560, 256, WS_BYTES]

    def srd(*which):
        for nm in which:
            i = names.index(nm)
            b = 16 + 4 * i
            I(f"s_mov_b64 s[{b}:{b+1}], s[{ptr[i]}:{ptr[i]+1}]\ns_mov_b32 s{b+2}, {sizes[i]}\ns_mov_b32 s{b+3}, 0x20000")

    def dma(voff, srd_, flag, dm0, dso):
        I(f"s_mov_b32 m0, s13")
        I(f"s_add_u32 s13, s13, {dm0}")
        I(f"buffer_load_dwordx4 {voff}, {srd_}, s12 offen {flag} lds")
        I(f"s_add_u32 s12, s12, {dso}")

    def zero_stamps():
        if diag:
            for i in range(0, 28):
                I(f"s_mov_b32 s{64+i}, 0")

    sWV, sX, sS, sM, sH, sSUB, sFC, sUP, sKC = "s3", "s4", "s5", "s6", "s7", "s8", "s9", "s10", "s11"
    hdr = [f"; @launch grid=(256,1,1) block=(512,1,1) lds={LDS_BYTES}",
           '.amdgcn_target "amdgcn-amd-amdhsa--gfx950"', ".text", f".globl {KNAME}", ".p2align 8",
           f".type {KNAME},@function", f"{KNAME}:"]

    I(f"""
    s_cmp_ge_u32 s2, 256
    s_cbranch_scc1 L_end
    s_load_dwordx16 s[64:79], s[0:1], 0
    s_load_dwordx8 s[80:87], s[0:1], 64
    s_load_dwordx2 s[88:89], s[0:1], 96
    s_memrealtime s[90:91]
    v_lshrrev_b32 v4, 6, v0
    v_and_b32 v1, 63, v0
    v_readfirstlane_b32 {sWV}, v4
    v_lshrrev_b32 v2, 4, v1
    v_and_b32 v3, 15, v1
    v_mov_b32 {VZ}, 0
    v_mov_b32 {VO}, 1
    v_lshlrev_b32 v4, 2, v3
    ds_write_b32 v4, {VZ} offset:{L_CNT}
    s_and_b32 {sX}, s2, 7
    s_lshr_b32 {sS}, s2, 3
    s_and_b32 {sM}, {sS}, 15
    v_lshlrev_b32 v5, 4, v1
    v_mov_b32 v6, {OOB}
    v_mov_b32 v8, -1
    v_mov_b32 v9, -1
    v_mov_b32 v10, -1
    v_mov_b32 v11, -1
    v_cmp_eq_u32 vcc, 0, v1
    s_and_b32 s12, {sS}, 3
    s_lshl_b32 s12, s12, 3
    v_cndmask_b32 v7, v6, 0, vcc
    s_add_u32 {sH}, {sX}, s12
    s_lshr_b32 {sSUB}, {sM}, 2
    s_lshr_b32 s12, {sM}, 2
    s_lshl_b32 s12, s12, 3
    s_add_u32 s12, s12, {sX}
    s_cmp_lt_u32 s12, 27
    s_cselect_b32 {sUP}, 1, 0
    s_and_b32 {sKC}, {sM}, 3
    s_sub_u32 s14, {sX}, 3
    s_lshl_b32 s14, s14, 2
    s_add_u32 s14, s14, {sKC}
    s_cmp_eq_u32 {sUP}, 1
    s_cselect_b32 {sFC}, s12, s14
    """)

    def nonce_and_flag(first_wait):
        lp, dn, ent = g.newlab("Lp"), g.newlab("Ld"), g.newlab("Le")
        I(f"""
        s_mov_b32 s92, 0
        s_lshl_b32 s14, {sX}, 5
        s_add_u32 s14, s14, {sS}
        s_lshl_b32 s14, s14, 4
        s_add_u32 s14, s14, {FLAGS}
        s_getreg_b32 s15, hwreg(HW_REG_XCC_ID)
        v_mov_b32 v14, s15
        v_mov_b32 v15, 0
        s_waitcnt {first_wait}
        s_branch {ent}
        """)
        g.label(lp)
        I(f"""
        buffer_load_dwordx2 v[12:13], {VZ}, {S_DBG}, 0 offen sc1
        s_waitcnt vmcnt(0)
        """)
        g.label(ent)
        I(f"""
        v_cmp_ne_u32 vcc, 0, v12
        s_add_u32 s92, s92, 1
        s_cmp_eq_u64 vcc, exec
        s_cbranch_scc1 {dn}
        s_sleep {P['d_non']}
        s_cmp_lt_u32 s92, {POLL_LIMIT}
        s_cbranch_scc1 {lp}
        """)
        g.label(dn)
        I(f"""
        ds_write_b64 {VZ}, v[12:13] offset:{L_CTRL}
        buffer_store_dwordx4 v[12:15], v7, {S_WS}, s14 offen sc1
        """)
        g.signal(C_NON)
        g.stamp(16)

    def verify_flags(r0, kindA, preissued, first_wait="vmcnt(0)", onlyA=False, uniform=True):
        lp, dn, ent = g.newlab("Lp"), g.newlab("Ld"), g.newlab("Le")
        I("s_mov_b32 s92, 0")
        if preissued:
            I(f"s_waitcnt {first_wait}\ns_branch {ent}")
        g.label(lp)
        for i in range(4):
            I(f"buffer_load_dwordx4 v[{r0+4*i}:{r0+3+4*i}], v5, {S_WS}, 0 offen offset:{FLAGS+1024*i} sc1")
        I("s_waitcnt vmcnt(0)")
        if preissued:
            g.label(ent)
        I("v_mov_b32 v8, 0")
        for i in range(4):
            I(f"v_xor_b32 v9, v{r0+4*i}, v14\nv_xor_b32 v10, v{r0+1+4*i}, v15\nv_or3_b32 v8, v8, v9, v10")
        I("v_cmp_eq_u32 vcc, 0, v8\ns_add_u32 s92, s92, 1")
        if onlyA:
            I("s_or_b32 vcc_lo, vcc_lo, 0xffff\ns_or_b32 vcc_hi, vcc_hi, 0xffff")
        I(f"""
        s_cmp_eq_u64 vcc, exec
        s_cbranch_scc1 {dn}
        s_sleep 4
        s_cmp_lt_u32 s92, {POLL_LIMIT}
        s_cbranch_scc1 {lp}
        """)
        g.label(dn)
        if not uniform:
            g.stamp(17)
            return
        I(f"""
        s_lshr_b32 s14, {sX}, 1
        s_cmp_eq_u32 s14, 1
        v_mov_b32 v8, v{r0+2}
        s_cbranch_scc0 {dn}a
        v_mov_b32 v8, v{r0+6}
        {dn}a:
        s_cmp_eq_u32 s14, 2
        s_cbranch_scc0 {dn}b
        v_mov_b32 v8, v{r0+10}
        {dn}b:
        s_cmp_eq_u32 s14, 3
        s_cbranch_scc0 {dn}c
        v_mov_b32 v8, v{r0+14}
        {dn}c:
        s_getreg_b32 s14, hwreg(HW_REG_XCC_ID)
        v_xor_b32 v8, s14, v8
        s_and_b32 s14, {sX}, 1
        s_lshl_b32 s14, s14, 1
        s_add_u32 s14, s14, {1 if kindA else 0}
        v_cmp_eq_u32 vcc, s14, v2
        s_nop 1
        v_cndmask_b32 v8, 0, v8, vcc
        v_cmp_eq_u32 vcc, 0, v8
        s_cmp_eq_u64 vcc, exec
        s_cselect_b32 s14, 1, 0
        v_mov_b32 v8, s14
        ds_write_b32 {VZ}, v8 offset:{L_CTRL+8}
        """)
        g.stamp(17)

    def until(T, nreg):
        if not T:
            return
        lp = g.newlab("Lt")
        I(f"v_readfirstlane_b32 s100, {nreg}")
        g.label(lp)
        I(f"""
        s_memrealtime s[96:97]
        s_waitcnt lgkmcnt(0)
        s_sub_u32 s96, s96, s100
        s_cmp_lt_u32 s96, {T}
        s_cbranch_scc1 {lp}
        """)

    def h_from_sum(xr):
        I(f"""
        v_cvt_pk_bf16_f32 v8, v32, v33
        v_cvt_pk_bf16_f32 v9, v34, v35
        v_lshlrev_b32 v36, 16, v{xr}
        v_and_b32 v37, 0xffff0000, v{xr}
        v_lshlrev_b32 v38, 16, v{xr+1}
        v_and_b32 v39, 0xffff0000, v{xr+1}
        v_lshlrev_b32 v32, 16, v8
        v_and_b32 v33, 0xffff0000, v8
        v_lshlrev_b32 v34, 16, v9
        v_and_b32 v35, 0xffff0000, v9
        v_add_f32 v32, v32, v36
        v_add_f32 v33, v33, v37
        v_add_f32 v34, v34, v38
        v_add_f32 v35, v35, v39
        v_cvt_pk_bf16_f32 v8, v32, v33
        v_cvt_pk_bf16_f32 v9, v34, v35
        """)

    I(f"""
    s_waitcnt lgkmcnt(0)
    s_cmp_ge_u32 {sWV}, 4
    s_cbranch_scc1 L_e_hi
    s_or_b32 s14, s2, {sWV}
    s_cmp_lg_u32 s14, 0
    s_cbranch_scc1 L_e_dma
    """)
    srd("DBG")
    I(f"""
    s_or_b32 s90, s90, 1
    v_mov_b32 v14, s90
    v_mov_b32 v15, s91
    buffer_store_dwordx2 v[14:15], v7, {S_DBG}, 0 offen sc1
    s_branch L_e_dma
    L_e_hi:
    s_cmp_ge_u32 {sWV}, 6
    s_cbranch_scc1 L_e_67
    s_sub_u32 s15, {sWV}, 4
    s_mul_i32 s15, s15, 1280
    v_mul_u32_u24 v100, 20, v1
    """)
    srd("X")
    I(f"""
    buffer_load_dwordx4 v[8:11], v100, {S_X}, s15 offen
    buffer_load_dword v12, v100, {S_X}, s15 offen offset:16
    s_branch L_e_dma
    L_e_67:
    """)
    srd("DBG", "WS")
    I(f"""
    s_cmp_ge_u32 {sS}, 16
    s_cbranch_scc1 L_e_A67
    s_cmp_eq_u32 {sWV}, 6
    s_cbranch_scc1 L_e_B6
    """)
    I(f"""
    s_lshl_b32 s13, {sX}, 4
    s_add_u32 s13, s13, {sM}
    s_mul_i32 s13, s13, 5120
    s_add_u32 s13, s13, {XD1}
    """)
    for i in range(4):
        I(f"buffer_store_dwordx4 v[8:11], v5, {S_WS}, s13 offen offset:{1024*i} sc1")
    I(f"""
    s_add_u32 s13, s13, 4096
    buffer_store_dwordx4 v[8:11], v5, {S_WS}, s13 offen sc1
    v_mul_u32_u24 v4, 2560, v2
    v_lshl_add_u32 v4, v3, 4, v4
    s_cmp_lt_u32 {sM}, 10
    s_cselect_b32 s15, 32, 0
    v_cmp_gt_u32 vcc, s15, v1
    s_mul_i32 s13, {sX}, 5120
    s_lshl_b32 s14, {sM}, 8
    v_cndmask_b32 v4, v6, v4, vcc
    s_add_u32 s13, s13, s14
    s_add_u32 s13, s13, {XD2}
    buffer_store_dwordx4 v[8:11], v4, {S_WS}, s13 offen sc1
    s_branch L_e_dma
    L_e_B6:
    s_lshl_b32 s12, {sH}, 13
    s_add_u32 s12, s12, {XAF}
    v_lshlrev_b32 v4, 7, v1
    buffer_load_dword v14, v4, {S_WS}, s12 offen nt
    v_lshrrev_b32 v4, 3, v1
    v_lshlrev_b32 v4, 8, v4
    v_and_b32 v12, 7, v1
    v_lshl_add_u32 v4, v12, 4, v4
    s_add_u32 s13, s12, 4096
    buffer_store_dwordx4 v[8:11], v4, {S_WS}, s12 offen
    buffer_store_dwordx4 v[8:11], v4, {S_WS}, s12 offen offset:2048
    buffer_store_dwordx4 v[8:11], v4, {S_WS}, s13 offen
    buffer_store_dwordx4 v[8:11], v4, {S_WS}, s13 offen offset:2048
    """)
    I(f"""
    s_branch L_e_dma
    L_e_A67:
    s_cmp_eq_u32 {sWV}, 7
    s_cbranch_scc1 L_e_A7
    """)
    if P["cpf"]:
        I(f"""
        s_cmp_ge_u32 {sM}, 4
        s_cbranch_scc1 L_e_dma
        s_getpc_b64 s[12:13]
        L_pc:
        s_sub_u32 s12, s12, L_pc-{KNAME}
        s_subb_u32 s13, s13, 0
        v_lshlrev_b32 v4, 7, v1
        global_load_dword v194, v4, s[12:13]
        v_add_u32 v4, 8192, v4
        global_load_dword v194, v4, s[12:13]
        v_add_u32 v4, 8192, v4
        v_min_u32 v4, L_end-{KNAME}, v4
        global_load_dword v194, v4, s[12:13]
        """)
    I("s_branch L_e_dma\nL_e_A7:")
    I(f"""
    v_lshlrev_b32 v4, 7, v1
    v_cmp_gt_u32 vcc, 32, v1
    s_lshl_b32 s14, {sX}, 12
    s_lshl_b32 s15, {sM}, 3
    v_cndmask_b32 v4, v6, v4, vcc
    v_cndmask_b32 v12, v6, v5, vcc
    s_add_u32 s14, s14, s15
    s_add_u32 s14, s14, {XC1M}
    buffer_store_dwordx2 v[8:9], v4, {S_WS}, s14 offen sc1
    s_lshl_b32 s14, {sX}, 4
    s_add_u32 s14, s14, {sM}
    s_lshl_b32 s14, s14, 9
    s_add_u32 s14, s14, {XB}
    buffer_store_dwordx4 v[8:11], v12, {S_WS}, s14 offen sc1
    s_lshl_b32 s14, {sM}, 4
    s_add_u32 s14, s14, {sX}
    s_lshl_b32 s15, s14, 10
    s_add_u32 s15, s15, {XC2D}
    buffer_store_dwordx4 v[8:11], v5, {S_WS}, s15 offen sc1
    s_add_u32 s15, s15, 8192
    buffer_store_dwordx4 v[8:11], v5, {S_WS}, s15 offen sc1
    v_lshlrev_b32 v4, 10, v1
    v_cmp_gt_u32 vcc, 2, v1
    s_lshl_b32 s15, s14, 7
    s_add_u32 s15, s15, {XC2M}
    v_cndmask_b32 v4, v6, v4, vcc
    buffer_store_dwordx2 v[8:9], v4, {S_WS}, s15 offen sc1
    s_lshl_b32 s14, {sX}, 4
    s_add_u32 s14, s14, {sM}
    s_lshl_b32 s14, s14, 11
    s_add_u32 s14, s14, {XU}
    buffer_store_dwordx4 v[8:11], v5, {S_WS}, s14 offen sc1
    buffer_store_dwordx4 v[8:11], v5, {S_WS}, s14 offen offset:1024 sc1
    s_lshl_b32 s15, {sUP}, 2
    v_cmp_gt_u32 vcc, s15, v1
    s_lshl_b32 s14, {sFC}, 2
    s_add_u32 s14, s14, {sKC}
    v_cndmask_b32 v4, v6, v5, vcc
    s_lshl_b32 s14, s14, 7
    s_add_u32 s14, s14, {XE}
    buffer_store_dwordx4 v[8:11], v4, {S_WS}, s14 offen sc1
    buffer_load_dwordx2 v[12:13], {VZ}, {S_DBG}, 0 offen sc1
    """)
    g.label("L_e_dma")
    I(f"""
    s_and_b32 s12, {sWV}, 1
    s_lshl_b32 s12, s12, 2
    v_add_u32 v4, s12, v2
    v_lshlrev_b32 v4, 1, v4
    v_xor_b32 v4, v4, v3
    v_lshlrev_b32 v4, 4, v4
    v_lshl_add_u32 v4, v2, 13, v4
    s_lshr_b32 s93, {sS}, 2
    s_mul_i32 s12, s93, 80
    s_lshl_b32 s13, {sWV}, 2
    s_add_u32 s12, s12, s13
    s_lshl_b32 s12, s12, 13
    s_lshl_b32 s13, {sH}, 8
    s_add_u32 s12, s12, s13
    s_lshl_b32 s13, {sWV}, 10
    s_add_u32 s13, s13, {L_WQ}
    """)
    srd("WQ")
    I(f"s_cmp_ge_u32 {sWV}, 4\ns_cbranch_scc1 L_e_d2")
    dma("v4", S_WQ, NT, 8192, 32 * 8192)
    g.label("L_e_d2")
    for i in range(2):
        dma("v4", S_WQ, NT, 8192, 32 * 8192)
    def ckv_block():
        for i in range(4):
            dma("v5", S_CKV, NT, CPITCH if i < 3 else 29 * CPITCH, 1024 if i < 3 else 29 * 1024)
    I(f"s_cmp_lt_u32 {sS}, 16\ns_cbranch_scc1 L_e_B")
    srd("CKV")
    I(f"""
    s_lshl_b32 s12, {sX}, 11
    s_lshl_b32 s13, {sM}, 7
    s_add_u32 s12, s12, s13
    s_lshl_b32 s13, {sWV}, 2
    s_add_u32 s12, s12, s13
    s_lshl_b32 s12, s12, 10
    s_mul_i32 s13, {sWV}, {4*CPITCH}
    s_add_u32 s13, s13, {L_CKV}
    """)
    for i in range(P["pre"]):
        ckv_block()
    I("s_mov_b32 s100, s12\ns_mov_b32 s101, s13\ns_branch L_e_srd")
    g.label("L_e_B")
    srd("WUK")
    I(f"""
    v_xor_b32 v4, v3, v2
    v_lshlrev_b32 v4, 4, v4
    v_lshl_add_u32 v4, v2, 13, v4
    s_lshl_b32 s12, {sSUB}, 7
    s_lshl_b32 s13, {sWV}, 4
    s_add_u32 s12, s12, s13
    s_lshl_b32 s12, s12, 13
    s_lshl_b32 s13, {sH}, 8
    s_add_u32 s12, s12, s13
    s_lshl_b32 s13, {sWV}, 12
    s_add_u32 s13, s13, {L_WUK}
    """)
    for i in range(4):
        dma("v4", S_WUK, NT, 1024, 4 * 8192)
        if i < 3:
            I(f"v_xor_b32 v4, {64 if i != 1 else 192}, v4")
    g.label("L_e_srd")
    srd("X", "CKV", "WUV", "WO", "W1", "W3", "W2", "OUT", "DBG", "WS")
    zero_stamps()
    g.stamp(0)
    I("s_barrier")
    I(f"""
    s_cmp_lg_u32 {sWV}, 7
    s_cbranch_scc1 L_s_n7
    s_cmp_lt_u32 {sS}, 16
    s_cbranch_scc1 L_stA
    """)
    nonce_and_flag(f"vmcnt({2+4*P['pre']})")
    I("s_branch L_stA")
    g.label("L_s_n7")
    I(f"s_and_b32 s12, {sWV}, 6\ns_cmp_lg_u32 s12, 4\ns_cbranch_scc1 L_stA")
    I(f"""
    s_cmp_ge_u32 {sS}, 16
    s_cbranch_scc1 L_ln_A
    s_waitcnt vmcnt(6)
    s_branch L_ln
    L_ln_A:
    s_waitcnt vmcnt({2+4*P['pre']})
    L_ln:
    """)
    for i in range(5):
        I(f"v_lshlrev_b32 v{32+2*i}, 16, v{8+i}\nv_and_b32 v{33+2*i}, 0xffff0000, v{8+i}")
    I("v_add_f32 v5, v32, v33\nv_add_f32 v6, v34, v35")
    for i in range(2, 5):
        I(f"v_add_f32 v5, v5, v{32+2*i}\nv_add_f32 v6, v6, v{33+2*i}")
    I("v_add_f32 v5, v5, v6")
    g.wave_allreduce(5, 6)
    I(f"v_mul_f32 v5, {f2u(1.0/640):#x}, v5")
    for i in range(10):
        I(f"v_sub_f32 v{32+i}, v{32+i}, v5")
    I("v_mul_f32 v5, v32, v32\nv_mul_f32 v6, v33, v33")
    for i in range(1, 5):
        I(f"v_fmac_f32 v5, v{32+2*i}, v{32+2*i}\nv_fmac_f32 v6, v{33+2*i}, v{33+2*i}")
    I("v_add_f32 v5, v5, v6")
    g.wave_allreduce(5, 6)
    I(f"""
    v_mov_b32 v6, {f2u(1e-5):#x}
    s_mov_b32 s13, {f2u(1.0/640):#x}
    v_fma_f32 v5, v5, s13, v6
    v_rsq_f32 v5, v5
    v_add_u32 v4, s15, v100
    """)
    for i in range(10):
        I(f"v_mul_f32 v{32+i}, v{32+i}, v5")
    for i in range(5):
        I(f"v_cvt_pk_bf16_f32 v{8+i}, v{32+2*i}, v{33+2*i}")
    for i in range(5):
        I(f"ds_write_b32 v4, v{8+i} offset:{L_XN+4*i}")
    g.stamp(16)
    g.label("L_stA")
    if P["mid"]:
        I(f"s_cmp_lt_u32 {sS}, 16\ns_cbranch_scc1 L_stA2")
        g.waitc(C_NON, 1)
        I("s_mov_b32 s12, s100\ns_mov_b32 s13, s101\nv_lshlrev_b32 v5, 4, v1")
        for i in range(P["mid"]):
            ckv_block()
        I("s_mov_b32 s100, s12\ns_mov_b32 s101, s13")
        g.label("L_stA2")
    I(f"""
    v_lshrrev_b32 v4, 2, v1
    v_and_b32 v5, 7, v4
    v_lshlrev_b32 v5, 1, v5
    v_bfe_u32 v6, v1, 1, 1
    s_lshl_b32 s12, {sWV}, 1
    v_add_u32 v6, s12, v6
    v_xor_b32 v6, v6, v5
    v_lshlrev_b32 v6, 4, v6
    v_lshl_add_u32 v6, v4, 8, v6
    v_and_b32 v5, 1, v1
    v_lshl_add_u32 v6, v5, 3, v6
    v_add_u32 v6, {L_WQ}, v6
    v_and_b32 v5, 1, v3
    v_mul_u32_u24 v5, 1280, v5
    v_lshl_add_u32 v5, v2, 3, v5
    s_lshr_b32 s93, {sS}, 2
    s_mul_i32 s12, s93, 160
    v_add_u32 v5, s12, v5
    v_and_b32 v198, 1, v2
    v_lshlrev_b32 v198, 9, v198
    v_lshrrev_b32 v4, 1, v2
    v_lshl_add_u32 v198, v4, 7, v198
    v_lshl_add_u32 v198, v3, 3, v198
    v_mov_b32 v4, {OOB >> 1}
    v_cmp_gt_u32 vcc, 2, v3
    s_lshl_b32 s12, {sH}, 12
    s_lshl_b32 s13, s93, 4
    v_cndmask_b32 v198, v4, v198, vcc
    s_add_u32 s12, s12, s13
    s_lshr_b32 s13, {sWV}, 1
    s_lshl_b32 s13, s13, 10
    s_add_u32 s12, s12, s13
    s_and_b32 s13, {sWV}, 1
    s_lshl_b32 s13, s13, 8
    s_add_u32 s12, s12, s13
    s_lshl_b32 s99, s12, 1
    s_add_u32 s98, s99, {XAF}
    s_add_u32 s99, s99, {XAS}
    v_lshlrev_b32 v199, 1, v198
    v_mov_b32 v8, 0
    v_mov_b32 v9, 0
    v_mov_b32 v10, 0
    v_mov_b32 v11, 0
    s_cmp_lt_u32 {sS}, 16
    s_cbranch_scc1 L_wB
    s_cmp_eq_u32 {sWV}, 7
    s_cbranch_scc1 L_wA7
    s_waitcnt vmcnt({4*P['pre']+4*P['mid']})
    L_wA7:
    s_waitcnt vmcnt({4*P['pre']+4*P['mid']+1})
    s_branch L_wE
    L_wB:
    s_waitcnt vmcnt(4)
    L_wE:
    """)
    g.bar()
    g.stamp(1)
    I(f"ds_read_b64 v[14:15], {VZ} offset:{L_CTRL}")
    for st in range(5):
        I(f"ds_read_b64_tr_b16 v[{32+2*st}:{33+2*st}], v6 offset:{4096*st}")
        I(f"ds_read_b64 v[{44+2*st}:{45+2*st}], v5 offset:{L_XN+32*st}")
    for st in range(5):
        I(f"s_waitcnt lgkmcnt({8-2*st})")
        I(f"v_mfma_f32_16x16x16_bf16 v[8:11], v[{32+2*st}:{33+2*st}], v[{44+2*st}:{45+2*st}], v[8:11]")
    I(f"""
    v_lshlrev_b32 v5, 4, v1
    s_mov_b32 s92, 0
    s_nop 5
    v_cvt_pk_bf16_f32 v12, v8, v9
    v_cvt_pk_bf16_f32 v13, v10, v11
    buffer_store_dwordx4 v[12:15], v199, {S_WS}, s98 offen
    v_mov_b32 v196, v12
    v_mov_b32 v197, v13
    """)
    g.stamp(2)
    I(f"s_cmp_ge_u32 {sS}, 16\ns_cbranch_scc1 L_Awg")
    FT = P['fast_tries']
    I(f"""
    s_lshl_b32 s12, {sH}, 12
    s_lshl_b32 s13, {sWV}, 9
    s_add_u32 s12, s12, s13
    s_lshl_b32 s95, s12, 1
    s_add_u32 s12, s95, {XAF}
    s_add_u32 s95, s95, {XAS}
    v_lshlrev_b32 v102, 3, v1
    v_add_u32 v96, s13, v102
    v_lshlrev_b32 v99, 15, v3
    v_lshl_add_u32 v99, v2, 3, v99
    v_mov_b32 v4, {OOB}
    v_cmp_gt_u32 vcc, 2, v3
    s_lshl_b32 s14, {sH}, 10
    s_lshl_b32 s15, {sSUB}, 8
    v_cndmask_b32 v99, v4, v99, vcc
    s_add_u32 s14, s14, s15
    s_lshl_b32 s15, {sWV}, 5
    s_add_u32 s14, s14, s15
    s_add_u32 s14, s14, {XB}
    v_xor_b32 v98, v3, v2
    v_lshlrev_b32 v98, 4, v98
    v_lshl_add_u32 v98, v3, 8, v98
    s_lshl_b32 s15, {sWV}, 12
    s_add_u32 s15, s15, {L_WUK}
    v_add_u32 v98, s15, v98
    s_mov_b32 s15, 0
    v_lshl_add_u32 v103, v3, 4, s13
    v_mov_b32 v8, 0
    v_mov_b32 v9, 0
    v_mov_b32 v10, 0
    v_mov_b32 v11, 0
    L_xa_loop:
    s_cmp_eq_u32 s15, 1
    s_cbranch_scc1 L_xa_chk
    buffer_load_dwordx2 v[14:15], {VZ}, {S_DBG}, 0 offen sc1
    buffer_load_dwordx2 v[36:37], v103, {S_WS}, 0 offen offset:{FLAGS+256} sc1
    buffer_load_dwordx4 v[32:35], v5, {S_WS}, s12 offen sc1
    s_waitcnt vmcnt(0)
    s_cmp_lg_u32 s92, 0
    s_cbranch_scc1 L_xa_n1
    ds_read_b128 v[16:19], v98
    v_xor_b32 v98, 64, v98
    ds_read_b128 v[20:23], v98
    v_xor_b32 v98, 192, v98
    ds_read_b128 v[24:27], v98
    v_xor_b32 v98, 64, v98
    ds_read_b128 v[28:31], v98
    L_xa_n1:
    v_cmp_ne_u32 vcc, 0, v14
    v_cmp_eq_u64 s[100:101], v[36:37], v[14:15]
    v_max_u32 v4, v32, v33
    s_and_b64 vcc, vcc, s[100:101]
    s_cmp_eq_u64 vcc, exec
    s_cbranch_scc0 L_xa_next
    v_cmp_ne_u32 vcc, -1, v4
    v_cmp_eq_u64 s[100:101], v[34:35], v[14:15]
    s_and_b32 vcc_lo, vcc_lo, 0x00ff00ff
    s_and_b32 vcc_hi, vcc_hi, 0x00ff00ff
    s_and_b32 s100, s100, 0xff00ff00
    s_and_b32 s101, s101, 0xff00ff00
    s_or_b64 vcc, s[100:101], vcc
    s_cmp_eq_u64 vcc, exec
    s_cbranch_scc1 L_xa_got
    s_cmp_le_u32 s92, {FT}
    s_cbranch_scc1 L_xa_next
    buffer_load_dwordx4 v[32:35], v5, {S_WS}, s95 offen sc1
    s_waitcnt vmcnt(0)
    v_cmp_eq_u64 vcc, v[34:35], v[14:15]
    s_cmp_eq_u64 vcc, exec
    s_cbranch_scc0 L_xa_next
    L_xa_got:
    ds_write_b64 v96, v[32:33] offset:{L_XAL}
    s_mov_b32 s15, 1
    """)
    g.signal(C_XA)
    I(f"""
    L_xa_chk:
    ds_read_b32 v4, {VZ} offset:{L_CNT+4*C_XA}
    s_waitcnt lgkmcnt(0)
    v_cmp_gt_u32 vcc, 8, v4
    s_cbranch_vccz L_xa_done
    L_xa_next:
    s_cmp_lg_u32 s92, {FT}
    s_cbranch_scc1 L_xa_nf
    s_mov_b32 s93, 0
    L_xa_non:
    buffer_load_dwordx2 v[14:15], {VZ}, {S_DBG}, 0 offen sc1
    s_waitcnt vmcnt(0)
    v_cmp_ne_u32 vcc, 0, v14
    s_add_u32 s93, s93, 1
    s_cmp_eq_u64 vcc, exec
    s_cbranch_scc1 L_xa_non_d
    s_sleep 4
    s_cmp_lt_u32 s93, {POLL_LIMIT}
    s_cbranch_scc1 L_xa_non
    L_xa_non_d:
    v_mov_b32 v12, v196
    v_mov_b32 v13, v197
    buffer_store_dwordx4 v[12:15], v199, {S_WS}, s99 offen sc1
    L_xa_nf:
    s_and_b32 s93, s92, 3
    s_cmp_lg_u32 s93, 3
    s_cbranch_scc1 L_xa_nr
    buffer_store_dwordx2 v[196:197], v199, {S_WS}, s98 offen
    L_xa_nr:
    s_add_u32 s92, s92, 1
    s_cmp_lt_u32 s92, {POLL_LIMIT}
    s_cbranch_scc1 L_xa_loop
    L_xa_done:
    """)
    g.stamp(3)
    for k in range(8):
        I(f"ds_read_b64 v[{32+2*k}:{33+2*k}], v102 offset:{L_XAL+512*k}")
    for k in range(8):
        I(f"s_waitcnt lgkmcnt({7-k})")
        I(f"v_mfma_f32_16x16x16_bf16 v[8:11], v[{16+2*k}:{17+2*k}], v[{32+2*k}:{33+2*k}], v[8:11]")
    SC = (128 ** -0.5) * 1.4426950408889634
    I("s_nop 7")
    for r in (8, 4, 2):
        for k in range(4):
            I(f"v_add_f32_dpp v{8+k}, v{8+k}, v{8+k} row_ror:{r} row_mask:0xf bank_mask:0xf")
    for k in range(4):
        I(f"v_mul_f32 v{8+k}, {f2u(SC):#x}, v{8+k}")
    I(f"""
    v_cvt_pk_bf16_f32 v104, v8, v9
    v_cvt_pk_bf16_f32 v105, v10, v11
    buffer_store_dwordx2 v[104:105], v99, {S_WS}, s14 offen sc1
    v_mov_b32 v12, v196
    v_mov_b32 v13, v197
    v_mov_b32 v108, v14
    v_mov_b32 v195, v14
    v_mov_b32 v109, v15
    """)
    g.stamp(4)
    I(f"""
    s_barrier
    buffer_store_dwordx4 v[12:15], v199, {S_WS}, s99 offen sc1
    s_cmp_lg_u32 {sWV}, 7
    s_cbranch_scc1 L_B_pr
    v_mov_b32 v4, {OOB}
    v_cmp_eq_u32 vcc, 0, v1
    s_lshl_b32 s14, {sX}, 5
    s_add_u32 s14, s14, {sS}
    v_cndmask_b32 v7, v4, 0, vcc
    s_lshl_b32 s14, s14, 4
    s_add_u32 s14, s14, {FLAGS}
    s_getreg_b32 s15, hwreg(HW_REG_XCC_ID)
    v_mov_b32 v110, s15
    v_mov_b32 v111, 0
    buffer_store_dwordx4 v[108:111], v7, {S_WS}, s14 offen sc1
    L_B_pr:
    """)
    if P["pf_rows"]:
        n = P["pf_rows"] // 64
        I(f"""
        s_lshl_b32 s12, {sX}, 11
        s_lshl_b32 s13, {sM}, 7
        s_add_u32 s12, s12, s13
        s_add_u32 s12, s12, {128 - P["pf_rows"]}
        s_mul_i32 s13, {sWV}, {8*n}
        s_add_u32 s12, s12, s13
        s_lshl_b32 s12, s12, 10
        v_lshlrev_b32 v4, 7, v1
        """)
        for i in range(n):
            I(f"buffer_load_dword v{194+i}, v4, {S_CKV}, s12 offen nt\ns_add_u32 s12, s12, 8192")
    I(f"""
    s_lshl_b32 s12, {sX}, 4
    s_add_u32 s12, s12, {sM}
    s_lshl_b32 s12, s12, 7
    s_add_u32 s12, s12, {XH}
    s_mov_b32 s92, 0
    s_cmp_lg_u32 {sWV}, 0
    s_cbranch_scc1 L_B_hd
    L_B_hp:
    buffer_load_dwordx2 v[12:13], {VZ}, {S_WS}, s12 offen sc1
    s_waitcnt vmcnt(0)
    v_cmp_eq_u64 vcc, v[12:13], v[108:109]
    s_add_u32 s92, s92, 1
    s_cbranch_vccnz L_B_hd
    s_sleep 4
    s_cmp_lt_u32 s92, 200
    s_cbranch_scc1 L_B_hp
    L_B_hd:
    s_barrier
    """)
    g.stamp(26)
    g.label("L_B_p2")
    I(f"""
    s_cmp_ge_u32 {sWV}, 4
    s_cbranch_scc1 L_B_np
    s_lshl_b32 s12, {sX}, 5
    s_lshl_b32 s13, {sM}, 1
    s_add_u32 s12, s12, s13
    s_lshr_b32 s13, {sWV}, 1
    s_add_u32 s12, s12, s13
    s_mul_i32 s12, s12, {C1J}
    s_and_b32 s13, {sWV}, 1
    s_lshl_b32 s13, s13, 13
    s_add_u32 s12, s12, s13
    s_add_u32 s12, s12, {XC1D}
    v_lshlrev_b32 v4, 7, v1
    buffer_load_dword v194, v4, {S_WS}, s12 offen nt
    L_B_np:
    v_lshrrev_b32 v4, 2, v1
    v_lshlrev_b32 v4, 13, v4
    v_and_b32 v6, 3, v1
    v_lshl_add_u32 v4, v6, 4, v4
    s_lshl_b32 s12, {sWV}, 17
    s_lshl_b32 s13, {sH}, 8
    s_add_u32 s12, s12, s13
    s_lshl_b32 s13, {sSUB}, 6
    s_add_u32 s12, s12, s13
    s_lshl_b32 s13, {sWV}, 10
    s_add_u32 s13, s13, {L_WUV}
    """)
    for i in range(4):
        dma("v4", S_WUV, NT, 8192, 1 << 20)
    I(f"""
    s_lshl_b32 s12, {sH}, 7
    s_lshl_b32 s13, {sSUB}, 5
    s_add_u32 s12, s12, s13
    s_mul_i32 s12, s12, 1280
    s_lshl_b32 s13, {sWV}, 10
    s_add_u32 s12, s12, s13
    s_add_u32 s13, s13, {L_WO}
    """)
    for i in range(5):
        dma("v5", S_WO, NT, 8192, 8192)
    if P["w2pf"]:
        I(f"""
        s_cmp_lt_u32 {sX}, 3
        s_cbranch_scc1 L_B_npf
        s_cmp_ge_u32 {sWV}, 4
        s_cbranch_scc1 L_B_npf
        v_min_u32 v4, 53, v1
        v_lshrrev_b32 v7, 1, v4
        v_mul_u32_u24 v7, 1280, v7
        v_and_b32 v4, 1, v4
        v_lshl_add_u32 v7, v4, 7, v7
        s_mul_i32 s12, {sM}, 108
        s_mul_i32 s13, {sWV}, 27
        s_add_u32 s12, s12, s13
        s_mul_i32 s12, s12, 1280
        s_sub_u32 s13, {sX}, 3
        s_lshl_b32 s13, s13, 8
        s_add_u32 s12, s12, s13
        buffer_load_dword v194, v7, {S_W2}, s12 offen {P["w2pf_flag"]}
        L_B_npf:
        """)
    I(f"""
    v_bfe_u32 v4, v1, 2, 2
    v_lshl_add_u32 v4, v2, 3, v4
    v_lshlrev_b32 v16, 6, v4
    v_lshl_add_u32 v16, v6, 3, v16
    s_lshl_b32 s12, {sWV}, 12
    s_add_u32 s12, s12, {L_WUV}
    v_add_u32 v16, s12, v16
    v_mul_u32_u24 v17, 1280, v4
    v_lshl_add_u32 v17, v6, 3, v17
    s_mul_i32 s12, {sWV}, 160
    s_add_u32 s12, s12, {L_WO}
    v_add_u32 v17, s12, v17
    v_and_b32 v18, 7, v3
    v_lshlrev_b32 v18, 10, v18
    v_lshl_add_u32 v18, v2, 4, v18
    s_lshl_b32 s12, {sH}, 13
    s_lshl_b32 s13, {sWV}, 7
    s_add_u32 s12, s12, s13
    s_add_u32 s12, s12, {XC2D}
    v_and_b32 v4, 1, v2
    v_lshl_add_u32 v19, v4, 2, v6
    v_lshlrev_b32 v19, 7, v19
    s_lshl_b32 s13, {sH}, 10
    s_add_u32 s13, s13, {XC2M}
    v_lshl_add_u32 v20, v4, 5, v3
    v_lshlrev_b32 v20, 5, v20
    s_lshl_b32 s14, {sWV}, 2
    v_add_u32 v20, s14, v20
    v_lshlrev_b32 v21, 5, v1
    s_lshl_b32 s14, {sWV}, 7
    v_lshl_add_u32 v22, v1, 1, s14
    v_and_b32 v23, 1, v3
    v_lshlrev_b32 v23, 6, v23
    v_lshl_add_u32 v23, v2, 4, v23
    v_add_u32 v23, s14, v23
    v_and_b32 v24, 1, v3
    v_mul_u32_u24 v24, 2560, v24
    v_lshl_add_u32 v24, v2, 4, v24
    v_lshrrev_b32 v7, 1, v3
    v_lshl_add_u32 v24, v7, 6, v24
    v_mov_b32 v4, 1024
    v_cmp_eq_u32 vcc, 0, v7
    v_cmp_eq_u32 s[100:101], 1, v7
    s_nop 0
    v_cndmask_b32 v25, v4, v23, vcc
    v_cndmask_b32 v26, v4, v23, s[100:101]
    v_cmp_eq_u32 vcc, 2, v7
    v_cmp_eq_u32 s[100:101], 3, v7
    s_nop 0
    v_cndmask_b32 v27, v4, v23, vcc
    v_cndmask_b32 v28, v4, v23, s[100:101]
    v_cmp_eq_u32 vcc, 4, v7
    v_lshlrev_b32 v30, 2, v6
    s_nop 0
    v_cndmask_b32 v29, v4, v23, vcc
    ds_write_b32 v30, {VZ} offset:{L_CT+1024}
    v_mov_b32 v4, {OOB}
    v_cmp_gt_u32 vcc, 10, v3
    s_lshl_b32 s93, {sX}, 4
    s_add_u32 s93, s93, {sM}
    v_cndmask_b32 v24, v4, v24, vcc
    s_mul_i32 s93, s93, 5120
    s_mul_i32 s94, {sWV}, 320
    s_add_u32 s93, s93, s94
    s_add_u32 s93, s93, {XD1}
    """)
    I(f"s_cmp_lg_u32 {sWV}, 7\ns_cbranch_scc1 L_B_nu\nv_mov_b32 v14, v108\nv_mov_b32 v15, v109")
    verify_flags(32, False, False)
    g.label("L_B_nu")
    for r in list(range(8, 16)) + list(range(64, 68)):
        I(f"v_mov_b32 v{r}, 0")
    g.bar("vmcnt(0) lgkmcnt(0)")
    g.stamp(18)
    I(f"""
    ds_read_b32 v4, {VZ} offset:{L_CTRL+8}
    s_mul_i32 s14, {sX}, {16*5120}
    s_lshl_b32 s94, {sM}, 8
    s_add_u32 s14, s14, s94
    s_add_u32 s14, s14, {XD1}
    s_cmp_lg_u32 {sWV}, 0
    s_cbranch_scc1 L_B_np3
    s_cmp_ge_u32 {sM}, 10
    s_cbranch_scc1 L_B_np3
    v_lshrrev_b32 v5, 1, v1
    v_mul_u32_u24 v5, 2560, v5
    v_and_b32 v6, 1, v1
    v_lshl_add_u32 v5, v6, 7, v5
    buffer_load_dword v6, v5, {S_WS}, s14 offen sc1 nt
    L_B_np3:
    s_mul_i32 s95, {sWV}, {2*5120}
    s_add_u32 s14, s14, s95
    v_mul_u32_u24 v30, 2560, v2
    v_lshl_add_u32 v30, v3, 4, v30
    v_and_b32 v7, 1, v2
    v_mul_u32_u24 v31, 2560, v7
    v_lshl_add_u32 v31, v3, 4, v31
    v_lshrrev_b32 v7, 1, v2
    v_lshl_add_u32 v31, v7, 3, v31
    s_mul_i32 s95, {sX}, 5120
    s_add_u32 s95, s95, s94
    s_add_u32 s95, s95, {XD2}
    s_lshl_b32 s94, {sWV}, 9
    v_lshl_add_u32 v133, v1, 3, s94
    v_lshlrev_b32 v134, 3, v1
    """)
    for t in range(2):
        for nu in range(2):
            for tt in range(2):
                r = 96 + (t * 2 + nu) * 4 + 2 * tt
                I(f"ds_read_b64_tr_b16 v[{r}:{r+1}], v16 offset:{(32*t+4*tt)*64+32*nu}")
    for u in range(5):
        for tt in range(2):
            r = 112 + 4 * u + 2 * tt
            I(f"ds_read_b64_tr_b16 v[{r}:{r+1}], v17 offset:{32*u+4*tt*1280}")
    I("s_waitcnt lgkmcnt(0)\nv_readfirstlane_b32 s15, v4")
    g.poll([f"buffer_load_dwordx4 v[32:35], v18, {S_WS}, s12 offen sc1",
            f"buffer_load_dwordx4 v[36:39], v18, {S_WS}, s12 offen offset:64 sc1",
            f"buffer_load_dwordx2 v[48:49], v19, {S_WS}, s13 offen sc1"],
           list(range(32, 40)) + [48, 49], delay=P["d_c2"], backoff=P["bo_c2"])
    g.stamp(10)
    I(f"""
    v_mfma_f32_16x16x32_bf16 v[8:11], v[32:35], v[96:99], v[8:11]
    v_mfma_f32_16x16x32_bf16 v[12:15], v[32:35], v[100:103], v[12:15]
    v_max_f32_dpp v4, v48, v48 quad_perm:[1,0,3,2] row_mask:0xf bank_mask:0xf
    v_mfma_f32_16x16x32_bf16 v[8:11], v[36:39], v[104:107], v[8:11]
    v_mfma_f32_16x16x32_bf16 v[12:15], v[36:39], v[108:111], v[12:15]
    v_max_f32_dpp v4, v4, v4 quad_perm:[2,3,0,1] row_mask:0xf bank_mask:0xf
    v_sub_f32 v48, v48, v4
    v_exp_f32 v48, v48
    s_nop 0
    v_mul_f32 v4, v48, v49
    s_nop 1
    v_add_f32_dpp v4, v4, v4 quad_perm:[1,0,3,2] row_mask:0xf bank_mask:0xf
    s_nop 1
    v_add_f32_dpp v4, v4, v4 quad_perm:[2,3,0,1] row_mask:0xf bank_mask:0xf
    v_rcp_f32 v4, v4
    s_nop 0
    v_mul_f32 v48, v48, v4
    s_nop 1
    v_mov_b32_dpp v40, v48 quad_perm:[0,0,0,0] row_mask:0xf bank_mask:0xf
    v_mov_b32_dpp v42, v48 quad_perm:[1,1,1,1] row_mask:0xf bank_mask:0xf
    v_mov_b32_dpp v44, v48 quad_perm:[2,2,2,2] row_mask:0xf bank_mask:0xf
    v_mov_b32_dpp v46, v48 quad_perm:[3,3,3,3] row_mask:0xf bank_mask:0xf
    v_mul_f32 v5, v40, v8
    v_fmac_f32 v5, v42, v9
    v_mul_f32 v6, v40, v12
    v_fmac_f32 v5, v44, v10
    v_fmac_f32 v6, v42, v13
    v_fmac_f32 v5, v46, v11
    v_fmac_f32 v6, v44, v14
    ds_write_b32 v20, v5 offset:{L_DR}
    v_fmac_f32 v6, v46, v15
    ds_write_b32 v20, v6 offset:{L_DR+512}
    """)
    g.bar()
    I(f"""
    ds_read_b128 v[32:35], v21 offset:{L_DR}
    ds_read_b128 v[36:39], v21 offset:{L_DR+16}
    s_waitcnt lgkmcnt(0)
    v_add_f32 v32, v32, v33
    v_add_f32 v34, v34, v35
    v_add_f32 v36, v36, v37
    v_add_f32 v38, v38, v39
    v_add_f32 v32, v32, v34
    v_add_f32 v36, v36, v38
    v_add_f32 v32, v32, v36
    v_cvt_pk_bf16_f32 v32, v32, v32
    ds_write_b16 v22, v32 offset:{L_CT}
    s_waitcnt lgkmcnt(0)
    """)
    for u in range(5):
        I(f"ds_read_b128 v[{40+4*u}:{43+4*u}], v{25+u} offset:{L_CT}")
    for u in range(5):
        I(f"s_waitcnt lgkmcnt({4-u})")
        I(f"v_mfma_f32_16x16x32_bf16 v[64:67], v[{112+4*u}:{115+4*u}], v[{40+4*u}:{43+4*u}], v[64:67]")
    I(f"""
    s_nop 5
    s_cmp_eq_u32 s15, 1
    s_cbranch_scc1 L_e_fast
    buffer_store_dwordx4 v[64:67], v24, {S_WS}, s93 offen sc1
    s_branch L_e_done
    L_e_fast:
    buffer_store_dwordx4 v[64:67], v24, {S_WS}, s93 offen
    L_e_done:
    """)
    g.stamp(11)
    if P["wb"] == 1:
        I(f"""
        s_cmp_lg_u32 {sWV}, 1
        s_cbranch_scc1 L_nwb
        s_cmp_lg_u32 {sM}, 15
        s_cbranch_scc1 L_nwb
        s_sleep 40
        buffer_wbl2 sc1
        s_waitcnt vmcnt(0)
        L_nwb:
        """)
    I(f"s_cmp_ge_u32 {sM}, 10\ns_cbranch_scc1 L_fin")
    g.poll([f"buffer_load_dwordx4 v[32:35], v30, {S_WS}, s14 offen sc1"], range(32, 36), delay=P["d_d1"], tmp="v6", backoff=1)
    I(f"""
    v_permlane32_swap_b32 v32, v34
    v_permlane32_swap_b32 v33, v35
    v_add_f32 v32, v32, v34
    v_add_f32 v33, v33, v35
    ds_write_b64 v133, v[32:33] offset:{L_D1}
    """)
    g.bar()
    I(f"s_cmp_lg_u32 {sWV}, 0\ns_cbranch_scc1 L_fin")
    for v in range(8):
        I(f"ds_read_b64 v[{32+2*v}:{33+2*v}], v134 offset:{L_D1+512*v}")
    I("s_waitcnt lgkmcnt(0)")
    g.tree_add(32, 8, 2, 2)
    I(f"buffer_store_dwordx2 v[32:33], v31, {S_WS}, s95 offen sc1")
    g.stamp(12)
    I("s_branch L_fin")

    g.label("L_Awg")
    I(f"""
    s_lshl_b32 s12, {sX}, 11
    s_lshl_b32 s13, {sM}, 7
    s_add_u32 s12, s12, s13
    s_lshl_b32 s13, {sWV}, 4
    s_add_u32 s12, s12, s13
    s_lshl_b32 s12, s12, 10
    s_mul_i32 s13, {sWV}, {16*CPITCH}
    s_add_u32 s13, s13, {L_CKV}
    s_lshr_b32 s101, {sWV}, 1
    s_barrier
    buffer_store_dwordx4 v[12:15], v199, {S_WS}, s99 offen sc1
    """)

    def own_tile(cond):
        lab = g.newlab("Lt")
        lp = g.newlab("Ltl")
        I(f"{cond}\ns_cbranch_scc0 {lab}\ns_mov_b32 s14, 0")
        g.label(lp)
        for i in range(4):
            dma("v5", S_CKV, NT, CPITCH, 1024)
        I(f"s_add_u32 s14, s14, 1\ns_cmp_lt_u32 s14, 4\ns_cbranch_scc1 {lp}")
        g.label(lab)

    own_tile(f"s_cmp_lt_u32 s101, {P['ahead']}")
    I(f"""
    v_and_b32 v16, 7, v3
    v_lshlrev_b32 v16, 1, v16
    v_lshrrev_b32 v4, 3, v3
    v_add_u32 v16, v16, v4
    s_lshl_b32 s14, {sWV}, 4
    v_add_u32 v16, s14, v16
    v_mul_u32_u24 v16, {CPITCH}, v16
    v_lshl_add_u32 v16, v2, 8, v16
    v_add_u32 v16, {L_CKV}, v16
    v_and_b32 v17, 1, v2
    v_lshlrev_b32 v17, 3, v17
    v_bfe_u32 v4, v1, 2, 2
    v_lshl_add_u32 v17, v4, 1, v17
    v_lshrrev_b32 v4, 1, v2
    v_add_u32 v17, v17, v4
    v_mul_u32_u24 v17, {CPITCH}, v17
    v_and_b32 v4, 3, v1
    v_lshl_add_u32 v17, v4, 3, v17
    s_lshl_b32 s14, {sWV}, 7
    s_add_u32 s14, s14, {L_CKV}
    v_add_u32 v17, s14, v17
    v_mul_u32_u24 v18, {CPITCH}, v3
    v_lshl_add_u32 v18, v2, 8, v18
    v_lshlrev_b32 v19, 5, v3
    s_lshl_b32 s14, {sWV}, 2
    v_add_u32 v20, s14, v19
    s_lshr_b32 s14, {sWV}, 1
    s_lshl_b32 s14, s14, 10
    s_and_b32 s15, {sWV}, 1
    s_lshl_b32 s15, s15, 3
    s_add_u32 s14, s14, s15
    v_add_u32 v21, s14, v5
    s_mul_i32 s14, {sWV}, {4*CPITCH}
    v_add_u32 v22, s14, v5
    v_lshrrev_b32 v23, 1, v2
    v_and_b32 v4, 7, v3
    v_xor_b32 v23, v23, v4
    v_lshlrev_b32 v23, 4, v23
    v_lshl_add_u32 v23, v3, 7, v23
    v_and_b32 v4, 1, v2
    v_lshl_add_u32 v23, v4, 3, v23
    s_lshl_b32 s14, {sWV}, 12
    s_add_u32 s14, s14, {L_TR}
    v_add_u32 v23, s14, v23
    v_xor_b32 v24, 32, v23
    v_xor_b32 v25, 64, v23
    v_xor_b32 v26, 96, v23
    v_lshrrev_b32 v30, 3, v1
    v_and_b32 v31, 7, v1
    v_xor_b32 v27, v30, v31
    v_lshlrev_b32 v27, 4, v27
    v_lshl_add_u32 v27, v30, 7, v27
    v_add_u32 v27, s14, v27
    s_mov_b32 s14, {C1J}
    v_mul_lo_u32 v28, v30, s14
    v_lshl_add_u32 v28, v31, 4, v28
    v_lshlrev_b32 v29, 7, v1
    v_mov_b32 v4, {OOB}
    v_cmp_gt_u32 vcc, 32, v1
    s_lshr_b32 s94, {sX}, 2
    s_lshl_b32 s94, s94, 15
    v_cndmask_b32 v29, v4, v29, vcc
    s_lshl_b32 s14, {sWV}, 12
    s_add_u32 s94, s94, s14
    s_add_u32 s94, s94, {XB}
    """)
    def send_hint():
        I(f"""
        s_lshl_b32 s14, {sX}, 4
        s_add_u32 s14, s14, {sM}
        s_lshl_b32 s14, s14, 7
        s_add_u32 s14, s14, {XH}
        v_mov_b32 v4, {OOB}
        v_cmp_eq_u32 vcc, 0, v0
        s_nop 1
        v_cndmask_b32 v4, v4, 0, vcc
        buffer_store_dwordx2 v[14:15], v4, {S_WS}, s14 offen sc1
        """)
    xb_loads = [f"buffer_load_dwordx4 v[{96+4*t}:{99+4*t}], v5, {S_WS}, s94 offen offset:{1024*t} sc1" for t in range(4)]
    for kb in range(4):
        I(f"s_cmp_lg_u32 s101, {kb}\ns_cbranch_scc1 L_A_na{kb}")
        I(f"s_waitcnt vmcnt({(5 if P['hint_kb'] == 2 else 4) if kb == 3 else 0})")
        g.stamp(27)
        for j in range(16):
            I(f"ds_read_b128 v[{32+4*j}:{35+4*j}], v16 offset:{16*j}")
        g.label(f"L_A_na{kb}")
        if kb == 2:
            I(f"s_cmp_lg_u32 {sWV}, 0\ns_cbranch_scc1 L_A_w2")
            verify_flags(112, True, True, first_wait="vmcnt(0)", onlyA=True)
            g.label("L_A_w2")
        if kb in (1, 2):
            g.bar()
        else:
            g.bar(None)
        if kb == P["fl_kb"]:
            I(f"s_cmp_lg_u32 {sWV}, 0\ns_cbranch_scc1 L_A_nf")
            for i in range(4):
                I(f"buffer_load_dwordx4 v[{112+4*i}:{115+4*i}], v5, {S_WS}, 0 offen offset:{FLAGS+1024*i} sc1")
            g.label("L_A_nf")
        if kb + P["ahead"] < 4:
            own_tile(f"s_cmp_eq_u32 s101, {kb + P['ahead']}")
        if kb == 2:
            for l in xb_loads:
                I(l)
            if P["hint_kb"] == 2:
                send_hint()
        if kb == 3:
            g.stamp(6)
        for tau in range(4):
            for t in range(2):
                dst = PVA + (tau * 4 + kb) * 4 + 2 * t
                I(f"ds_read_b64_tr_b16 v[{dst}:{dst+1}], v17 offset:{16*t*CPITCH + 32*tau}")
        if kb < 3:
            I(f"v_add_u32 v17, {32*CPITCH}, v17")
    I(f"ds_read_b32 v6, {VZ} offset:{L_CTRL+8}")
    g.poll(xb_loads, range(96, 112), preissued=True, backoff=P["bo_b"])
    g.stamp(5)
    for t in range(4):
        I(f"ds_write_b128 v22, v[{96+4*t}:{99+4*t}] offset:{L_QA+CPITCH*t}")
    if P["hint_kb"] == 4:
        send_hint()
    I(f"""
    s_lshl_b32 s93, {sX}, 4
    s_add_u32 s93, s93, {sM}
    s_lshl_b32 s93, s93, 8
    s_add_u32 s93, s93, {XC1M}
    s_cmp_lg_u32 {sWV}, 3
    s_cbranch_scc1 L_A_npm
    v_lshlrev_b32 v4, 2, v1
    buffer_load_dword v194, v4, {S_WS}, s93 offen sc1 nt
    L_A_npm:
    """)
    for r in range(8, 16):
        I(f"v_mov_b32 v{r}, 0")
    g.bar()
    I("v_readfirstlane_b32 s15, v6")
    seq = [(j, ht) for j in range(16) for ht in range(2)]
    def qread(i):
        j, ht = seq[i]
        r = 96 + 4 * (i % 8)
        I(f"ds_read_b128 v[{r}:{r+3}], v18 offset:{L_QA+16*CPITCH*ht+16*j}")
    for i in range(8):
        qread(i)
    for i in range(32):
        j, ht = seq[i]
        r = 96 + 4 * (i % 8)
        I(f"s_waitcnt lgkmcnt({min(7, 31 - i)})")
        I(f"v_mfma_f32_16x16x32_bf16 v[{8+4*ht}:{11+4*ht}], v[{32+4*j}:{35+4*j}], v[{r}:{r+3}], v[{8+4*ht}:{11+4*ht}]")
        if i + 8 < 32:
            qread(i + 8)
    for r in range(32, 40):
        I(f"v_mov_b32 v{r}, 0")
    I(f"""
    v_max_f32 v4, v8, v9
    v_max_f32 v6, v12, v13
    v_max3_f32 v4, v4, v10, v11
    v_max3_f32 v6, v6, v14, v15
    s_nop 1
    v_permlane16_swap_b32 v4, v6
    v_max_f32 v4, v4, v6
    v_mov_b32 v6, v4
    s_nop 1
    v_permlane32_swap_b32 v4, v6
    v_max_f32 v4, v4, v6
    """)
    I(f"""
    v_and_b32 v6, 1, v2
    v_lshl_add_u32 v7, v6, 9, v20
    ds_write_b32 v7, v4 offset:{L_MB}
    """)
    g.stamp(20)
    for r in range(40, 64):
        I(f"v_mov_b32 v{r}, 0")
    g.bar()
    g.stamp(21)
    I(f"""
    ds_read_b128 v[96:99], v19 offset:{L_MB}
    ds_read_b128 v[100:103], v19 offset:{L_MB+16}
    ds_read_b128 v[104:107], v19 offset:{L_MB+512}
    ds_read_b128 v[108:111], v19 offset:{L_MB+528}
    s_waitcnt lgkmcnt(2)
    v_max3_f32 v4, v96, v97, v98
    v_max3_f32 v4, v4, v99, v100
    v_max3_f32 v4, v4, v101, v102
    v_max_f32 v4, v4, v103
    s_waitcnt lgkmcnt(0)
    v_max3_f32 v6, v104, v105, v106
    v_max3_f32 v6, v6, v107, v108
    v_max3_f32 v6, v6, v109, v110
    v_max_f32 v6, v6, v111
    """)
    for k in range(4):
        I(f"v_sub_f32 v{8+k}, v{8+k}, v4\nv_sub_f32 v{12+k}, v{12+k}, v6")
    for k in range(8):
        I(f"v_exp_f32 v{8+k}, v{8+k}")
    I(f"""
    s_nop 0
    v_cvt_pk_bf16_f32 v96, v8, v9
    v_cvt_pk_bf16_f32 v97, v10, v11
    v_cvt_pk_bf16_f32 v98, v12, v13
    v_cvt_pk_bf16_f32 v99, v14, v15
    ds_write_b64 v21, v[96:97] offset:{L_PB}
    ds_write_b64 v21, v[98:99] offset:{L_PB+4096}
    v_add_f32 v4, v8, v9
    v_add_f32 v6, v12, v13
    v_add_f32 v8, v10, v11
    v_add_f32 v9, v14, v15
    v_add_f32 v4, v4, v8
    v_add_f32 v6, v6, v9
    s_nop 1
    v_permlane16_swap_b32 v4, v6
    v_add_f32 v4, v4, v6
    v_mov_b32 v6, v4
    s_nop 1
    v_permlane32_swap_b32 v4, v6
    v_add_f32 v4, v4, v6
    ds_write_b32 v7, v4 offset:{L_LB}
    s_mul_i32 s12, {sX}, {32*C1J}
    s_lshl_b32 s13, {sM}, 10
    s_add_u32 s12, s12, s13
    s_lshl_b32 s13, {sWV}, 7
    s_add_u32 s12, s12, s13
    s_add_u32 s12, s12, {XC1D}
    s_lshl_b32 s13, {sX}, 12
    s_lshl_b32 s14, {sM}, 3
    s_add_u32 s13, s13, s14
    s_add_u32 s13, s13, {XC1M}
    v_and_b32 v6, 31, v1
    v_lshlrev_b32 v6, 5, v6
    """)
    g.bar()
    g.stamp(22)
    for q in range(8):
        I(f"ds_read_b128 v[{64+4*q}:{67+4*q}], v5 offset:{L_PB+1024*q}")
    I("s_cmp_eq_u32 s15, 1\ns_cbranch_scc1 L_pv_fast")
    for fl, lab in (("sc1", None), ("", "L_pv_fast")):
        if lab:
            g.label(lab)
        for ht in range(2):
            I(f"s_waitcnt lgkmcnt({4 if ht == 0 else 0})")
            for tau in range(4):
                for kb in range(4):
                    acc = 32 + (tau * 2 + ht) * 4
                    a = PVA + (tau * 4 + kb) * 4
                    pb = 64 + (ht * 4 + kb) * 4
                    I(f"v_mfma_f32_16x16x32_bf16 v[{acc}:{acc+3}], v[{a}:{a+3}], v[{pb}:{pb+3}], v[{acc}:{acc+3}]")
                if ht == 1:
                    if tau == 0:
                        for tq in range(3):
                            acc = 32 + (tq * 2) * 4
                            I(f"v_cvt_pk_bf16_f32 v{acc}, v{acc}, v{acc+1}\nv_cvt_pk_bf16_f32 v{acc+1}, v{acc+2}, v{acc+3}")
                            I(f"ds_write_b64 v{23+tq}, v[{acc}:{acc+1}]")
                    if tau == 1:
                        acc = 32 + 6 * 4
                        I(f"v_cvt_pk_bf16_f32 v{acc}, v{acc}, v{acc+1}\nv_cvt_pk_bf16_f32 v{acc+1}, v{acc+2}, v{acc+3}")
                        I(f"ds_write_b64 v26, v[{acc}:{acc+1}]")
                        I("s_waitcnt lgkmcnt(0)")
                        I("ds_read_b128 v[96:99], v27\nds_read_b128 v[100:103], v27 offset:1024")
                    if tau == 2:
                        I("s_waitcnt lgkmcnt(1)")
                        I(f"buffer_store_dwordx4 v[96:99], v28, {S_WS}, s12 offen {fl}")
                        I(f"s_add_u32 s12, s12, {8*C1J}")
                        I("s_waitcnt lgkmcnt(0)")
                        I(f"buffer_store_dwordx4 v[100:103], v28, {S_WS}, s12 offen {fl}")
                        I(f"s_add_u32 s12, s12, {8*C1J}")
        I(f"""
        ds_read_b128 v[112:115], v6 offset:{L_MB}
        ds_read_b128 v[116:119], v6 offset:{L_MB+16}
        ds_read_b128 v[120:123], v6 offset:{L_LB}
        ds_read_b128 v[124:127], v6 offset:{L_LB+16}
        """)
        for tau in range(4):
            acc = 32 + (tau * 2 + 1) * 4
            I(f"v_cvt_pk_bf16_f32 v{acc}, v{acc}, v{acc+1}\nv_cvt_pk_bf16_f32 v{acc+1}, v{acc+2}, v{acc+3}")
            I(f"ds_write_b64 v{23+tau}, v[{acc}:{acc+1}] offset:2048")
        I("s_waitcnt lgkmcnt(0)")
        I("ds_read_b128 v[104:107], v27 offset:2048\nds_read_b128 v[108:111], v27 offset:3072")
        g.stamp(23)
        I(f"""
        v_max3_f32 v8, v112, v113, v114
        v_max3_f32 v8, v8, v115, v116
        v_max3_f32 v8, v8, v117, v118
        v_max_f32 v8, v8, v119
        s_waitcnt lgkmcnt(1)
        buffer_store_dwordx4 v[104:107], v28, {S_WS}, s12 offen {fl}
        s_add_u32 s12, s12, {8*C1J}
        s_waitcnt lgkmcnt(0)
        buffer_store_dwordx4 v[108:111], v28, {S_WS}, s12 offen {fl}
        v_add_f32 v9, v120, v121
        v_add_f32 v10, v122, v123
        v_add_f32 v11, v124, v125
        v_add_f32 v12, v126, v127
        v_add_f32 v9, v9, v10
        v_add_f32 v11, v11, v12
        v_add_f32 v9, v9, v11
        """)
        g.bar("vmcnt(0)")
        g.stamp(25)
        I(f"s_cmp_lg_u32 {sWV}, 0\ns_cbranch_scc1 L_c1_done")
        I(f"buffer_store_dwordx2 v[8:9], v29, {S_WS}, s13 offen {fl}")
        if not lab:
            I("s_branch L_c1_done")
    g.label("L_c1_done")
    g.stamp(7)
    I(f"""
    v_lshlrev_b32 v16, 3, v30
    s_lshl_b32 s14, {sX}, 5
    s_lshl_b32 s13, {sM}, 1
    s_add_u32 s14, s14, s13
    s_mul_i32 s12, s14, {C1J}
    v_lshlrev_b32 v7, 10, v30
    v_lshl_add_u32 v7, v31, 4, v7
    v_add_u32 v6, 8192, v7
    s_lshl_b32 s13, {sWV}, 7
    s_add_u32 s12, s12, s13
    s_add_u32 s12, s12, {XC1D}
    s_add_u32 s14, s12, {C1J}
    v_lshlrev_b32 v17, 4, v31
    v_lshl_add_u32 v17, v2, 2, v17
    v_bfe_u32 v4, v1, 3, 1
    v_lshl_add_u32 v17, v4, 13, v17
    s_lshl_b32 s95, {sM}, 4
    s_add_u32 s95, s95, {sX}
    s_lshl_b32 s94, s95, 10
    s_add_u32 s94, s94, s13
    s_add_u32 s94, s94, {XC2D}
    s_lshl_b32 s95, s95, 7
    s_add_u32 s95, s95, {XC2M}
    v_lshlrev_b32 v18, 7, v1
    v_and_b32 v4, 0x1f7, v0
    v_mov_b32 v19, {OOB}
    v_cmp_eq_u32 vcc, 0, v4
    s_nop 1
    v_cndmask_b32 v18, v19, v18, vcc
    """)
    g.poll([f"buffer_load_dwordx2 v[{32+2*q}:{33+2*q}], v16, {S_WS}, s93 offen offset:{64*q} sc1" for q in range(4)],
           range(32, 40), delay=P["d_c1"], backoff=1)
    I(f"""
    buffer_load_dwordx4 v[64:67], v7, {S_WS}, s12 offen sc1
    buffer_load_dwordx4 v[68:71], v6, {S_WS}, s12 offen sc1
    buffer_load_dwordx4 v[72:75], v7, {S_WS}, s14 offen sc1
    buffer_load_dwordx4 v[76:79], v6, {S_WS}, s14 offen sc1
    """)
    g.stamp(8)
    I(f"""
    v_max_f32 v8, v32, v34
    v_max_f32 v10, v36, v38
    s_nop 1
    v_max_f32_dpp v8, v8, v8 row_ror:8 row_mask:0xf bank_mask:0xf
    v_max_f32_dpp v10, v10, v10 row_ror:8 row_mask:0xf bank_mask:0xf
    v_mov_b32 v12, v8
    v_mov_b32 v13, v10
    s_nop 0
    v_permlane16_swap_b32 v8, v12
    v_permlane16_swap_b32 v10, v13
    v_max_f32 v8, v8, v12
    v_max_f32 v10, v10, v13
    v_mov_b32 v12, v8
    v_mov_b32 v13, v10
    s_nop 0
    v_permlane32_swap_b32 v8, v12
    v_permlane32_swap_b32 v10, v13
    v_max_f32 v8, v8, v12
    v_max_f32 v10, v10, v13
    v_sub_f32 v32, v32, v8
    v_sub_f32 v34, v34, v8
    v_sub_f32 v36, v36, v10
    v_sub_f32 v38, v38, v10
    v_exp_f32 v32, v32
    v_exp_f32 v34, v34
    v_exp_f32 v36, v36
    v_exp_f32 v38, v38
    s_nop 0
    v_mul_f32 v9, v32, v33
    v_mul_f32 v11, v36, v37
    v_fmac_f32 v9, v34, v35
    v_fmac_f32 v11, v38, v39
    s_nop 1
    v_add_f32_dpp v9, v9, v9 row_ror:8 row_mask:0xf bank_mask:0xf
    v_add_f32_dpp v11, v11, v11 row_ror:8 row_mask:0xf bank_mask:0xf
    v_mov_b32 v12, v9
    v_mov_b32 v13, v11
    s_nop 0
    v_permlane16_swap_b32 v9, v12
    v_permlane16_swap_b32 v11, v13
    v_add_f32 v9, v9, v12
    v_add_f32 v11, v11, v13
    v_mov_b32 v12, v9
    v_mov_b32 v13, v11
    s_nop 0
    v_permlane32_swap_b32 v9, v12
    v_permlane32_swap_b32 v11, v13
    v_add_f32 v9, v9, v12
    v_add_f32 v11, v11, v13
    v_cmp_eq_u32 vcc, 8, v1
    s_nop 1
    v_cndmask_b32 v8, v8, v10, vcc
    v_cndmask_b32 v9, v9, v11, vcc
    buffer_store_dwordx2 v[8:9], v18, {S_WS}, s95 offen sc1
    """)
    if diag and not P.get("lite"):
        I("s_waitcnt vmcnt(1)")
        g.stamp(24)
    for q in range(4):
        hh, i = q >> 1, q & 1
        ab = 40 + 8 * hh
        I(f"s_waitcnt vmcnt({4-q})")
        for d in range(4):
            src = 64 + 4 * q + d
            I(f"v_lshlrev_b32 v12, 16, v{src}\nv_and_b32 v13, 0xffff0000, v{src}")
            if i == 0:
                I(f"v_mul_f32 v{ab+2*d}, v{32+2*q}, v12\nv_mul_f32 v{ab+1+2*d}, v{32+2*q}, v13")
            else:
                I(f"v_fmac_f32 v{ab+2*d}, v{32+2*q}, v12\nv_fmac_f32 v{ab+1+2*d}, v{32+2*q}, v13")
    I("s_nop 1")
    for ab in (40, 48):
        for k in (0, 1, 4, 5):
            I(f"v_permlane16_swap_b32 v{ab+k}, v{ab+2+k}")
    for ab in (40, 48):
        for k in (0, 1, 4, 5):
            I(f"v_add_f32 v{ab+k}, v{ab+k}, v{ab+2+k}")
    I("s_nop 0")
    for ab in (40, 48):
        for k in (0, 1):
            I(f"v_permlane32_swap_b32 v{ab+k}, v{ab+4+k}")
    I(f"""
    v_add_f32 v40, v40, v44
    v_add_f32 v41, v41, v45
    v_add_f32 v48, v48, v52
    v_add_f32 v49, v49, v53
    v_cmp_lt_u32 vcc, 7, v3
    v_add_f32_dpp v40, v40, v40 row_ror:8 row_mask:0xf bank_mask:0xf
    v_add_f32_dpp v41, v41, v41 row_ror:8 row_mask:0xf bank_mask:0xf
    v_add_f32_dpp v48, v48, v48 row_ror:8 row_mask:0xf bank_mask:0xf
    v_add_f32_dpp v49, v49, v49 row_ror:8 row_mask:0xf bank_mask:0xf
    v_cvt_pk_bf16_f32 v40, v40, v41
    v_cvt_pk_bf16_f32 v48, v48, v49
    v_cndmask_b32 v40, v40, v48, vcc
    buffer_store_dword v40, v17, {S_WS}, s94 offen sc1
    """)
    g.stamp(9)
    g.bar("vmcnt(0)")
    I(f"s_cmp_eq_u32 {sUP}, 0\ns_cbranch_scc1 L_down")
    g.sleep(P["d_w13"])
    I(f"""
    v_mul_u32_u24 v4, 3456, v30
    v_and_b32 v6, 1, v2
    s_and_b32 s12, {sWV}, 1
    s_lshl_b32 s12, s12, 1
    v_add_u32 v6, s12, v6
    v_lshlrev_b32 v6, 1, v6
    v_xor_b32 v6, v6, v31
    v_lshl_add_u32 v4, v6, 4, v4
    s_mul_i32 s12, {sKC}, 160
    s_and_b32 s14, {sWV}, 3
    s_lshl_b32 s13, s14, 3
    s_add_u32 s12, s12, s13
    s_mul_i32 s12, s12, 3456
    s_lshl_b32 s13, {sFC}, 7
    s_add_u32 s12, s12, s13
    s_lshl_b32 s13, s14, 10
    s_cmp_ge_u32 {sWV}, 4
    s_cbranch_scc1 L_up_w3
    s_add_u32 s13, s13, {L_W1}
    """)
    for m in range(5):
        dma("v4", S_W1, NT, 4096, 32 * 3456)
    I("s_branch L_up_ld")
    g.label("L_up_w3")
    I(f"s_add_u32 s13, s13, {L_W3}")
    for m in range(5):
        dma("v4", S_W3, NT, 4096, 32 * 3456)
    g.label("L_up_ld")
    I(f"""
    v_bfe_u32 v4, v1, 3, 1
    v_and_b32 v6, 1, v2
    v_lshl_add_u32 v4, v6, 1, v4
    v_xor_b32 v4, s14, v4
    v_lshlrev_b32 v16, 5, v4
    v_bfe_u32 v4, v1, 2, 2
    v_lshl_add_u32 v4, v2, 3, v4
    v_lshl_add_u32 v16, v4, 7, v16
    v_and_b32 v4, 3, v1
    v_lshl_add_u32 v16, v4, 3, v16
    s_lshr_b32 s12, {sWV}, 2
    s_mul_i32 s12, s12, {L_W3-L_W1}
    v_add_u32 v16, s12, v16
    v_and_b32 v17, 3, v3
    v_min_u32 v17, 2, v17
    v_mul_u32_u24 v17, 320, v17
    v_lshl_add_u32 v17, v2, 4, v17
    v_lshlrev_b32 v18, 2, v4
    v_mov_b32 v4, {OOB}
    v_cmp_gt_u32 vcc, 16, v1
    s_lshl_b32 s93, {sX}, 4
    s_add_u32 s93, s93, {sM}
    v_cndmask_b32 v19, v4, v5, vcc
    s_lshl_b32 s93, s93, 11
    s_andn2_b32 s94, s93, 0x1fff
    s_lshl_b32 s13, {sWV}, 8
    s_add_u32 s93, s93, s13
    s_add_u32 s93, s93, {XU}
    s_lshl_b32 s13, {sKC}, 8
    s_add_u32 s94, s94, s13
    s_add_u32 s94, s94, {XU}
    v_lshlrev_b32 v20, 11, v2
    v_lshl_add_u32 v20, v3, 4, v20
    v_min_u32 v21, 39, v1
    v_mov_b32 v8, 0
    v_mov_b32 v9, 0
    v_mov_b32 v10, 0
    v_mov_b32 v11, 0
    """)
    I(f"""
    s_sub_u32 s12, {sWV}, 1
    s_cmp_ge_u32 s12, 2
    s_cbranch_scc1 L_up_nx
    v_lshlrev_b32 v22, 3, v21
    s_mul_i32 s13, s12, 1280
    s_mul_i32 s14, {sKC}, 320
    s_add_u32 s13, s13, s14
    buffer_load_dwordx2 v[194:195], v22, {S_X}, s13 offen
    L_up_nx:
    s_cmp_lg_u32 {sWV}, 3
    s_cbranch_scc1 L_up_n1
    v_mov_b32 v12, 0x3f803f80
    v_mov_b32 v13, 0x3f803f80
    v_lshlrev_b32 v4, 3, v21
    ds_write_b64 v4, v[12:13] offset:{L_HB+640}
    L_up_n1:
    s_cmp_lg_u32 {sWV}, 0
    s_cbranch_scc1 L_up_n0
    v_lshrrev_b32 v4, 2, v3
    v_lshlrev_b32 v4, 11, v4
    v_bfe_u32 v6, v3, 1, 1
    v_lshl_add_u32 v4, v6, 10, v4
    v_and_b32 v6, 1, v3
    v_lshl_add_u32 v4, v6, 7, v4
    buffer_load_dword v194, v4, {S_WS}, s94 offen sc1 nt
    L_up_n0:
    """)
    g.bar("vmcnt(0) lgkmcnt(0)")
    g.stamp(19)
    for st in range(5):
        for tt in range(2):
            I(f"ds_read_b64_tr_b16 v[{96+4*st+2*tt}:{97+4*st+2*tt}], v16 offset:{L_W1+4096*st+512*tt}")
    I(f"s_cmp_ge_u32 s12, 2\ns_cbranch_scc1 L_up_mm")
    I(f"""
    v_lshlrev_b32 v7, 4, v21
    s_mul_i32 s13, s12, 2560
    s_mul_i32 s14, {sKC}, 640
    s_add_u32 s13, s13, s14
    s_add_u32 s13, s13, {XD2}
    s_mul_i32 s14, s12, 320
    v_add_u32 v22, s14, v22
    """)
    if P["t_d2"]:
        I(f"ds_read_b32 v4, {VZ} offset:{L_CTRL}\ns_waitcnt lgkmcnt(0)")
        until(P["t_d2"], "v4")
    d2l = lambda b: [f"s_add_u32 s14, s13, {i*5120}\nbuffer_load_dwordx4 v[{b+4*i}:{b+3+4*i}], v7, {S_WS}, s14 offen sc1"
                     for i in range(8)]
    if P["pipe"] > 1:
        g.poll_pipe(d2l, 32, [32, 128, 160][:min(3, P["pipe"])], gap=P["gap"])
    else:
        g.poll(d2l(32), range(32, 64), delay=P["d_d2"], tmp="v4", backoff=P["bo_d2"])
    g.stamp(13)
    g.tree_add(32, 8, 4, 4)
    h_from_sum(194)
    I(f"ds_write_b64 v22, v[8:9] offset:{L_HB}")
    g.signal(C_H)
    I("v_mov_b32 v8, 0\nv_mov_b32 v9, 0")
    g.label("L_up_mm")
    I(f"""
    v_mov_b32 v12, 0
    v_mov_b32 v13, 0
    v_mov_b32 v14, 0
    v_mov_b32 v15, 0
    s_mov_b32 s100, 0xaaaaaaaa
    s_mov_b32 s101, 0xaaaaaaaa
    """)
    g.waitc(C_H, 2)
    for st in range(5):
        I(f"ds_read_b128 v[{32+4*st}:{35+4*st}], v17 offset:{L_HB+64*st}")
    for st in range(5):
        I(f"s_waitcnt lgkmcnt({4-st})")
        I(f"v_mfma_f32_16x16x32_bf16 v[12:15], v[{32+4*st}:{35+4*st}], v[{32+4*st}:{35+4*st}], v[12:15]")
        I(f"v_mfma_f32_16x16x32_bf16 v[8:11], v[{32+4*st}:{35+4*st}], v[{96+4*st}:{99+4*st}], v[8:11]")
    I(f"""
    s_nop 7
    v_cndmask_b32 v11, v12, v13, s[100:101]
    s_cmp_eq_u32 s15, 1
    s_cbranch_scc1 L_u_fast
    buffer_store_dwordx4 v[8:11], v19, {S_WS}, s93 offen sc1
    s_branch L_u_done
    L_u_fast:
    buffer_store_dwordx4 v[8:11], v19, {S_WS}, s93 offen
    L_u_done:
    """)
    g.stamp(12)
    I(f"s_cmp_lg_u32 {sWV}, 0\ns_cbranch_scc1 L_fin")
    I(f"""
    v_lshlrev_b32 v16, 5, v2
    v_lshl_add_u32 v16, v3, 1, v16
    v_and_b32 v4, 0x21, v1
    v_mov_b32 v6, {OOB}
    v_cmp_eq_u32 vcc, 0, v4
    s_lshl_b32 s13, {sFC}, 2
    s_add_u32 s13, s13, {sKC}
    v_cndmask_b32 v16, v6, v16, vcc
    s_lshl_b32 s13, s13, 7
    s_add_u32 s13, s13, {XE}
    """)
    g.poll([f"buffer_load_dwordx4 v[32:35], v20, {S_WS}, s94 offen sc1",
            f"buffer_load_dwordx4 v[36:39], v20, {S_WS}, s94 offen offset:1024 sc1"],
           range(32, 40), delay=P["d_u"], backoff=1)
    g.stamp(13)
    for k in range(7):
        I(f"v_mov_b32 v{40+k}, v{32+k}")
    for k in range(7):
        I(f"v_permlane16_swap_b32 v{32+k}, v{40+k}")
    for k in range(7):
        I(f"v_add_f32 v{32+k}, v{32+k}, v{40+k}")
    for k in range(7):
        I(f"v_mov_b32 v{40+k}, v{32+k}")
    for k in range(7):
        I(f"v_permlane32_swap_b32 v{32+k}, v{40+k}")
    for k in range(7):
        I(f"v_add_f32 v{32+k}, v{32+k}, v{40+k}")
    I(f"""
    v_mov_b32_dpp v40, v35 quad_perm:[2,2,2,2] row_mask:0xf bank_mask:0xf
    v_mov_b32_dpp v41, v35 quad_perm:[0,0,0,0] row_mask:0xf bank_mask:0xf
    v_mov_b32_dpp v42, v35 quad_perm:[3,3,3,3] row_mask:0xf bank_mask:0xf
    v_mov_b32_dpp v43, v35 quad_perm:[1,1,1,1] row_mask:0xf bank_mask:0xf
    v_mul_f32 v40, {f2u(1.0/640):#x}, v40
    v_mul_f32 v41, {f2u(1.0/640):#x}, v41
    v_mul_f32 v42, {f2u(1.0/640):#x}, v42
    v_mul_f32 v43, {f2u(1.0/640):#x}, v43
    v_fma_f32 v41, -v40, v40, v41
    v_fma_f32 v43, -v42, v42, v43
    v_max_f32 v41, 0, v41
    v_max_f32 v43, 0, v43
    v_add_f32 v41, {f2u(1e-5):#x}, v41
    v_add_f32 v43, {f2u(1e-5):#x}, v43
    v_rsq_f32 v41, v41
    v_rsq_f32 v43, v43
    v_fma_f32 v32, -v40, v34, v32
    v_fma_f32 v33, -v42, v34, v33
    v_fma_f32 v36, -v40, v38, v36
    v_fma_f32 v37, -v42, v38, v37
    v_mul_f32 v32, v32, v41
    v_mul_f32 v33, v33, v43
    v_mul_f32 v36, v36, v41
    v_mul_f32 v37, v37, v43
    v_cvt_pk_bf16_f32 v8, v32, v33
    v_cvt_pk_bf16_f32 v9, v36, v37
    v_lshlrev_b32 v32, 16, v8
    v_and_b32 v33, 0xffff0000, v8
    v_lshlrev_b32 v34, 16, v9
    v_and_b32 v35, 0xffff0000, v9
    v_mul_f32 v36, {f2u(-1.4426950408889634):#x}, v32
    v_mul_f32 v37, {f2u(-1.4426950408889634):#x}, v33
    v_exp_f32 v36, v36
    v_exp_f32 v37, v37
    s_nop 0
    v_add_f32 v36, 1.0, v36
    v_add_f32 v37, 1.0, v37
    v_rcp_f32 v36, v36
    v_rcp_f32 v37, v37
    s_nop 0
    v_mul_f32 v32, v32, v36
    v_mul_f32 v33, v33, v37
    v_cvt_pk_bf16_f32 v8, v32, v33
    v_lshlrev_b32 v32, 16, v8
    v_and_b32 v33, 0xffff0000, v8
    v_mul_f32 v32, v32, v34
    v_mul_f32 v33, v33, v35
    v_cmp_eq_u32 vcc, 1, v2
    s_nop 0
    v_mov_b32_dpp v34, v32 row_ror:15 row_mask:0xf bank_mask:0xf
    v_mov_b32_dpp v35, v33 row_ror:15 row_mask:0xf bank_mask:0xf
    v_cvt_pk_bf16_f32 v8, v32, v34
    v_cvt_pk_bf16_f32 v9, v33, v35
    v_cndmask_b32 v8, v8, v9, vcc
    buffer_store_dword v8, v16, {S_WS}, s13 offen sc1
    """)
    g.stamp(14)
    I("s_branch L_fin")
    g.label("L_down")
    I(f"""
    v_lshrrev_b32 v4, 2, v1
    v_mul_u32_u24 v4, 1280, v4
    v_and_b32 v6, 3, v1
    v_lshl_add_u32 v4, v6, 4, v4
    s_mul_i32 s12, {sWV}, {16*1280}
    s_lshl_b32 s13, {sFC}, 6
    s_add_u32 s12, s12, s13
    s_lshl_b32 s13, {sWV}, 10
    s_add_u32 s13, s13, {L_W2}
    """)
    for m in range(13):
        dma("v4", S_W2, NT, 8192, 128 * 1280)
    I(f"s_cmp_ge_u32 {sWV}, 4\ns_cbranch_scc1 L_dn_ld")
    dma("v4", S_W2, NT, 8192, 128 * 1280)
    g.label("L_dn_ld")
    I(f"""
    v_bfe_u32 v4, v1, 2, 2
    v_lshl_add_u32 v4, v2, 3, v4
    v_lshlrev_b32 v16, 6, v4
    v_lshl_add_u32 v16, v6, 3, v16
    s_lshl_b32 s12, {sWV}, 11
    s_add_u32 s12, s12, {L_W2}
    v_add_u32 v16, s12, v16
    v_add_u32 v17, 0x10000, v16
    v_and_b32 v18, 1, v3
    v_lshlrev_b32 v18, 5, v18
    v_and_b32 v4, 1, v2
    v_lshl_add_u32 v18, v4, 4, v18
    v_lshrrev_b32 v4, 1, v2
    v_lshl_add_u32 v18, v4, 7, v18
    v_add_u32 v23, 4096, v18
    v_add_u32 v24, 8192, v18
    s_lshl_b32 s93, {sWV}, 8
    s_add_u32 s93, s93, {XE}
    s_cmp_lt_u32 {sWV}, 6
    s_cselect_b32 s94, {2048*6}, 0
    s_add_u32 s94, s94, s93
    s_lshl_b32 s14, {sWV}, 8
    v_lshl_add_u32 v19, v1, 4, s14
    """)
    for r in range(8, 16):
        I(f"v_mov_b32 v{r}, 0")
    I(f"""
    s_cmp_lg_u32 {sWV}, 1
    s_cbranch_scc1 L_dn_nx
    v_lshrrev_b32 v6, 3, v3
    v_mul_u32_u24 v7, 2560, v6
    v_lshl_add_u32 v7, v31, 4, v7
    v_mul_u32_u24 v20, 1280, v6
    v_lshl_add_u32 v20, v31, 3, v20
    v_lshlrev_b32 v22, 3, v3
    s_lshl_b32 s12, {sFC}, 6
    buffer_load_dwordx2 v[194:195], v20, {S_X}, s12 offen
    L_dn_nx:
    """)
    g.bar("vmcnt(0) lgkmcnt(0)")
    g.stamp(19)
    for i in range(7):
        for nu in range(2):
            for tt in range(2):
                r = 96 + (i * 2 + nu) * 4 + 2 * tt
                off = 16384 * i + 256 * tt + 32 * nu
                va = "v16" if off < 65536 else "v17"
                I(f"ds_read_b64_tr_b16 v[{r}:{r+1}], {va} offset:{off & 65535}")
    I(f"s_cmp_lg_u32 {sWV}, 1\ns_cbranch_scc1 L_dn_e")
    I(f"s_lshl_b32 s13, {sFC}, 7\ns_add_u32 s13, s13, {XD2}")
    lds = [f"s_add_u32 s14, s13, {i*5120}\nbuffer_load_dwordx4 v[{32+4*i}:{35+4*i}], v7, {S_WS}, s14 offen sc1"
           for i in range(8)]
    g.poll(lds, range(32, 64), delay=P["d_d2"], tmp="v4", backoff=P["bo_d2"])
    g.stamp(13)
    g.tree_add(32, 8, 4, 4)
    h_from_sum(194)
    I(f"ds_write_b64 v22, v[8:9] offset:{L_HB}\nv_mov_b32 v8, 0\nv_mov_b32 v9, 0")
    g.signal(C_H)
    g.label("L_dn_e")
    g.waitc(C_H, 1)
    if P["t_e"]:
        I(f"ds_read_b32 v4, {VZ} offset:{L_CTRL}\ns_waitcnt lgkmcnt(0)")
        until(P["t_e"], "v4")
    el = lambda b: [f"buffer_load_dwordx4 v[{b+4*i}:{b+3+4*i}], {('v18','v23','v24')[i>>1]}, {S_WS}, s93 offen offset:{2048*(i&1)} sc1" for i in range(6)] + \
                   [f"buffer_load_dwordx4 v[{b+24}:{b+27}], v18, {S_WS}, s94 offen sc1"]
    if P["pipe"] > 1:
        g.poll_pipe(el, 28, [32, 64, 160][:min(3, P["pipe"])], tmp="v6", gap=P["gap"])
    else:
        g.poll(el(32), range(32, 60), delay=P["d_e"], tmp="v6", backoff=P["bo_e"])
    g.stamp(14)
    for i in range(7):
        if i == 6:
            I(f"s_cmp_ge_u32 {sWV}, 6\ns_cbranch_scc1 L_dn6")
        for nu in range(2):
            r = 96 + (i * 2 + nu) * 4
            I(f"v_mfma_f32_16x16x32_bf16 v[{8+4*nu}:{11+4*nu}], v[{32+4*i}:{35+4*i}], v[{r}:{r+3}], v[{8+4*nu}:{11+4*nu}]")
    g.label("L_dn6")
    I(f"""
    s_mov_b64 exec, 0xffff
    s_nop 6
    v_mov_b32 v10, v12
    v_mov_b32 v11, v13
    ds_write_b128 v19, v[8:11] offset:{L_UR}
    s_mov_b64 exec, -1
    """)
    g.bar()
    I(f"s_cmp_lg_u32 {sWV}, 0\ns_cbranch_scc1 L_fin")
    I(f"""
    v_lshlrev_b32 v16, 4, v3
    v_lshl_add_u32 v16, v2, 2, v16
    v_and_b32 v4, 1, v2
    v_lshrrev_b32 v6, 1, v2
    v_lshlrev_b32 v7, 6, v4
    v_lshl_add_u32 v7, v6, 5, v7
    v_lshl_add_u32 v7, v3, 1, v7
    ds_read_u16 v191, v7 offset:{L_HB}
    """)
    for v in range(8):
        I(f"ds_read_b32 v{32+v}, v16 offset:{L_UR+256*v}")
    I(f"""
    v_mul_u32_u24 v17, 1280, v4
    v_lshl_add_u32 v17, v6, 5, v17
    v_lshl_add_u32 v17, v3, 1, v17
    v_and_b32 v5, 1, v1
    v_mov_b32 v6, {OOB}
    v_cmp_eq_u32 vcc, 0, v5
    s_lshl_b32 s12, {sFC}, 6
    s_waitcnt lgkmcnt(0)
    v_cndmask_b32 v17, v6, v17, vcc
    v_lshlrev_b32 v191, 16, v191
    """)
    g.tree_add(32, 8, 1, 1)
    I(f"""
    v_cvt_pk_bf16_f32 v8, v32, v32
    v_lshlrev_b32 v32, 16, v8
    v_add_f32 v32, v32, v191
    s_nop 1
    v_mov_b32_dpp v34, v32 row_ror:15 row_mask:0xf bank_mask:0xf
    v_cvt_pk_bf16_f32 v8, v32, v34
    buffer_store_dword v8, v17, {S_OUT}, s12 offen
    """)
    g.stamp(15)
    g.label("L_fin")
    if diag and P.get("dbgout"):
        I(f"""
        s_cmp_lg_u32 {sWV}, 0
        s_cbranch_scc1 L_end
        buffer_load_dword v4, {VZ}, {S_DBG}, 0 offen sc1
        s_waitcnt vmcnt(0)
        v_readfirstlane_b32 s96, v4
        s_mov_b64 exec, 1
        """)
        for k, idx in enumerate([0, 2, 4, 6, 5, 23, 9, 10, 11, 12, 13, 14, 15, 18]):
            lab = g.newlab("Lz")
            I(f"""
            s_cmp_eq_u32 s{64+idx}, 0
            s_cbranch_scc1 {lab}
            s_sub_u32 s97, s{64+idx}, s96
            v_mov_b32 v5, s97
            buffer_atomic_smax v5, {VZ}, {S_DBG}, 0 offen offset:{8+4*k}
            {lab}:
            """)
    elif diag:
        I(f"""
        s_mul_i32 s96, s2, 10
        s_add_u32 s96, s96, {sWV}
        s_lshl_b32 s96, s96, 7
        s_add_u32 s96, s96, {TS}
        s_mov_b64 exec, 1
        """)
        for i in range(0, 28, 4):
            I(f"v_mov_b32 v4, s{64+i}\nv_mov_b32 v5, s{65+i}\nv_mov_b32 v6, s{66+i}\nv_mov_b32 v7, s{67+i}")
            I(f"buffer_store_dwordx4 v[4:7], {VZ}, {S_WS}, s96 offen offset:{4*i}\ns_nop 2")
    g.label("L_end")
    I("s_endpgm")

    tail = f"""
.section .rodata,"a"
.p2align 6
.amdhsa_kernel {KNAME}
  .amdhsa_next_free_vgpr {NVGPR}
  .amdhsa_next_free_sgpr 102
  .amdhsa_accum_offset {NVGPR}
  .amdhsa_group_segment_fixed_size 0
  .amdhsa_kernarg_size 104
  .amdhsa_user_sgpr_count 2
  .amdhsa_user_sgpr_kernarg_segment_ptr 1
  .amdhsa_system_sgpr_workgroup_id_x 1
.end_amdhsa_kernel
"""
    return "\n".join(hdr) + "\n" + "\n".join(g.L) + "\n" + tail


if __name__ == "__main__":
    diag = "--diag" in sys.argv
    out = [a for a in sys.argv[1:] if not a.startswith("--")]
    P = {}
    for a in sys.argv[1:]:
        if a.startswith("--P:"):
            k, v = a[4:].split("=")
            P[k] = int(v) if v.lstrip("-").isdigit() else v
    txt = build(diag=diag, P=P)
    if out:
        open(out[0], "w").write(txt)
    else:
        sys.stdout.write(txt)
```

```python
import sys
from genlib import *

KNAME = "sequential_preLN__compressed_kv_cla__glu_gated_swiglu__decode_kernel"

FLAGS = 0x000000
XH    = 0x008000
XB    = 0x010000
XC2M  = 0x020000
XD2   = 0x030000
XE    = 0x040000
XC1M  = 0x050000
XAF   = 0x080000
XAS   = 0x0C0000
XU    = 0x100000
XC2D  = 0x180000
XD1   = 0x200000
TS    = 0x380000
XC1D  = 0x400000
C1J   = 16640
WS_BYTES = 0x1000000

CPITCH = 1040
L_CTRL = 0
L_CNT = 64
L_STAT = 192
(C_NON, C_H, C_U, C_XA, C_AG, C_VER) = range(6)
L_XN  = 2304
L_XAL = 4864
L_DR  = 8960
L_CT  = 11008
L_C2  = 86016
L_D1  = 4864
L_WUV = 12288
L_WO  = 45056
L_WUK = 45056
L_MB  = 256
L_LB  = 1280
L_UR  = 256
L_HB  = 2304
L_CKV = 5120
L_QA  = L_CKV
L_TR  = L_CKV + 64 * CPITCH
L_W1  = L_CKV
L_W3  = L_CKV + 20480
L_W2  = 48128
L_PB  = L_CKV + 32 * CPITCH
L_WQ  = L_CKV + 128 * CPITCH
LDS_BYTES = 163840
PVA = 128
VZ, VO = "v192", "v193"
NVGPR = 200

DEFAULTS = dict(d_a=2, d_c1=1, d_c2=0, d_d1=2, d_d2=0, d_u=2, d_e=0, backoff=2, nt="nt", fast_tries=30,
                d_non=4, d_p2=10, bo_c2=2, bo_d2=4, bo_e=4, bo_b=4, W2=8, d_A=40, init_blocks=1, hint_kb=1, pf_rows=0, pre=0, mid=0, ahead=4, fl_kb=1, wb=0, w2e=11, d_bfl=40, c2w=1, inc=0, prime_at=2, prime_fl="nt", otouch=0, d_w13=0, bo_c2b=2, w2pf=0, w2pf_flag="nt", cpf=0, pipe=1, gap=2, t_c2=0, t_d2=0, t_e=0)


def build(diag=False, P=None):
    PP = dict(DEFAULTS)
    if P:
        PP.update(P)
    P = PP
    g = Gen(diag, P, L_CNT, VZ, VO)
    I = g.I
    NT = P["nt"]
    names = ["X", "CKV", "WQ", "WUK", "WUV", "WO", "W1", "W3", "W2", "OUT", "DBG", "WS"]
    S_X, S_CKV, S_WQ, S_WUK, S_WUV, S_WO, S_W1, S_W3, S_W2, S_OUT, S_DBG, S_WS = [
        f"s[{16+4*i}:{19+4*i}]" for i in range(12)]
    ptr = {0: 64, 1: 66, 2: 68, 3: 70, 4: 72, 5: 74, 6: 78, 7: 80, 8: 82, 9: 84, 10: 86, 11: 88}
    sizes = [2560, 16777216, 5242880, 4194304, 4194304, 5242880, 2211840, 2211840, 2211840, 2560, 256, WS_BYTES]

    def srd(*which):
        for nm in which:
            i = names.index(nm)
            b = 16 + 4 * i
            I(f"s_mov_b64 s[{b}:{b+1}], s[{ptr[i]}:{ptr[i]+1}]\ns_mov_b32 s{b+2}, {sizes[i]}\ns_mov_b32 s{b+3}, 0x20000")

    def dma(voff, srd_, flag, dm0, dso):
        I(f"s_mov_b32 m0, s13")
        I(f"s_add_u32 s13, s13, {dm0}")
        I(f"buffer_load_dwordx4 {voff}, {srd_}, s12 offen {flag} lds")
        I(f"s_add_u32 s12, s12, {dso}")

    def zero_stamps():
        if diag:
            for i in range(0, 28):
                I(f"s_mov_b32 s{64+i}, 0")

    sWV, sX, sS, sM, sH, sSUB, sFC, sUP, sKC = "s3", "s4", "s5", "s6", "s7", "s8", "s9", "s10", "s11"
    hdr = ["; Persistent single-launch decode layer (MLA attention with absorbed w_uk/w_uv + SwiGLU FFN), generated by work/gen.py.",
           "; 256 co-resident workgroups (1 per CU): ids with (id>>3)<16 do q/absorb and later w_uv/w_o, the others do",
           "; attention over 128 keys and later the FFN.  Hand-offs go through d_ws: slots are poisoned or tagged with a",
           "; per-launch nonce published in d_debug; same-XCD fast paths are taken only after XCC ids were compared.",
           "; kernarg: x, c_kv, w_q, w_uk, w_uv, w_o, B_x, w1, w3, w2, d_out, d_debug, d_ws (8 bytes each)",
           f"; @launch grid=(256,1,1) block=(512,1,1) lds={LDS_BYTES}",
           '.amdgcn_target "amdgcn-amd-amdhsa--gfx950"', ".text", f".globl {KNAME}", ".p2align 8",
           f".type {KNAME},@function", f"{KNAME}:"]

    I(f"""
    s_cmp_ge_u32 s2, 256
    s_cbranch_scc1 L_end
    s_load_dwordx16 s[64:79], s[0:1], 0
    s_load_dwordx8 s[80:87], s[0:1], 64
    s_load_dwordx2 s[88:89], s[0:1], 96
    s_memrealtime s[90:91]
    v_lshrrev_b32 v4, 6, v0
    v_and_b32 v1, 63, v0
    v_readfirstlane_b32 {sWV}, v4
    v_lshrrev_b32 v2, 4, v1
    v_and_b32 v3, 15, v1
    v_mov_b32 {VZ}, 0
    v_mov_b32 {VO}, 1
    v_lshlrev_b32 v4, 2, v3
    ds_write_b32 v4, {VZ} offset:{L_CNT}
    s_and_b32 {sX}, s2, 7
    s_lshr_b32 {sS}, s2, 3
    s_and_b32 {sM}, {sS}, 15
    v_lshlrev_b32 v5, 4, v1
    v_mov_b32 v6, {OOB}
    v_mov_b32 v8, -1
    v_mov_b32 v9, -1
    v_mov_b32 v10, -1
    v_mov_b32 v11, -1
    v_cmp_eq_u32 vcc, 0, v1
    s_and_b32 s12, {sS}, 3
    s_lshl_b32 s12, s12, 3
    v_cndmask_b32 v7, v6, 0, vcc
    s_add_u32 {sH}, {sX}, s12
    s_lshr_b32 {sSUB}, {sM}, 2
    s_lshr_b32 s12, {sM}, 2
    s_lshl_b32 s12, s12, 3
    s_add_u32 s12, s12, {sX}
    s_cmp_lt_u32 s12, 27
    s_cselect_b32 {sUP}, 1, 0
    s_and_b32 {sKC}, {sM}, 3
    s_sub_u32 s14, {sX}, 3
    s_lshl_b32 s14, s14, 2
    s_add_u32 s14, s14, {sKC}
    s_cmp_eq_u32 {sUP}, 1
    s_cselect_b32 {sFC}, s12, s14
    """)

    def nonce_and_flag(first_wait):
        lp, dn, ent = g.newlab("Lp"), g.newlab("Ld"), g.newlab("Le")
        I(f"""
        s_mov_b32 s92, 0
        s_lshl_b32 s14, {sX}, 5
        s_add_u32 s14, s14, {sS}
        s_lshl_b32 s14, s14, 4
        s_add_u32 s14, s14, {FLAGS}
        s_getreg_b32 s15, hwreg(HW_REG_XCC_ID)
        v_mov_b32 v14, s15
        v_mov_b32 v15, 0
        s_waitcnt {first_wait}
        s_branch {ent}
        """)
        g.label(lp)
        I(f"""
        buffer_load_dwordx2 v[12:13], {VZ}, {S_DBG}, 0 offen sc1
        s_waitcnt vmcnt(0)
        """)
        g.label(ent)
        I(f"""
        v_cmp_ne_u32 vcc, 0, v12
        s_add_u32 s92, s92, 1
        s_cmp_eq_u64 vcc, exec
        s_cbranch_scc1 {dn}
        s_sleep {P['d_non']}
        s_cmp_lt_u32 s92, {POLL_LIMIT}
        s_cbranch_scc1 {lp}
        """)
        g.label(dn)
        I(f"""
        ds_write_b64 {VZ}, v[12:13] offset:{L_CTRL}
        buffer_store_dwordx4 v[12:15], v7, {S_WS}, s14 offen sc1
        """)
        g.signal(C_NON)
        g.stamp(16)

    def verify_flags(r0, kindA, preissued, first_wait="vmcnt(0)", onlyA=False, uniform=True):
        lp, dn, ent = g.newlab("Lp"), g.newlab("Ld"), g.newlab("Le")
        I("s_mov_b32 s92, 0")
        if preissued:
            I(f"s_waitcnt {first_wait}\ns_branch {ent}")
        g.label(lp)
        for i in range(4):
            I(f"buffer_load_dwordx4 v[{r0+4*i}:{r0+3+4*i}], v5, {S_WS}, 0 offen offset:{FLAGS+1024*i} sc1")
        I("s_waitcnt vmcnt(0)")
        if preissued:
            g.label(ent)
        I("v_mov_b32 v8, 0")
        for i in range(4):
            I(f"v_xor_b32 v9, v{r0+4*i}, v14\nv_xor_b32 v10, v{r0+1+4*i}, v15\nv_or3_b32 v8, v8, v9, v10")
        I("v_cmp_eq_u32 vcc, 0, v8\ns_add_u32 s92, s92, 1")
        if onlyA:
            I("s_or_b32 vcc_lo, vcc_lo, 0xffff\ns_or_b32 vcc_hi, vcc_hi, 0xffff")
        I(f"""
        s_cmp_eq_u64 vcc, exec
        s_cbranch_scc1 {dn}
        s_sleep 4
        s_cmp_lt_u32 s92, {POLL_LIMIT}
        s_cbranch_scc1 {lp}
        """)
        g.label(dn)
        if not uniform:
            g.stamp(17)
            return
        I(f"""
        s_lshr_b32 s14, {sX}, 1
        s_cmp_eq_u32 s14, 1
        v_mov_b32 v8, v{r0+2}
        s_cbranch_scc0 {dn}a
        v_mov_b32 v8, v{r0+6}
        {dn}a:
        s_cmp_eq_u32 s14, 2
        s_cbranch_scc0 {dn}b
        v_mov_b32 v8, v{r0+10}
        {dn}b:
        s_cmp_eq_u32 s14, 3
        s_cbranch_scc0 {dn}c
        v_mov_b32 v8, v{r0+14}
        {dn}c:
        s_getreg_b32 s14, hwreg(HW_REG_XCC_ID)
        v_xor_b32 v8, s14, v8
        s_and_b32 s14, {sX}, 1
        s_lshl_b32 s14, s14, 1
        s_add_u32 s14, s14, {1 if kindA else 0}
        v_cmp_eq_u32 vcc, s14, v2
        s_nop 1
        v_cndmask_b32 v8, 0, v8, vcc
        v_cmp_eq_u32 vcc, 0, v8
        s_cmp_eq_u64 vcc, exec
        s_cselect_b32 s14, 1, 0
        v_mov_b32 v8, s14
        ds_write_b32 {VZ}, v8 offset:{L_CTRL+8}
        """)
        g.stamp(17)

    def until(T, nreg):
        if not T:
            return
        lp = g.newlab("Lt")
        I(f"v_readfirstlane_b32 s100, {nreg}")
        g.label(lp)
        I(f"""
        s_memrealtime s[96:97]
        s_waitcnt lgkmcnt(0)
        s_sub_u32 s96, s96, s100
        s_cmp_lt_u32 s96, {T}
        s_cbranch_scc1 {lp}
        """)

    def prime_c1():
        I(f"""
        s_lshl_b32 s12, {sX}, 5
        s_lshl_b32 s13, {sM}, 1
        s_add_u32 s12, s12, s13
        s_lshr_b32 s13, {sWV}, 2
        s_add_u32 s12, s12, s13
        s_mul_i32 s12, s12, {C1J}
        s_and_b32 s13, {sWV}, 3
        s_lshl_b32 s13, s13, 12
        s_add_u32 s12, s12, s13
        s_add_u32 s12, s12, {XC1D}
        v_and_b32 v4, 31, v1
        v_lshlrev_b32 v4, 7, v4
        buffer_load_dword v194, v4, {S_WS}, s12 offen {P["prime_fl"]}
        """)

    def w2_dma(m0, m1, tag):
        I(f"""
        v_lshrrev_b32 v4, 2, v1
        v_mul_u32_u24 v4, 1280, v4
        v_and_b32 v6, 3, v1
        v_lshl_add_u32 v4, v6, 4, v4
        s_mul_i32 s12, {sWV}, {16*1280}
        s_lshl_b32 s13, {sFC}, 6
        s_add_u32 s12, s12, s13
        s_add_u32 s12, s12, {m0*128*1280}
        s_lshl_b32 s13, {sWV}, 10
        s_add_u32 s13, s13, {L_W2+8192*m0}
        """)
        for m in range(m0, min(m1, 13)):
            dma("v4", S_W2, NT, 8192, 128 * 1280)
        if m1 > 13:
            I(f"s_cmp_ge_u32 {sWV}, 4\ns_cbranch_scc1 L_w2{tag}")
            dma("v4", S_W2, NT, 8192, 128 * 1280)
            g.label(f"L_w2{tag}")

    def h_from_sum(xr):
        I(f"""
        v_cvt_pk_bf16_f32 v8, v32, v33
        v_cvt_pk_bf16_f32 v9, v34, v35
        v_lshlrev_b32 v36, 16, v{xr}
        v_and_b32 v37, 0xffff0000, v{xr}
        v_lshlrev_b32 v38, 16, v{xr+1}
        v_and_b32 v39, 0xffff0000, v{xr+1}
        v_lshlrev_b32 v32, 16, v8
        v_and_b32 v33, 0xffff0000, v8
        v_lshlrev_b32 v34, 16, v9
        v_and_b32 v35, 0xffff0000, v9
        v_add_f32 v32, v32, v36
        v_add_f32 v33, v33, v37
        v_add_f32 v34, v34, v38
        v_add_f32 v35, v35, v39
        v_cvt_pk_bf16_f32 v8, v32, v33
        v_cvt_pk_bf16_f32 v9, v34, v35
        """)

    I(f"""
    s_waitcnt lgkmcnt(0)
    s_cmp_ge_u32 {sWV}, 4
    s_cbranch_scc1 L_e_hi
    s_or_b32 s14, s2, {sWV}
    s_cmp_lg_u32 s14, 0
    s_cbranch_scc1 L_e_dma
    """)
    srd("DBG")
    I(f"""
    s_or_b32 s90, s90, 1
    v_mov_b32 v14, s90
    v_mov_b32 v15, s91
    buffer_store_dwordx2 v[14:15], v7, {S_DBG}, 0 offen sc1
    s_branch L_e_dma
    L_e_hi:
    s_cmp_ge_u32 {sWV}, 6
    s_cbranch_scc1 L_e_67
    s_sub_u32 s15, {sWV}, 4
    s_mul_i32 s15, s15, 1280
    v_mul_u32_u24 v100, 20, v1
    """)
    srd("X")
    I(f"""
    buffer_load_dwordx4 v[8:11], v100, {S_X}, s15 offen
    buffer_load_dword v12, v100, {S_X}, s15 offen offset:16
    s_branch L_e_dma
    L_e_67:
    """)
    srd("DBG", "WS")
    I(f"""
    s_cmp_ge_u32 {sS}, 16
    s_cbranch_scc1 L_e_A67
    s_cmp_eq_u32 {sWV}, 6
    s_cbranch_scc1 L_e_B6
    """)
    I(f"""
    s_lshl_b32 s13, {sX}, 4
    s_add_u32 s13, s13, {sM}
    s_mul_i32 s13, s13, 5120
    s_add_u32 s13, s13, {XD1}
    """)
    for i in range(4):
        I(f"buffer_store_dwordx4 v[8:11], v5, {S_WS}, s13 offen offset:{1024*i} sc1")
    I(f"""
    s_add_u32 s13, s13, 4096
    buffer_store_dwordx4 v[8:11], v5, {S_WS}, s13 offen sc1
    v_mul_u32_u24 v4, 2560, v2
    v_lshl_add_u32 v4, v3, 4, v4
    s_cmp_lt_u32 {sM}, 10
    s_cselect_b32 s15, 32, 0
    v_cmp_gt_u32 vcc, s15, v1
    s_mul_i32 s13, {sX}, 5120
    s_lshl_b32 s14, {sM}, 8
    v_cndmask_b32 v4, v6, v4, vcc
    s_add_u32 s13, s13, s14
    s_add_u32 s13, s13, {XD2}
    buffer_store_dwordx4 v[8:11], v4, {S_WS}, s13 offen sc1
    s_branch L_e_dma
    L_e_B6:
    s_lshl_b32 s12, {sH}, 13
    s_add_u32 s12, s12, {XAF}
    v_lshlrev_b32 v4, 7, v1
    buffer_load_dword v14, v4, {S_WS}, s12 offen nt
    v_lshrrev_b32 v4, 3, v1
    v_lshlrev_b32 v4, 8, v4
    v_and_b32 v12, 7, v1
    v_lshl_add_u32 v4, v12, 4, v4
    s_add_u32 s13, s12, 4096
    buffer_store_dwordx4 v[8:11], v4, {S_WS}, s12 offen
    buffer_store_dwordx4 v[8:11], v4, {S_WS}, s12 offen offset:2048
    buffer_store_dwordx4 v[8:11], v4, {S_WS}, s13 offen
    buffer_store_dwordx4 v[8:11], v4, {S_WS}, s13 offen offset:2048
    """)
    I(f"""
    s_branch L_e_dma
    L_e_A67:
    s_cmp_eq_u32 {sWV}, 7
    s_cbranch_scc1 L_e_A7
    """)
    if P["cpf"]:
        I(f"""
        s_cmp_ge_u32 {sM}, 4
        s_cbranch_scc1 L_e_dma
        s_getpc_b64 s[12:13]
        L_pc:
        s_sub_u32 s12, s12, L_pc-{KNAME}
        s_subb_u32 s13, s13, 0
        v_lshlrev_b32 v4, 7, v1
        global_load_dword v194, v4, s[12:13]
        v_add_u32 v4, 8192, v4
        global_load_dword v194, v4, s[12:13]
        v_add_u32 v4, 8192, v4
        v_min_u32 v4, L_end-{KNAME}, v4
        global_load_dword v194, v4, s[12:13]
        """)
    I("s_branch L_e_dma\nL_e_A7:")
    I(f"""
    v_lshlrev_b32 v4, 7, v1
    v_cmp_gt_u32 vcc, 32, v1
    s_lshl_b32 s14, {sX}, 12
    s_lshl_b32 s15, {sM}, 3
    v_cndmask_b32 v4, v6, v4, vcc
    v_cndmask_b32 v12, v6, v5, vcc
    s_add_u32 s14, s14, s15
    s_add_u32 s14, s14, {XC1M}
    buffer_store_dwordx2 v[8:9], v4, {S_WS}, s14 offen sc1
    s_lshl_b32 s14, {sX}, 4
    s_add_u32 s14, s14, {sM}
    s_lshl_b32 s14, s14, 9
    s_add_u32 s14, s14, {XB}
    buffer_store_dwordx4 v[8:11], v12, {S_WS}, s14 offen sc1
    s_lshl_b32 s14, {sM}, 4
    s_add_u32 s14, s14, {sX}
    s_lshl_b32 s15, s14, 10
    s_add_u32 s15, s15, {XC2D}
    buffer_store_dwordx4 v[8:11], v5, {S_WS}, s15 offen sc1
    s_add_u32 s15, s15, 8192
    buffer_store_dwordx4 v[8:11], v5, {S_WS}, s15 offen sc1
    v_lshlrev_b32 v4, 10, v1
    v_cmp_gt_u32 vcc, 2, v1
    s_lshl_b32 s15, s14, 7
    s_add_u32 s15, s15, {XC2M}
    v_cndmask_b32 v4, v6, v4, vcc
    buffer_store_dwordx2 v[8:9], v4, {S_WS}, s15 offen sc1
    s_lshl_b32 s14, {sX}, 4
    s_add_u32 s14, s14, {sM}
    s_lshl_b32 s14, s14, 11
    s_add_u32 s14, s14, {XU}
    buffer_store_dwordx4 v[8:11], v5, {S_WS}, s14 offen sc1
    buffer_store_dwordx4 v[8:11], v5, {S_WS}, s14 offen offset:1024 sc1
    s_lshl_b32 s15, {sUP}, 2
    v_cmp_gt_u32 vcc, s15, v1
    s_lshl_b32 s14, {sFC}, 2
    s_add_u32 s14, s14, {sKC}
    v_cndmask_b32 v4, v6, v5, vcc
    s_lshl_b32 s14, s14, 7
    s_add_u32 s14, s14, {XE}
    buffer_store_dwordx4 v[8:11], v4, {S_WS}, s14 offen sc1
    buffer_load_dwordx2 v[12:13], {VZ}, {S_DBG}, 0 offen sc1
    """)
    g.label("L_e_dma")
    I(f"""
    s_and_b32 s12, {sWV}, 1
    s_lshl_b32 s12, s12, 2
    v_add_u32 v4, s12, v2
    v_lshlrev_b32 v4, 1, v4
    v_xor_b32 v4, v4, v3
    v_lshlrev_b32 v4, 4, v4
    v_lshl_add_u32 v4, v2, 13, v4
    s_lshr_b32 s93, {sS}, 2
    s_mul_i32 s12, s93, 80
    s_lshl_b32 s13, {sWV}, 2
    s_add_u32 s12, s12, s13
    s_lshl_b32 s12, s12, 13
    s_lshl_b32 s13, {sH}, 8
    s_add_u32 s12, s12, s13
    s_lshl_b32 s13, {sWV}, 10
    s_add_u32 s13, s13, {L_WQ}
    """)
    srd("WQ")
    I(f"s_cmp_ge_u32 {sWV}, 4\ns_cbranch_scc1 L_e_d2")
    dma("v4", S_WQ, NT, 8192, 32 * 8192)
    g.label("L_e_d2")
    for i in range(2):
        dma("v4", S_WQ, NT, 8192, 32 * 8192)
    def ckv_block():
        for i in range(4):
            dma("v5", S_CKV, NT, CPITCH if i < 3 else 29 * CPITCH, 1024 if i < 3 else 29 * 1024)
    I(f"s_cmp_lt_u32 {sS}, 16\ns_cbranch_scc1 L_e_B")
    srd("CKV")
    I(f"""
    s_lshl_b32 s12, {sX}, 11
    s_lshl_b32 s13, {sM}, 7
    s_add_u32 s12, s12, s13
    s_lshl_b32 s13, {sWV}, 2
    s_add_u32 s12, s12, s13
    s_lshl_b32 s12, s12, 10
    s_mul_i32 s13, {sWV}, {4*CPITCH}
    s_add_u32 s13, s13, {L_CKV}
    """)
    for i in range(P["pre"]):
        ckv_block()
    I("s_mov_b32 s100, s12\ns_mov_b32 s101, s13\ns_branch L_e_srd")
    g.label("L_e_B")
    srd("WUK")
    I(f"""
    v_xor_b32 v4, v3, v2
    v_lshlrev_b32 v4, 4, v4
    v_lshl_add_u32 v4, v2, 13, v4
    s_lshl_b32 s12, {sSUB}, 7
    s_lshl_b32 s13, {sWV}, 4
    s_add_u32 s12, s12, s13
    s_lshl_b32 s12, s12, 13
    s_lshl_b32 s13, {sH}, 8
    s_add_u32 s12, s12, s13
    s_lshl_b32 s13, {sWV}, 12
    s_add_u32 s13, s13, {L_WUK}
    """)
    for i in range(4):
        dma("v4", S_WUK, NT, 1024, 4 * 8192)
        if i < 3:
            I(f"v_xor_b32 v4, {64 if i != 1 else 192}, v4")
    g.label("L_e_srd")
    srd("X", "CKV", "WUV", "WO", "W1", "W3", "W2", "OUT", "DBG", "WS")
    zero_stamps()
    g.stamp(0)
    I("s_barrier")
    I(f"""
    s_cmp_lg_u32 {sWV}, 7
    s_cbranch_scc1 L_s_n7
    s_cmp_lt_u32 {sS}, 16
    s_cbranch_scc1 L_stA
    """)
    nonce_and_flag(f"vmcnt({2+4*P['pre']})")
    I("s_branch L_stA")
    g.label("L_s_n7")
    I(f"s_and_b32 s12, {sWV}, 6\ns_cmp_lg_u32 s12, 4\ns_cbranch_scc1 L_stA")
    I(f"""
    s_cmp_ge_u32 {sS}, 16
    s_cbranch_scc1 L_ln_A
    s_waitcnt vmcnt(6)
    s_branch L_ln
    L_ln_A:
    s_waitcnt vmcnt({2+4*P['pre']})
    L_ln:
    """)
    for i in range(5):
        I(f"v_lshlrev_b32 v{32+2*i}, 16, v{8+i}\nv_and_b32 v{33+2*i}, 0xffff0000, v{8+i}")
    I("v_add_f32 v5, v32, v33\nv_add_f32 v6, v34, v35")
    for i in range(2, 5):
        I(f"v_add_f32 v5, v5, v{32+2*i}\nv_add_f32 v6, v6, v{33+2*i}")
    I("v_add_f32 v5, v5, v6")
    g.wave_allreduce(5, 6)
    I(f"v_mul_f32 v5, {f2u(1.0/640):#x}, v5")
    for i in range(10):
        I(f"v_sub_f32 v{32+i}, v{32+i}, v5")
    I("v_mul_f32 v5, v32, v32\nv_mul_f32 v6, v33, v33")
    for i in range(1, 5):
        I(f"v_fmac_f32 v5, v{32+2*i}, v{32+2*i}\nv_fmac_f32 v6, v{33+2*i}, v{33+2*i}")
    I("v_add_f32 v5, v5, v6")
    g.wave_allreduce(5, 6)
    I(f"""
    v_mov_b32 v6, {f2u(1e-5):#x}
    s_mov_b32 s13, {f2u(1.0/640):#x}
    v_fma_f32 v5, v5, s13, v6
    v_rsq_f32 v5, v5
    v_add_u32 v4, s15, v100
    """)
    for i in range(10):
        I(f"v_mul_f32 v{32+i}, v{32+i}, v5")
    for i in range(5):
        I(f"v_cvt_pk_bf16_f32 v{8+i}, v{32+2*i}, v{33+2*i}")
    for i in range(5):
        I(f"ds_write_b32 v4, v{8+i} offset:{L_XN+4*i}")
    g.stamp(16)
    g.label("L_stA")
    if P["mid"]:
        I(f"s_cmp_lt_u32 {sS}, 16\ns_cbranch_scc1 L_stA2")
        g.waitc(C_NON, 1)
        I("s_mov_b32 s12, s100\ns_mov_b32 s13, s101\nv_lshlrev_b32 v5, 4, v1")
        for i in range(P["mid"]):
            ckv_block()
        I("s_mov_b32 s100, s12\ns_mov_b32 s101, s13")
        g.label("L_stA2")
    I(f"""
    v_lshrrev_b32 v4, 2, v1
    v_and_b32 v5, 7, v4
    v_lshlrev_b32 v5, 1, v5
    v_bfe_u32 v6, v1, 1, 1
    s_lshl_b32 s12, {sWV}, 1
    v_add_u32 v6, s12, v6
    v_xor_b32 v6, v6, v5
    v_lshlrev_b32 v6, 4, v6
    v_lshl_add_u32 v6, v4, 8, v6
    v_and_b32 v5, 1, v1
    v_lshl_add_u32 v6, v5, 3, v6
    v_add_u32 v6, {L_WQ}, v6
    v_and_b32 v5, 1, v3
    v_mul_u32_u24 v5, 1280, v5
    v_lshl_add_u32 v5, v2, 3, v5
    s_lshr_b32 s93, {sS}, 2
    s_mul_i32 s12, s93, 160
    v_add_u32 v5, s12, v5
    v_and_b32 v198, 1, v2
    v_lshlrev_b32 v198, 9, v198
    v_lshrrev_b32 v4, 1, v2
    v_lshl_add_u32 v198, v4, 7, v198
    v_lshl_add_u32 v198, v3, 3, v198
    v_mov_b32 v4, {OOB >> 1}
    v_cmp_gt_u32 vcc, 2, v3
    s_lshl_b32 s12, {sH}, 12
    s_lshl_b32 s13, s93, 4
    v_cndmask_b32 v198, v4, v198, vcc
    s_add_u32 s12, s12, s13
    s_lshr_b32 s13, {sWV}, 1
    s_lshl_b32 s13, s13, 10
    s_add_u32 s12, s12, s13
    s_and_b32 s13, {sWV}, 1
    s_lshl_b32 s13, s13, 8
    s_add_u32 s12, s12, s13
    s_lshl_b32 s99, s12, 1
    s_add_u32 s98, s99, {XAF}
    s_add_u32 s99, s99, {XAS}
    v_lshlrev_b32 v199, 1, v198
    v_mov_b32 v8, 0
    v_mov_b32 v9, 0
    v_mov_b32 v10, 0
    v_mov_b32 v11, 0
    s_cmp_lt_u32 {sS}, 16
    s_cbranch_scc1 L_wB
    s_cmp_eq_u32 {sWV}, 7
    s_cbranch_scc1 L_wA7
    s_waitcnt vmcnt({4*P['pre']+4*P['mid']})
    L_wA7:
    s_waitcnt vmcnt({4*P['pre']+4*P['mid']+1})
    s_branch L_wE
    L_wB:
    s_waitcnt vmcnt(4)
    L_wE:
    """)
    g.bar()
    g.stamp(1)
    I(f"ds_read_b64 v[14:15], {VZ} offset:{L_CTRL}")
    for st in range(5):
        I(f"ds_read_b64_tr_b16 v[{32+2*st}:{33+2*st}], v6 offset:{4096*st}")
        I(f"ds_read_b64 v[{44+2*st}:{45+2*st}], v5 offset:{L_XN+32*st}")
    for st in range(5):
        I(f"s_waitcnt lgkmcnt({8-2*st})")
        I(f"v_mfma_f32_16x16x16_bf16 v[8:11], v[{32+2*st}:{33+2*st}], v[{44+2*st}:{45+2*st}], v[8:11]")
    I(f"""
    v_lshlrev_b32 v5, 4, v1
    s_mov_b32 s92, 0
    s_nop 5
    v_cvt_pk_bf16_f32 v12, v8, v9
    v_cvt_pk_bf16_f32 v13, v10, v11
    buffer_store_dwordx4 v[12:15], v199, {S_WS}, s98 offen
    v_mov_b32 v196, v12
    v_mov_b32 v197, v13
    """)
    g.stamp(2)
    I(f"s_cmp_ge_u32 {sS}, 16\ns_cbranch_scc1 L_Awg")
    FT = P['fast_tries']
    I(f"""
    s_lshl_b32 s12, {sH}, 12
    s_lshl_b32 s13, {sWV}, 9
    s_add_u32 s12, s12, s13
    s_lshl_b32 s95, s12, 1
    s_add_u32 s12, s95, {XAF}
    s_add_u32 s95, s95, {XAS}
    v_lshlrev_b32 v102, 3, v1
    v_add_u32 v96, s13, v102
    v_lshlrev_b32 v99, 15, v3
    v_lshl_add_u32 v99, v2, 3, v99
    v_mov_b32 v4, {OOB}
    v_cmp_gt_u32 vcc, 2, v3
    s_lshl_b32 s14, {sH}, 10
    s_lshl_b32 s15, {sSUB}, 8
    v_cndmask_b32 v99, v4, v99, vcc
    s_add_u32 s14, s14, s15
    s_lshl_b32 s15, {sWV}, 5
    s_add_u32 s14, s14, s15
    s_add_u32 s14, s14, {XB}
    v_xor_b32 v98, v3, v2
    v_lshlrev_b32 v98, 4, v98
    v_lshl_add_u32 v98, v3, 8, v98
    s_lshl_b32 s15, {sWV}, 12
    s_add_u32 s15, s15, {L_WUK}
    v_add_u32 v98, s15, v98
    s_mov_b32 s15, 0
    v_lshl_add_u32 v103, v3, 4, s13
    v_mov_b32 v8, 0
    v_mov_b32 v9, 0
    v_mov_b32 v10, 0
    v_mov_b32 v11, 0
    L_xa_loop:
    s_cmp_eq_u32 s15, 1
    s_cbranch_scc1 L_xa_chk
    buffer_load_dwordx2 v[14:15], {VZ}, {S_DBG}, 0 offen sc1
    buffer_load_dwordx2 v[36:37], v103, {S_WS}, 0 offen offset:{FLAGS+256} sc1
    buffer_load_dwordx4 v[32:35], v5, {S_WS}, s12 offen sc1
    s_waitcnt vmcnt(0)
    s_cmp_lg_u32 s92, 0
    s_cbranch_scc1 L_xa_n1
    ds_read_b128 v[16:19], v98
    v_xor_b32 v98, 64, v98
    ds_read_b128 v[20:23], v98
    v_xor_b32 v98, 192, v98
    ds_read_b128 v[24:27], v98
    v_xor_b32 v98, 64, v98
    ds_read_b128 v[28:31], v98
    L_xa_n1:
    v_cmp_ne_u32 vcc, 0, v14
    v_cmp_eq_u64 s[100:101], v[36:37], v[14:15]
    v_max_u32 v4, v32, v33
    s_and_b64 vcc, vcc, s[100:101]
    s_cmp_eq_u64 vcc, exec
    s_cbranch_scc0 L_xa_next
    v_cmp_ne_u32 vcc, -1, v4
    v_cmp_eq_u64 s[100:101], v[34:35], v[14:15]
    s_and_b32 vcc_lo, vcc_lo, 0x00ff00ff
    s_and_b32 vcc_hi, vcc_hi, 0x00ff00ff
    s_and_b32 s100, s100, 0xff00ff00
    s_and_b32 s101, s101, 0xff00ff00
    s_or_b64 vcc, s[100:101], vcc
    s_cmp_eq_u64 vcc, exec
    s_cbranch_scc1 L_xa_got
    s_cmp_le_u32 s92, {FT}
    s_cbranch_scc1 L_xa_next
    buffer_load_dwordx4 v[32:35], v5, {S_WS}, s95 offen sc1
    s_waitcnt vmcnt(0)
    v_cmp_eq_u64 vcc, v[34:35], v[14:15]
    s_cmp_eq_u64 vcc, exec
    s_cbranch_scc0 L_xa_next
    L_xa_got:
    ds_write_b64 v96, v[32:33] offset:{L_XAL}
    s_mov_b32 s15, 1
    """)
    g.signal(C_XA)
    I(f"""
    L_xa_chk:
    ds_read_b32 v4, {VZ} offset:{L_CNT+4*C_XA}
    s_waitcnt lgkmcnt(0)
    v_cmp_gt_u32 vcc, 8, v4
    s_cbranch_vccz L_xa_done
    L_xa_next:
    s_cmp_lg_u32 s92, {FT}
    s_cbranch_scc1 L_xa_nf
    s_mov_b32 s93, 0
    L_xa_non:
    buffer_load_dwordx2 v[14:15], {VZ}, {S_DBG}, 0 offen sc1
    s_waitcnt vmcnt(0)
    v_cmp_ne_u32 vcc, 0, v14
    s_add_u32 s93, s93, 1
    s_cmp_eq_u64 vcc, exec
    s_cbranch_scc1 L_xa_non_d
    s_sleep 4
    s_cmp_lt_u32 s93, {POLL_LIMIT}
    s_cbranch_scc1 L_xa_non
    L_xa_non_d:
    v_mov_b32 v12, v196
    v_mov_b32 v13, v197
    buffer_store_dwordx4 v[12:15], v199, {S_WS}, s99 offen sc1
    L_xa_nf:
    s_and_b32 s93, s92, 3
    s_cmp_lg_u32 s93, 3
    s_cbranch_scc1 L_xa_nr
    buffer_store_dwordx2 v[196:197], v199, {S_WS}, s98 offen
    L_xa_nr:
    s_add_u32 s92, s92, 1
    s_cmp_lt_u32 s92, {POLL_LIMIT}
    s_cbranch_scc1 L_xa_loop
    L_xa_done:
    """)
    g.stamp(3)
    for k in range(8):
        I(f"ds_read_b64 v[{32+2*k}:{33+2*k}], v102 offset:{L_XAL+512*k}")
    for k in range(8):
        I(f"s_waitcnt lgkmcnt({7-k})")
        I(f"v_mfma_f32_16x16x16_bf16 v[8:11], v[{16+2*k}:{17+2*k}], v[{32+2*k}:{33+2*k}], v[8:11]")
    SC = (128 ** -0.5) * 1.4426950408889634
    I("s_nop 7")
    for r in (8, 4, 2):
        for k in range(4):
            I(f"v_add_f32_dpp v{8+k}, v{8+k}, v{8+k} row_ror:{r} row_mask:0xf bank_mask:0xf")
    for k in range(4):
        I(f"v_mul_f32 v{8+k}, {f2u(SC):#x}, v{8+k}")
    I(f"""
    v_cvt_pk_bf16_f32 v104, v8, v9
    v_cvt_pk_bf16_f32 v105, v10, v11
    buffer_store_dwordx2 v[104:105], v99, {S_WS}, s14 offen sc1
    v_mov_b32 v12, v196
    v_mov_b32 v13, v197
    v_mov_b32 v108, v14
    v_mov_b32 v195, v14
    v_mov_b32 v109, v15
    """)
    g.stamp(4)
    I(f"""
    s_barrier
    buffer_store_dwordx4 v[12:15], v199, {S_WS}, s99 offen sc1
    s_cmp_lg_u32 {sWV}, 7
    s_cbranch_scc1 L_B_pr
    v_mov_b32 v4, {OOB}
    v_cmp_eq_u32 vcc, 0, v1
    s_lshl_b32 s14, {sX}, 5
    s_add_u32 s14, s14, {sS}
    v_cndmask_b32 v7, v4, 0, vcc
    s_lshl_b32 s14, s14, 4
    s_add_u32 s14, s14, {FLAGS}
    s_getreg_b32 s15, hwreg(HW_REG_XCC_ID)
    v_mov_b32 v110, s15
    v_mov_b32 v111, 0
    buffer_store_dwordx4 v[108:111], v7, {S_WS}, s14 offen sc1
    L_B_pr:
    """)
    if P["prime_at"] == 1:
        prime_c1()
    if P["pf_rows"]:
        n = P["pf_rows"] // 64
        I(f"""
        s_lshl_b32 s12, {sX}, 11
        s_lshl_b32 s13, {sM}, 7
        s_add_u32 s12, s12, s13
        s_add_u32 s12, s12, {128 - P["pf_rows"]}
        s_mul_i32 s13, {sWV}, {8*n}
        s_add_u32 s12, s12, s13
        s_lshl_b32 s12, s12, 10
        v_lshlrev_b32 v4, 7, v1
        """)
        for i in range(n):
            I(f"buffer_load_dword v{194+i}, v4, {S_CKV}, s12 offen nt\ns_add_u32 s12, s12, 8192")
    I(f"s_cmp_lg_u32 {sWV}, 7\ns_cbranch_scc1 L_B_nu\nv_mov_b32 v14, v108\nv_mov_b32 v15, v109")
    g.sleep(P["d_bfl"])
    verify_flags(32, False, False)
    g.label("L_B_nu")
    I(f"""
    s_lshl_b32 s12, {sX}, 4
    s_add_u32 s12, s12, {sM}
    s_lshl_b32 s12, s12, 7
    s_add_u32 s12, s12, {XH}
    s_mov_b32 s92, 0
    s_cmp_lg_u32 {sWV}, 0
    s_cbranch_scc1 L_B_hd
    L_B_hp:
    buffer_load_dwordx2 v[12:13], {VZ}, {S_WS}, s12 offen sc1
    s_waitcnt vmcnt(0)
    v_cmp_eq_u64 vcc, v[12:13], v[108:109]
    s_add_u32 s92, s92, 1
    s_cbranch_vccnz L_B_hd
    s_sleep 4
    s_cmp_lt_u32 s92, 200
    s_cbranch_scc1 L_B_hp
    L_B_hd:
    s_barrier
    """)
    g.stamp(26)
    g.label("L_B_p2")
    I(f"""
    """)
    if P["prime_at"] == 2:
        prime_c1()
    I(f"""
    v_lshrrev_b32 v4, 2, v1
    v_lshlrev_b32 v4, 13, v4
    v_and_b32 v6, 3, v1
    v_lshl_add_u32 v4, v6, 4, v4
    s_lshl_b32 s12, {sWV}, 17
    s_lshl_b32 s13, {sH}, 8
    s_add_u32 s12, s12, s13
    s_lshl_b32 s13, {sSUB}, 6
    s_add_u32 s12, s12, s13
    s_lshl_b32 s13, {sWV}, 10
    s_add_u32 s13, s13, {L_WUV}
    """)
    for i in range(4):
        dma("v4", S_WUV, NT, 8192, 1 << 20)
    I(f"""
    s_lshl_b32 s12, {sH}, 7
    s_lshl_b32 s13, {sSUB}, 5
    s_add_u32 s12, s12, s13
    s_mul_i32 s12, s12, 1280
    s_lshl_b32 s13, {sWV}, 10
    s_add_u32 s12, s12, s13
    s_add_u32 s13, s13, {L_WO}
    """)
    for i in range(5):
        dma("v5", S_WO, NT, 8192, 8192)
    if P["w2pf"]:
        I(f"""
        s_cmp_lt_u32 {sX}, 3
        s_cbranch_scc1 L_B_npf
        s_cmp_ge_u32 {sWV}, 4
        s_cbranch_scc1 L_B_npf
        v_min_u32 v4, 53, v1
        v_lshrrev_b32 v7, 1, v4
        v_mul_u32_u24 v7, 1280, v7
        v_and_b32 v4, 1, v4
        v_lshl_add_u32 v7, v4, 7, v7
        s_mul_i32 s12, {sM}, 108
        s_mul_i32 s13, {sWV}, 27
        s_add_u32 s12, s12, s13
        s_mul_i32 s12, s12, 1280
        s_sub_u32 s13, {sX}, 3
        s_lshl_b32 s13, s13, 8
        s_add_u32 s12, s12, s13
        buffer_load_dword v194, v7, {S_W2}, s12 offen {P["w2pf_flag"]}
        L_B_npf:
        """)
    I(f"""
    v_bfe_u32 v4, v1, 2, 2
    v_lshl_add_u32 v4, v2, 3, v4
    v_lshlrev_b32 v16, 6, v4
    v_lshl_add_u32 v16, v6, 3, v16
    s_lshl_b32 s12, {sWV}, 12
    s_add_u32 s12, s12, {L_WUV}
    v_add_u32 v16, s12, v16
    v_mul_u32_u24 v17, 1280, v4
    v_lshl_add_u32 v17, v6, 3, v17
    s_mul_i32 s12, {sWV}, 160
    s_add_u32 s12, s12, {L_WO}
    v_add_u32 v17, s12, v17
    v_and_b32 v18, 7, v3
    v_lshlrev_b32 v18, 10, v18
    v_lshl_add_u32 v18, v2, 4, v18
    s_lshl_b32 s12, {sH}, 13
    s_lshl_b32 s13, {sWV}, 7
    s_add_u32 s12, s12, s13
    s_add_u32 s12, s12, {XC2D}
    v_and_b32 v4, 1, v2
    v_lshl_add_u32 v19, v4, 2, v6
    v_lshlrev_b32 v19, 7, v19
    s_lshl_b32 s13, {sH}, 10
    s_add_u32 s13, s13, {XC2M}
    v_lshl_add_u32 v20, v4, 5, v3
    v_lshlrev_b32 v20, 5, v20
    s_lshl_b32 s14, {sWV}, 2
    v_add_u32 v20, s14, v20
    v_lshlrev_b32 v21, 5, v1
    s_lshl_b32 s14, {sWV}, 7
    v_lshl_add_u32 v22, v1, 1, s14
    v_and_b32 v23, 1, v3
    v_lshlrev_b32 v23, 6, v23
    v_lshl_add_u32 v23, v2, 4, v23
    v_add_u32 v23, s14, v23
    v_and_b32 v24, 1, v3
    v_mul_u32_u24 v24, 2560, v24
    v_lshl_add_u32 v24, v2, 4, v24
    v_lshrrev_b32 v7, 1, v3
    v_lshl_add_u32 v24, v7, 6, v24
    v_mov_b32 v4, 1024
    v_cmp_eq_u32 vcc, 0, v7
    v_cmp_eq_u32 s[100:101], 1, v7
    s_nop 0
    v_cndmask_b32 v25, v4, v23, vcc
    v_cndmask_b32 v26, v4, v23, s[100:101]
    v_cmp_eq_u32 vcc, 2, v7
    v_cmp_eq_u32 s[100:101], 3, v7
    s_nop 0
    v_cndmask_b32 v27, v4, v23, vcc
    v_cndmask_b32 v28, v4, v23, s[100:101]
    v_cmp_eq_u32 vcc, 4, v7
    v_lshlrev_b32 v30, 2, v6
    s_nop 0
    v_cndmask_b32 v29, v4, v23, vcc
    ds_write_b32 v30, {VZ} offset:{L_CT+1024}
    v_mov_b32 v4, {OOB}
    v_cmp_gt_u32 vcc, 10, v3
    s_lshl_b32 s93, {sX}, 4
    s_add_u32 s93, s93, {sM}
    v_cndmask_b32 v24, v4, v24, vcc
    s_mul_i32 s93, s93, 5120
    s_mul_i32 s94, {sWV}, 320
    s_add_u32 s93, s93, s94
    s_add_u32 s93, s93, {XD1}
    """)
    for r in list(range(8, 16)) + list(range(64, 68)):
        I(f"v_mov_b32 v{r}, 0")
    g.bar("vmcnt(0) lgkmcnt(0)")
    g.stamp(18)
    I(f"""
    ds_read_b32 v4, {VZ} offset:{L_CTRL+8}
    s_mul_i32 s14, {sX}, {16*5120}
    s_lshl_b32 s94, {sM}, 8
    s_add_u32 s14, s14, s94
    s_add_u32 s14, s14, {XD1}
    s_cmp_lg_u32 {sWV}, 0
    s_cbranch_scc1 L_B_np3
    s_cmp_ge_u32 {sM}, 10
    s_cbranch_scc1 L_B_np3
    v_lshrrev_b32 v5, 1, v1
    v_mul_u32_u24 v5, 2560, v5
    v_and_b32 v6, 1, v1
    v_lshl_add_u32 v5, v6, 7, v5
    buffer_load_dword v6, v5, {S_WS}, s14 offen sc1 nt
    L_B_np3:
    s_mul_i32 s95, {sWV}, {2*5120}
    s_add_u32 s14, s14, s95
    v_mul_u32_u24 v30, 2560, v2
    v_lshl_add_u32 v30, v3, 4, v30
    v_and_b32 v7, 1, v2
    v_mul_u32_u24 v31, 2560, v7
    v_lshl_add_u32 v31, v3, 4, v31
    v_lshrrev_b32 v7, 1, v2
    v_lshl_add_u32 v31, v7, 3, v31
    s_mul_i32 s95, {sX}, 5120
    s_add_u32 s95, s95, s94
    s_add_u32 s95, s95, {XD2}
    s_lshl_b32 s94, {sWV}, 9
    v_lshl_add_u32 v133, v1, 3, s94
    v_lshlrev_b32 v134, 3, v1
    """)
    for t in range(2):
        for nu in range(2):
            for tt in range(2):
                r = 96 + (t * 2 + nu) * 4 + 2 * tt
                I(f"ds_read_b64_tr_b16 v[{r}:{r+1}], v16 offset:{(32*t+4*tt)*64+32*nu}")
    for u in range(5):
        for tt in range(2):
            r = 112 + 4 * u + 2 * tt
            I(f"ds_read_b64_tr_b16 v[{r}:{r+1}], v17 offset:{32*u+4*tt*1280}")
    I("s_waitcnt lgkmcnt(0)\nv_readfirstlane_b32 s15, v4")
    if P["c2w"]:
        I(f"""
        s_lshl_b32 s12, {sH}, 3
        s_add_u32 s12, s12, {sWV}
        s_lshl_b32 s13, s12, 7
        s_add_u32 s13, s13, {XC2M}
        s_lshl_b32 s12, s12, 10
        s_add_u32 s12, s12, {XC2D}
        v_lshlrev_b32 v5, 4, v1
        s_mul_i32 s100, {sWV}, {CPITCH}
        s_add_u32 s100, s100, {L_C2}
        v_add_u32 v135, s100, v5
        s_lshl_b32 s100, {sWV}, 3
        s_add_u32 s100, s100, {L_C2+8*CPITCH}
        v_mov_b32 v136, s100
        v_and_b32 v137, 7, v3
        v_mul_u32_u24 v137, {CPITCH}, v137
        v_lshl_add_u32 v137, v2, 4, v137
        s_lshl_b32 s100, {sWV}, 7
        s_add_u32 s100, s100, {L_C2}
        v_add_u32 v137, s100, v137
        v_lshrrev_b32 v138, 4, v19
        v_add_u32 v138, {L_C2+8*CPITCH}, v138
        """)
        g.poll([f"buffer_load_dwordx4 v[32:35], v5, {S_WS}, s12 offen sc1",
                f"buffer_load_dwordx2 v[36:37], {VZ}, {S_WS}, s13 offen sc1"],
               range(32, 38), backoff=P["bo_c2"])
        g.stamp(10)
        I("ds_write_b128 v135, v[32:35]\nds_write_b64 v136, v[36:37]")
        g.bar()
        I("""
        ds_read_b64 v[48:49], v138
        ds_read_b128 v[32:35], v137
        ds_read_b128 v[36:39], v137 offset:64
        s_waitcnt lgkmcnt(0)
        """)
    else:
        g.poll([f"buffer_load_dwordx4 v[32:35], v18, {S_WS}, s12 offen sc1",
                f"buffer_load_dwordx4 v[36:39], v18, {S_WS}, s12 offen offset:64 sc1",
                f"buffer_load_dwordx2 v[48:49], v19, {S_WS}, s13 offen sc1"],
               list(range(32, 40)) + [48, 49], delay=P["d_c2"], backoff=P["bo_c2"])
        g.stamp(10)
    I(f"""
    v_mfma_f32_16x16x32_bf16 v[8:11], v[32:35], v[96:99], v[8:11]
    v_mfma_f32_16x16x32_bf16 v[12:15], v[32:35], v[100:103], v[12:15]
    v_max_f32_dpp v4, v48, v48 quad_perm:[1,0,3,2] row_mask:0xf bank_mask:0xf
    v_mfma_f32_16x16x32_bf16 v[8:11], v[36:39], v[104:107], v[8:11]
    v_mfma_f32_16x16x32_bf16 v[12:15], v[36:39], v[108:111], v[12:15]
    v_max_f32_dpp v4, v4, v4 quad_perm:[2,3,0,1] row_mask:0xf bank_mask:0xf
    v_sub_f32 v48, v48, v4
    v_exp_f32 v48, v48
    s_nop 0
    v_mul_f32 v4, v48, v49
    s_nop 1
    v_add_f32_dpp v4, v4, v4 quad_perm:[1,0,3,2] row_mask:0xf bank_mask:0xf
    s_nop 1
    v_add_f32_dpp v4, v4, v4 quad_perm:[2,3,0,1] row_mask:0xf bank_mask:0xf
    v_rcp_f32 v4, v4
    s_nop 0
    v_mul_f32 v48, v48, v4
    s_nop 1
    v_mov_b32_dpp v40, v48 quad_perm:[0,0,0,0] row_mask:0xf bank_mask:0xf
    v_mov_b32_dpp v42, v48 quad_perm:[1,1,1,1] row_mask:0xf bank_mask:0xf
    v_mov_b32_dpp v44, v48 quad_perm:[2,2,2,2] row_mask:0xf bank_mask:0xf
    v_mov_b32_dpp v46, v48 quad_perm:[3,3,3,3] row_mask:0xf bank_mask:0xf
    v_mul_f32 v5, v40, v8
    v_fmac_f32 v5, v42, v9
    v_mul_f32 v6, v40, v12
    v_fmac_f32 v5, v44, v10
    v_fmac_f32 v6, v42, v13
    v_fmac_f32 v5, v46, v11
    v_fmac_f32 v6, v44, v14
    ds_write_b32 v20, v5 offset:{L_DR}
    v_fmac_f32 v6, v46, v15
    ds_write_b32 v20, v6 offset:{L_DR+512}
    """)
    g.bar()
    I(f"""
    ds_read_b128 v[32:35], v21 offset:{L_DR}
    ds_read_b128 v[36:39], v21 offset:{L_DR+16}
    s_waitcnt lgkmcnt(0)
    v_add_f32 v32, v32, v33
    v_add_f32 v34, v34, v35
    v_add_f32 v36, v36, v37
    v_add_f32 v38, v38, v39
    v_add_f32 v32, v32, v34
    v_add_f32 v36, v36, v38
    v_add_f32 v32, v32, v36
    v_cvt_pk_bf16_f32 v32, v32, v32
    ds_write_b16 v22, v32 offset:{L_CT}
    s_waitcnt lgkmcnt(0)
    """)
    for u in range(5):
        I(f"ds_read_b128 v[{40+4*u}:{43+4*u}], v{25+u} offset:{L_CT}")
    for u in range(5):
        I(f"s_waitcnt lgkmcnt({4-u})")
        I(f"v_mfma_f32_16x16x32_bf16 v[64:67], v[{112+4*u}:{115+4*u}], v[{40+4*u}:{43+4*u}], v[64:67]")
    I(f"""
    s_nop 5
    s_cmp_eq_u32 s15, 1
    s_cbranch_scc1 L_e_fast
    buffer_store_dwordx4 v[64:67], v24, {S_WS}, s93 offen sc1
    s_branch L_e_done
    L_e_fast:
    buffer_store_dwordx4 v[64:67], v24, {S_WS}, s93 offen
    L_e_done:
    """)
    g.stamp(11)
    if P["wb"] == 1:
        I(f"""
        s_cmp_lg_u32 {sWV}, 1
        s_cbranch_scc1 L_nwb
        s_cmp_lg_u32 {sM}, 15
        s_cbranch_scc1 L_nwb
        s_sleep 40
        buffer_wbl2 sc1
        s_waitcnt vmcnt(0)
        L_nwb:
        """)
    I(f"s_cmp_ge_u32 {sM}, 10\ns_cbranch_scc1 L_fin")
    g.poll([f"buffer_load_dwordx4 v[32:35], v30, {S_WS}, s14 offen sc1"], range(32, 36), delay=P["d_d1"], tmp="v6", backoff=1)
    I(f"""
    v_permlane32_swap_b32 v32, v34
    v_permlane32_swap_b32 v33, v35
    v_add_f32 v32, v32, v34
    v_add_f32 v33, v33, v35
    ds_write_b64 v133, v[32:33] offset:{L_D1}
    """)
    g.bar()
    I(f"s_cmp_lg_u32 {sWV}, 0\ns_cbranch_scc1 L_fin")
    for v in range(8):
        I(f"ds_read_b64 v[{32+2*v}:{33+2*v}], v134 offset:{L_D1+512*v}")
    I("s_waitcnt lgkmcnt(0)")
    g.tree_add(32, 8, 2, 2)
    I(f"buffer_store_dwordx2 v[32:33], v31, {S_WS}, s95 offen sc1")
    g.stamp(12)
    I("s_branch L_fin")

    g.label("L_Awg")
    I(f"""
    s_lshl_b32 s12, {sX}, 11
    s_lshl_b32 s13, {sM}, 7
    s_add_u32 s12, s12, s13
    s_lshl_b32 s13, {sWV}, 4
    s_add_u32 s12, s12, s13
    s_lshl_b32 s12, s12, 10
    s_mul_i32 s13, {sWV}, {16*CPITCH}
    s_add_u32 s13, s13, {L_CKV}
    s_lshr_b32 s101, {sWV}, 1
    s_barrier
    buffer_store_dwordx4 v[12:15], v199, {S_WS}, s99 offen sc1
    """)

    def own_tile(cond):
        lab = g.newlab("Lt")
        lp = g.newlab("Ltl")
        I(f"{cond}\ns_cbranch_scc0 {lab}\ns_mov_b32 s14, 0")
        g.label(lp)
        for i in range(4):
            dma("v5", S_CKV, NT, CPITCH, 1024)
        I(f"s_add_u32 s14, s14, 1\ns_cmp_lt_u32 s14, 4\ns_cbranch_scc1 {lp}")
        g.label(lab)

    own_tile(f"s_cmp_lt_u32 s101, {P['ahead']}")
    I(f"""
    v_and_b32 v16, 7, v3
    v_lshlrev_b32 v16, 1, v16
    v_lshrrev_b32 v4, 3, v3
    v_add_u32 v16, v16, v4
    s_lshl_b32 s14, {sWV}, 4
    v_add_u32 v16, s14, v16
    v_mul_u32_u24 v16, {CPITCH}, v16
    v_lshl_add_u32 v16, v2, 8, v16
    v_add_u32 v16, {L_CKV}, v16
    v_and_b32 v17, 1, v2
    v_lshlrev_b32 v17, 3, v17
    v_bfe_u32 v4, v1, 2, 2
    v_lshl_add_u32 v17, v4, 1, v17
    v_lshrrev_b32 v4, 1, v2
    v_add_u32 v17, v17, v4
    v_mul_u32_u24 v17, {CPITCH}, v17
    v_and_b32 v4, 3, v1
    v_lshl_add_u32 v17, v4, 3, v17
    s_lshl_b32 s14, {sWV}, 7
    s_add_u32 s14, s14, {L_CKV}
    v_add_u32 v17, s14, v17
    v_mul_u32_u24 v18, {CPITCH}, v3
    v_lshl_add_u32 v18, v2, 8, v18
    v_lshlrev_b32 v19, 5, v3
    s_lshl_b32 s14, {sWV}, 2
    v_add_u32 v20, s14, v19
    s_lshr_b32 s14, {sWV}, 1
    s_lshl_b32 s14, s14, 10
    s_and_b32 s15, {sWV}, 1
    s_lshl_b32 s15, s15, 3
    s_add_u32 s14, s14, s15
    v_add_u32 v21, s14, v5
    s_mul_i32 s14, {sWV}, {4*CPITCH}
    v_add_u32 v22, s14, v5
    v_lshrrev_b32 v23, 1, v2
    v_and_b32 v4, 7, v3
    v_xor_b32 v23, v23, v4
    v_lshlrev_b32 v23, 4, v23
    v_lshl_add_u32 v23, v3, 7, v23
    v_and_b32 v4, 1, v2
    v_lshl_add_u32 v23, v4, 3, v23
    s_lshl_b32 s14, {sWV}, 12
    s_add_u32 s14, s14, {L_TR}
    v_add_u32 v23, s14, v23
    v_xor_b32 v24, 32, v23
    v_xor_b32 v25, 64, v23
    v_xor_b32 v26, 96, v23
    v_lshrrev_b32 v30, 3, v1
    v_and_b32 v31, 7, v1
    v_xor_b32 v27, v30, v31
    v_lshlrev_b32 v27, 4, v27
    v_lshl_add_u32 v27, v30, 7, v27
    v_add_u32 v27, s14, v27
    s_mov_b32 s14, {C1J}
    v_mul_lo_u32 v28, v30, s14
    v_lshl_add_u32 v28, v31, 4, v28
    v_lshlrev_b32 v29, 7, v1
    v_mov_b32 v4, {OOB}
    v_cmp_gt_u32 vcc, 32, v1
    s_lshr_b32 s94, {sX}, 2
    s_lshl_b32 s94, s94, 15
    v_cndmask_b32 v29, v4, v29, vcc
    s_lshl_b32 s14, {sWV}, 12
    s_add_u32 s94, s94, s14
    s_add_u32 s94, s94, {XB}
    """)
    def send_hint():
        I(f"""
        s_lshl_b32 s14, {sX}, 4
        s_add_u32 s14, s14, {sM}
        s_lshl_b32 s14, s14, 7
        s_add_u32 s14, s14, {XH}
        v_mov_b32 v4, {OOB}
        v_cmp_eq_u32 vcc, 0, v0
        s_nop 1
        v_cndmask_b32 v4, v4, 0, vcc
        buffer_store_dwordx2 v[14:15], v4, {S_WS}, s14 offen sc1
        """)
    xb_loads = [f"buffer_load_dwordx4 v[{96+4*t}:{99+4*t}], v5, {S_WS}, s94 offen offset:{1024*t} sc1" for t in range(4)]
    for kb in range(4):
        I(f"s_cmp_lg_u32 s101, {kb}\ns_cbranch_scc1 L_A_na{kb}")
        I(f"s_waitcnt vmcnt({(5 if P['hint_kb'] == 2 else 4) if kb == 3 else 0})")
        g.stamp(27)
        for j in range(16):
            I(f"ds_read_b128 v[{32+4*j}:{35+4*j}], v16 offset:{16*j}")
        g.label(f"L_A_na{kb}")
        if kb == 2:
            I(f"s_cmp_lg_u32 {sWV}, 0\ns_cbranch_scc1 L_A_w2")
            verify_flags(112, True, True, first_wait="vmcnt(0)", onlyA=True)
            g.label("L_A_w2")
        if kb in (1, 2):
            g.bar()
        else:
            g.bar(None)
        if kb == P["fl_kb"]:
            I(f"s_cmp_lg_u32 {sWV}, 0\ns_cbranch_scc1 L_A_nf")
            for i in range(4):
                I(f"buffer_load_dwordx4 v[{112+4*i}:{115+4*i}], v5, {S_WS}, 0 offen offset:{FLAGS+1024*i} sc1")
            g.label("L_A_nf")
        if kb + P["ahead"] < 4:
            own_tile(f"s_cmp_eq_u32 s101, {kb + P['ahead']}")
        if kb < 2 and P["hint_kb"] == kb:
            send_hint()
        if kb == 2:
            for l in xb_loads:
                I(l)
            if P["hint_kb"] == 2:
                send_hint()
        if kb == 3:
            g.stamp(6)
        for tau in range(4):
            for t in range(2):
                dst = PVA + (tau * 4 + kb) * 4 + 2 * t
                I(f"ds_read_b64_tr_b16 v[{dst}:{dst+1}], v17 offset:{16*t*CPITCH + 32*tau}")
        if kb < 3:
            I(f"v_add_u32 v17, {32*CPITCH}, v17")
    I(f"ds_read_b32 v6, {VZ} offset:{L_CTRL+8}")
    g.poll(xb_loads, range(96, 112), preissued=True, backoff=P["bo_b"])
    g.stamp(5)
    for t in range(4):
        I(f"ds_write_b128 v22, v[{96+4*t}:{99+4*t}] offset:{L_QA+CPITCH*t}")
    if P["hint_kb"] == 4:
        send_hint()
    I(f"""
    s_lshl_b32 s93, {sX}, 4
    s_add_u32 s93, s93, {sM}
    s_lshl_b32 s93, s93, 8
    s_add_u32 s93, s93, {XC1M}
    s_cmp_lg_u32 {sWV}, 3
    s_cbranch_scc1 L_A_npm
    v_lshlrev_b32 v4, 2, v1
    buffer_load_dword v194, v4, {S_WS}, s93 offen sc1 nt
    L_A_npm:
    """)
    for r in range(8, 16):
        I(f"v_mov_b32 v{r}, 0")
    g.bar()
    I("v_readfirstlane_b32 s15, v6")
    if P["w2e"] < 14:
        assert P["w2e"] >= 7
        I(f"s_cmp_eq_u32 {sUP}, 1\ns_cbranch_scc1 L_A_nw2")
        w2_dma(P["w2e"], 14, "b")
        g.label("L_A_nw2")
    seq = [(j, ht) for j in range(16) for ht in range(2)]
    def qread(i):
        j, ht = seq[i]
        r = 96 + 4 * (i % 8)
        I(f"ds_read_b128 v[{r}:{r+3}], v18 offset:{L_QA+16*CPITCH*ht+16*j}")
    for i in range(8):
        qread(i)
    for i in range(32):
        j, ht = seq[i]
        r = 96 + 4 * (i % 8)
        I(f"s_waitcnt lgkmcnt({min(7, 31 - i)})")
        I(f"v_mfma_f32_16x16x32_bf16 v[{8+4*ht}:{11+4*ht}], v[{32+4*j}:{35+4*j}], v[{r}:{r+3}], v[{8+4*ht}:{11+4*ht}]")
        if i + 8 < 32:
            qread(i + 8)
    for r in range(32, 40):
        I(f"v_mov_b32 v{r}, 0")
    I(f"""
    v_max_f32 v4, v8, v9
    v_max_f32 v6, v12, v13
    v_max3_f32 v4, v4, v10, v11
    v_max3_f32 v6, v6, v14, v15
    s_nop 1
    v_permlane16_swap_b32 v4, v6
    v_max_f32 v4, v4, v6
    v_mov_b32 v6, v4
    s_nop 1
    v_permlane32_swap_b32 v4, v6
    v_max_f32 v4, v4, v6
    """)
    I(f"""
    v_and_b32 v6, 1, v2
    v_lshl_add_u32 v7, v6, 9, v20
    ds_write_b32 v7, v4 offset:{L_MB}
    """)
    g.stamp(20)
    for r in range(40, 64):
        I(f"v_mov_b32 v{r}, 0")
    g.bar()
    g.stamp(21)
    I(f"""
    ds_read_b128 v[96:99], v19 offset:{L_MB}
    ds_read_b128 v[100:103], v19 offset:{L_MB+16}
    ds_read_b128 v[104:107], v19 offset:{L_MB+512}
    ds_read_b128 v[108:111], v19 offset:{L_MB+528}
    s_waitcnt lgkmcnt(2)
    v_max3_f32 v4, v96, v97, v98
    v_max3_f32 v4, v4, v99, v100
    v_max3_f32 v4, v4, v101, v102
    v_max_f32 v4, v4, v103
    s_waitcnt lgkmcnt(0)
    v_max3_f32 v6, v104, v105, v106
    v_max3_f32 v6, v6, v107, v108
    v_max3_f32 v6, v6, v109, v110
    v_max_f32 v6, v6, v111
    """)
    for k in range(4):
        I(f"v_sub_f32 v{8+k}, v{8+k}, v4\nv_sub_f32 v{12+k}, v{12+k}, v6")
    for k in range(8):
        I(f"v_exp_f32 v{8+k}, v{8+k}")
    I(f"""
    s_nop 0
    v_cvt_pk_bf16_f32 v96, v8, v9
    v_cvt_pk_bf16_f32 v97, v10, v11
    v_cvt_pk_bf16_f32 v98, v12, v13
    v_cvt_pk_bf16_f32 v99, v14, v15
    ds_write_b64 v21, v[96:97] offset:{L_PB}
    ds_write_b64 v21, v[98:99] offset:{L_PB+4096}
    v_add_f32 v4, v8, v9
    v_add_f32 v6, v12, v13
    v_add_f32 v8, v10, v11
    v_add_f32 v9, v14, v15
    v_add_f32 v4, v4, v8
    v_add_f32 v6, v6, v9
    s_nop 1
    v_permlane16_swap_b32 v4, v6
    v_add_f32 v4, v4, v6
    v_mov_b32 v6, v4
    s_nop 1
    v_permlane32_swap_b32 v4, v6
    v_add_f32 v4, v4, v6
    ds_write_b32 v7, v4 offset:{L_LB}
    s_mul_i32 s12, {sX}, {32*C1J}
    s_lshl_b32 s13, {sM}, 10
    s_add_u32 s12, s12, s13
    s_lshl_b32 s13, {sWV}, 7
    s_add_u32 s12, s12, s13
    s_add_u32 s12, s12, {XC1D}
    s_lshl_b32 s13, {sX}, 12
    s_lshl_b32 s14, {sM}, 3
    s_add_u32 s13, s13, s14
    s_add_u32 s13, s13, {XC1M}
    v_and_b32 v6, 31, v1
    v_lshlrev_b32 v6, 5, v6
    """)
    g.bar()
    g.stamp(22)
    for q in range(8):
        I(f"ds_read_b128 v[{64+4*q}:{67+4*q}], v5 offset:{L_PB+1024*q}")
    I("s_cmp_eq_u32 s15, 1\ns_cbranch_scc1 L_pv_fast")
    for fl, lab in (("sc1", None), ("", "L_pv_fast")):
        if lab:
            g.label(lab)
        for ht in range(2):
            I(f"s_waitcnt lgkmcnt({4 if ht == 0 else 0})")
            for tau in range(4):
                for kb in range(4):
                    acc = 32 + (tau * 2 + ht) * 4
                    a = PVA + (tau * 4 + kb) * 4
                    pb = 64 + (ht * 4 + kb) * 4
                    I(f"v_mfma_f32_16x16x32_bf16 v[{acc}:{acc+3}], v[{a}:{a+3}], v[{pb}:{pb+3}], v[{acc}:{acc+3}]")
                if ht == 1:
                    if tau == 0:
                        for tq in range(3):
                            acc = 32 + (tq * 2) * 4
                            I(f"v_cvt_pk_bf16_f32 v{acc}, v{acc}, v{acc+1}\nv_cvt_pk_bf16_f32 v{acc+1}, v{acc+2}, v{acc+3}")
                            I(f"ds_write_b64 v{23+tq}, v[{acc}:{acc+1}]")
                    if tau == 1:
                        acc = 32 + 6 * 4
                        I(f"v_cvt_pk_bf16_f32 v{acc}, v{acc}, v{acc+1}\nv_cvt_pk_bf16_f32 v{acc+1}, v{acc+2}, v{acc+3}")
                        I(f"ds_write_b64 v26, v[{acc}:{acc+1}]")
                        I("s_waitcnt lgkmcnt(0)")
                        I("ds_read_b128 v[96:99], v27\nds_read_b128 v[100:103], v27 offset:1024")
                    if tau == 2:
                        I("s_waitcnt lgkmcnt(1)")
                        I(f"buffer_store_dwordx4 v[96:99], v28, {S_WS}, s12 offen {fl}")
                        I(f"s_add_u32 s12, s12, {8*C1J}")
                        I("s_waitcnt lgkmcnt(0)")
                        I(f"buffer_store_dwordx4 v[100:103], v28, {S_WS}, s12 offen {fl}")
                        I(f"s_add_u32 s12, s12, {8*C1J}")
        I(f"""
        ds_read_b128 v[112:115], v6 offset:{L_MB}
        ds_read_b128 v[116:119], v6 offset:{L_MB+16}
        ds_read_b128 v[120:123], v6 offset:{L_LB}
        ds_read_b128 v[124:127], v6 offset:{L_LB+16}
        """)
        for tau in range(4):
            acc = 32 + (tau * 2 + 1) * 4
            I(f"v_cvt_pk_bf16_f32 v{acc}, v{acc}, v{acc+1}\nv_cvt_pk_bf16_f32 v{acc+1}, v{acc+2}, v{acc+3}")
            I(f"ds_write_b64 v{23+tau}, v[{acc}:{acc+1}] offset:2048")
        I("s_waitcnt lgkmcnt(0)")
        I("ds_read_b128 v[104:107], v27 offset:2048\nds_read_b128 v[108:111], v27 offset:3072")
        g.stamp(23)
        I(f"""
        v_max3_f32 v8, v112, v113, v114
        v_max3_f32 v8, v8, v115, v116
        v_max3_f32 v8, v8, v117, v118
        v_max_f32 v8, v8, v119
        s_waitcnt lgkmcnt(1)
        buffer_store_dwordx4 v[104:107], v28, {S_WS}, s12 offen {fl}
        s_add_u32 s12, s12, {8*C1J}
        s_waitcnt lgkmcnt(0)
        buffer_store_dwordx4 v[108:111], v28, {S_WS}, s12 offen {fl}
        v_add_f32 v9, v120, v121
        v_add_f32 v10, v122, v123
        v_add_f32 v11, v124, v125
        v_add_f32 v12, v126, v127
        v_add_f32 v9, v9, v10
        v_add_f32 v11, v11, v12
        v_add_f32 v9, v9, v11
        """)
        g.bar("vmcnt(0)")
        g.stamp(25)
        I(f"s_cmp_lg_u32 {sWV}, 0\ns_cbranch_scc1 L_c1_done")
        I(f"buffer_store_dwordx2 v[8:9], v29, {S_WS}, s13 offen {fl}")
        if not lab:
            I("s_branch L_c1_done")
    g.label("L_c1_done")
    g.stamp(7)
    I(f"""
    v_lshlrev_b32 v16, 3, v30
    s_lshl_b32 s14, {sX}, 5
    s_lshl_b32 s13, {sM}, 1
    s_add_u32 s14, s14, s13
    s_mul_i32 s12, s14, {C1J}
    v_lshlrev_b32 v7, 10, v30
    v_lshl_add_u32 v7, v31, 4, v7
    v_add_u32 v6, 8192, v7
    s_lshl_b32 s13, {sWV}, 7
    s_add_u32 s12, s12, s13
    s_add_u32 s12, s12, {XC1D}
    s_add_u32 s14, s12, {C1J}
    v_lshlrev_b32 v17, 4, v31
    v_lshl_add_u32 v17, v2, 2, v17
    v_bfe_u32 v4, v1, 3, 1
    v_lshl_add_u32 v17, v4, 13, v17
    s_lshl_b32 s95, {sM}, 4
    s_add_u32 s95, s95, {sX}
    s_lshl_b32 s94, s95, 10
    s_add_u32 s94, s94, s13
    s_add_u32 s94, s94, {XC2D}
    s_lshl_b32 s95, s95, 7
    s_add_u32 s95, s95, {XC2M}
    v_lshlrev_b32 v18, 7, v1
    v_and_b32 v4, 0x1f7, v0
    v_mov_b32 v19, {OOB}
    v_cmp_eq_u32 vcc, 0, v4
    s_nop 1
    v_cndmask_b32 v18, v19, v18, vcc
    """)
    dl = [f"buffer_load_dwordx4 v[64:67], v7, {S_WS}, s12 offen sc1",
          f"buffer_load_dwordx4 v[68:71], v6, {S_WS}, s12 offen sc1",
          f"buffer_load_dwordx4 v[72:75], v7, {S_WS}, s14 offen sc1",
          f"buffer_load_dwordx4 v[76:79], v6, {S_WS}, s14 offen sc1"]
    if P["inc"]:
        I("s_mov_b64 s[20:21], 0\ns_mov_b64 s[22:23], 0\ns_mov_b64 s[24:25], 0\ns_mov_b64 s[26:27], 0\ns_mov_b32 s92, 0")
        g.label("L_c1p")
        for q in range(4):
            I(f"buffer_load_dwordx2 v[{32+2*q}:{33+2*q}], v16, {S_WS}, s93 offen offset:{64*q} sc1")
        I("s_waitcnt vmcnt(0)")
        for q in range(4):
            I(f"v_max_u32 v{8+q}, v{32+2*q}, v{33+2*q}")
        for q in range(4):
            d = f"s[{20+2*q}:{21+2*q}]"
            I(f"""
            v_cmp_ne_u32 vcc, -1, v{8+q}
            s_andn2_b64 exec, vcc, {d}
            s_cbranch_execz L_c1s{q}
            {dl[q]}
            L_c1s{q}:
            s_mov_b64 exec, -1
            s_or_b64 {d}, {d}, vcc
            """)
        I(f"""
        s_and_b64 s[100:101], s[20:21], s[22:23]
        s_and_b64 vcc, s[24:25], s[26:27]
        s_and_b64 vcc, vcc, s[100:101]
        s_add_u32 s92, s92, 1
        s_cmp_eq_u64 vcc, exec
        s_cbranch_scc1 L_c1d
        s_sleep 1
        s_cmp_lt_u32 s92, {POLL_LIMIT}
        s_cbranch_scc1 L_c1p
        L_c1d:
        """)
    else:
        g.poll([f"buffer_load_dwordx2 v[{32+2*q}:{33+2*q}], v16, {S_WS}, s93 offen offset:{64*q} sc1" for q in range(4)],
               range(32, 40), delay=P["d_c1"], backoff=1)
        for l in dl:
            I(l)
    g.stamp(8)
    I(f"""
    v_max_f32 v8, v32, v34
    v_max_f32 v10, v36, v38
    s_nop 1
    v_max_f32_dpp v8, v8, v8 row_ror:8 row_mask:0xf bank_mask:0xf
    v_max_f32_dpp v10, v10, v10 row_ror:8 row_mask:0xf bank_mask:0xf
    v_mov_b32 v12, v8
    v_mov_b32 v13, v10
    s_nop 0
    v_permlane16_swap_b32 v8, v12
    v_permlane16_swap_b32 v10, v13
    v_max_f32 v8, v8, v12
    v_max_f32 v10, v10, v13
    v_mov_b32 v12, v8
    v_mov_b32 v13, v10
    s_nop 0
    v_permlane32_swap_b32 v8, v12
    v_permlane32_swap_b32 v10, v13
    v_max_f32 v8, v8, v12
    v_max_f32 v10, v10, v13
    v_sub_f32 v32, v32, v8
    v_sub_f32 v34, v34, v8
    v_sub_f32 v36, v36, v10
    v_sub_f32 v38, v38, v10
    v_exp_f32 v32, v32
    v_exp_f32 v34, v34
    v_exp_f32 v36, v36
    v_exp_f32 v38, v38
    s_nop 0
    v_mul_f32 v9, v32, v33
    v_mul_f32 v11, v36, v37
    v_fmac_f32 v9, v34, v35
    v_fmac_f32 v11, v38, v39
    s_nop 1
    v_add_f32_dpp v9, v9, v9 row_ror:8 row_mask:0xf bank_mask:0xf
    v_add_f32_dpp v11, v11, v11 row_ror:8 row_mask:0xf bank_mask:0xf
    v_mov_b32 v12, v9
    v_mov_b32 v13, v11
    s_nop 0
    v_permlane16_swap_b32 v9, v12
    v_permlane16_swap_b32 v11, v13
    v_add_f32 v9, v9, v12
    v_add_f32 v11, v11, v13
    v_mov_b32 v12, v9
    v_mov_b32 v13, v11
    s_nop 0
    v_permlane32_swap_b32 v9, v12
    v_permlane32_swap_b32 v11, v13
    v_add_f32 v9, v9, v12
    v_add_f32 v11, v11, v13
    v_cmp_eq_u32 vcc, 8, v1
    s_nop 1
    v_cndmask_b32 v8, v8, v10, vcc
    v_cndmask_b32 v9, v9, v11, vcc
    buffer_store_dwordx2 v[8:9], v18, {S_WS}, s95 offen sc1
    """)
    if diag and not P.get("lite"):
        I("s_waitcnt vmcnt(1)")
        g.stamp(24)
    for q in range(4):
        hh, i = q >> 1, q & 1
        ab = 40 + 8 * hh
        I(f"s_waitcnt vmcnt({1 if P['inc'] else 4-q})")
        for d in range(4):
            src = 64 + 4 * q + d
            I(f"v_lshlrev_b32 v12, 16, v{src}\nv_and_b32 v13, 0xffff0000, v{src}")
            if i == 0:
                I(f"v_mul_f32 v{ab+2*d}, v{32+2*q}, v12\nv_mul_f32 v{ab+1+2*d}, v{32+2*q}, v13")
            else:
                I(f"v_fmac_f32 v{ab+2*d}, v{32+2*q}, v12\nv_fmac_f32 v{ab+1+2*d}, v{32+2*q}, v13")
    I("s_nop 1")
    for ab in (40, 48):
        for k in (0, 1, 4, 5):
            I(f"v_permlane16_swap_b32 v{ab+k}, v{ab+2+k}")
    for ab in (40, 48):
        for k in (0, 1, 4, 5):
            I(f"v_add_f32 v{ab+k}, v{ab+k}, v{ab+2+k}")
    I("s_nop 0")
    for ab in (40, 48):
        for k in (0, 1):
            I(f"v_permlane32_swap_b32 v{ab+k}, v{ab+4+k}")
    I(f"""
    v_add_f32 v40, v40, v44
    v_add_f32 v41, v41, v45
    v_add_f32 v48, v48, v52
    v_add_f32 v49, v49, v53
    v_cmp_lt_u32 vcc, 7, v3
    v_add_f32_dpp v40, v40, v40 row_ror:8 row_mask:0xf bank_mask:0xf
    v_add_f32_dpp v41, v41, v41 row_ror:8 row_mask:0xf bank_mask:0xf
    v_add_f32_dpp v48, v48, v48 row_ror:8 row_mask:0xf bank_mask:0xf
    v_add_f32_dpp v49, v49, v49 row_ror:8 row_mask:0xf bank_mask:0xf
    v_cvt_pk_bf16_f32 v40, v40, v41
    v_cvt_pk_bf16_f32 v48, v48, v49
    v_cndmask_b32 v40, v40, v48, vcc
    buffer_store_dword v40, v17, {S_WS}, s94 offen sc1
    """)
    g.stamp(9)
    g.bar("vmcnt(0)")
    I(f"s_cmp_eq_u32 {sUP}, 0\ns_cbranch_scc1 L_down")
    g.sleep(P["d_w13"])
    I(f"""
    v_mul_u32_u24 v4, 3456, v30
    v_and_b32 v6, 1, v2
    s_and_b32 s12, {sWV}, 1
    s_lshl_b32 s12, s12, 1
    v_add_u32 v6, s12, v6
    v_lshlrev_b32 v6, 1, v6
    v_xor_b32 v6, v6, v31
    v_lshl_add_u32 v4, v6, 4, v4
    s_mul_i32 s12, {sKC}, 160
    s_and_b32 s14, {sWV}, 3
    s_lshl_b32 s13, s14, 3
    s_add_u32 s12, s12, s13
    s_mul_i32 s12, s12, 3456
    s_lshl_b32 s13, {sFC}, 7
    s_add_u32 s12, s12, s13
    s_lshl_b32 s13, s14, 10
    s_cmp_ge_u32 {sWV}, 4
    s_cbranch_scc1 L_up_w3
    s_add_u32 s13, s13, {L_W1}
    """)
    for m in range(5):
        dma("v4", S_W1, NT, 4096, 32 * 3456)
    I("s_branch L_up_ld")
    g.label("L_up_w3")
    I(f"s_add_u32 s13, s13, {L_W3}")
    for m in range(5):
        dma("v4", S_W3, NT, 4096, 32 * 3456)
    g.label("L_up_ld")
    I(f"""
    v_bfe_u32 v4, v1, 3, 1
    v_and_b32 v6, 1, v2
    v_lshl_add_u32 v4, v6, 1, v4
    v_xor_b32 v4, s14, v4
    v_lshlrev_b32 v16, 5, v4
    v_bfe_u32 v4, v1, 2, 2
    v_lshl_add_u32 v4, v2, 3, v4
    v_lshl_add_u32 v16, v4, 7, v16
    v_and_b32 v4, 3, v1
    v_lshl_add_u32 v16, v4, 3, v16
    s_lshr_b32 s12, {sWV}, 2
    s_mul_i32 s12, s12, {L_W3-L_W1}
    v_add_u32 v16, s12, v16
    v_and_b32 v17, 3, v3
    v_min_u32 v17, 2, v17
    v_mul_u32_u24 v17, 320, v17
    v_lshl_add_u32 v17, v2, 4, v17
    v_lshlrev_b32 v18, 2, v4
    v_mov_b32 v4, {OOB}
    v_cmp_gt_u32 vcc, 16, v1
    s_lshl_b32 s93, {sX}, 4
    s_add_u32 s93, s93, {sM}
    v_cndmask_b32 v19, v4, v5, vcc
    s_lshl_b32 s93, s93, 11
    s_andn2_b32 s94, s93, 0x1fff
    s_lshl_b32 s13, {sWV}, 8
    s_add_u32 s93, s93, s13
    s_add_u32 s93, s93, {XU}
    s_lshl_b32 s13, {sKC}, 8
    s_add_u32 s94, s94, s13
    s_add_u32 s94, s94, {XU}
    v_lshlrev_b32 v20, 11, v2
    v_lshl_add_u32 v20, v3, 4, v20
    v_min_u32 v21, 39, v1
    v_mov_b32 v8, 0
    v_mov_b32 v9, 0
    v_mov_b32 v10, 0
    v_mov_b32 v11, 0
    """)
    I(f"""
    s_sub_u32 s12, {sWV}, 1
    s_cmp_ge_u32 s12, 2
    s_cbranch_scc1 L_up_nx
    v_lshlrev_b32 v22, 3, v21
    s_mul_i32 s13, s12, 1280
    s_mul_i32 s14, {sKC}, 320
    s_add_u32 s13, s13, s14
    buffer_load_dwordx2 v[194:195], v22, {S_X}, s13 offen
    L_up_nx:
    s_cmp_lg_u32 {sWV}, 3
    s_cbranch_scc1 L_up_n1
    v_mov_b32 v12, 0x3f803f80
    v_mov_b32 v13, 0x3f803f80
    v_lshlrev_b32 v4, 3, v21
    ds_write_b64 v4, v[12:13] offset:{L_HB+640}
    L_up_n1:
    s_cmp_lg_u32 {sWV}, 0
    s_cbranch_scc1 L_up_n0
    v_lshrrev_b32 v4, 2, v3
    v_lshlrev_b32 v4, 11, v4
    v_bfe_u32 v6, v3, 1, 1
    v_lshl_add_u32 v4, v6, 10, v4
    v_and_b32 v6, 1, v3
    v_lshl_add_u32 v4, v6, 7, v4
    buffer_load_dword v194, v4, {S_WS}, s94 offen sc1 nt
    L_up_n0:
    """)
    g.bar("vmcnt(0) lgkmcnt(0)")
    g.stamp(19)
    for st in range(5):
        for tt in range(2):
            I(f"ds_read_b64_tr_b16 v[{96+4*st+2*tt}:{97+4*st+2*tt}], v16 offset:{L_W1+4096*st+512*tt}")
    I(f"s_cmp_ge_u32 s12, 2\ns_cbranch_scc1 L_up_mm")
    I(f"""
    v_lshlrev_b32 v7, 4, v21
    s_mul_i32 s13, s12, 2560
    s_mul_i32 s14, {sKC}, 640
    s_add_u32 s13, s13, s14
    s_add_u32 s13, s13, {XD2}
    s_mul_i32 s14, s12, 320
    v_add_u32 v22, s14, v22
    """)
    if P["t_d2"]:
        I(f"ds_read_b32 v4, {VZ} offset:{L_CTRL}\ns_waitcnt lgkmcnt(0)")
        until(P["t_d2"], "v4")
    d2l = lambda b: [f"s_add_u32 s14, s13, {i*5120}\nbuffer_load_dwordx4 v[{b+4*i}:{b+3+4*i}], v7, {S_WS}, s14 offen sc1"
                     for i in range(8)]
    if P["pipe"] > 1:
        g.poll_pipe(d2l, 32, [32, 128, 160][:min(3, P["pipe"])], gap=P["gap"])
    else:
        g.poll(d2l(32), range(32, 64), delay=P["d_d2"], tmp="v4", backoff=P["bo_d2"])
    g.stamp(13)
    g.tree_add(32, 8, 4, 4)
    h_from_sum(194)
    I(f"ds_write_b64 v22, v[8:9] offset:{L_HB}")
    g.signal(C_H)
    I("v_mov_b32 v8, 0\nv_mov_b32 v9, 0")
    g.label("L_up_mm")
    I(f"""
    v_mov_b32 v12, 0
    v_mov_b32 v13, 0
    v_mov_b32 v14, 0
    v_mov_b32 v15, 0
    s_mov_b32 s100, 0xaaaaaaaa
    s_mov_b32 s101, 0xaaaaaaaa
    """)
    g.waitc(C_H, 2)
    for st in range(5):
        I(f"ds_read_b128 v[{32+4*st}:{35+4*st}], v17 offset:{L_HB+64*st}")
    for st in range(5):
        I(f"s_waitcnt lgkmcnt({4-st})")
        I(f"v_mfma_f32_16x16x32_bf16 v[12:15], v[{32+4*st}:{35+4*st}], v[{32+4*st}:{35+4*st}], v[12:15]")
        I(f"v_mfma_f32_16x16x32_bf16 v[8:11], v[{32+4*st}:{35+4*st}], v[{96+4*st}:{99+4*st}], v[8:11]")
    I(f"""
    s_nop 7
    v_cndmask_b32 v11, v12, v13, s[100:101]
    s_cmp_eq_u32 s15, 1
    s_cbranch_scc1 L_u_fast
    buffer_store_dwordx4 v[8:11], v19, {S_WS}, s93 offen sc1
    s_branch L_u_done
    L_u_fast:
    buffer_store_dwordx4 v[8:11], v19, {S_WS}, s93 offen
    L_u_done:
    """)
    g.stamp(12)
    I(f"s_cmp_lg_u32 {sWV}, 0\ns_cbranch_scc1 L_fin")
    I(f"""
    v_lshlrev_b32 v16, 5, v2
    v_lshl_add_u32 v16, v3, 1, v16
    v_and_b32 v4, 0x21, v1
    v_mov_b32 v6, {OOB}
    v_cmp_eq_u32 vcc, 0, v4
    s_lshl_b32 s13, {sFC}, 2
    s_add_u32 s13, s13, {sKC}
    v_cndmask_b32 v16, v6, v16, vcc
    s_lshl_b32 s13, s13, 7
    s_add_u32 s13, s13, {XE}
    """)
    g.poll([f"buffer_load_dwordx4 v[32:35], v20, {S_WS}, s94 offen sc1",
            f"buffer_load_dwordx4 v[36:39], v20, {S_WS}, s94 offen offset:1024 sc1"],
           range(32, 40), delay=P["d_u"], backoff=1)
    g.stamp(13)
    for k in range(7):
        I(f"v_mov_b32 v{40+k}, v{32+k}")
    for k in range(7):
        I(f"v_permlane16_swap_b32 v{32+k}, v{40+k}")
    for k in range(7):
        I(f"v_add_f32 v{32+k}, v{32+k}, v{40+k}")
    for k in range(7):
        I(f"v_mov_b32 v{40+k}, v{32+k}")
    for k in range(7):
        I(f"v_permlane32_swap_b32 v{32+k}, v{40+k}")
    for k in range(7):
        I(f"v_add_f32 v{32+k}, v{32+k}, v{40+k}")
    I(f"""
    v_mov_b32_dpp v40, v35 quad_perm:[2,2,2,2] row_mask:0xf bank_mask:0xf
    v_mov_b32_dpp v41, v35 quad_perm:[0,0,0,0] row_mask:0xf bank_mask:0xf
    v_mov_b32_dpp v42, v35 quad_perm:[3,3,3,3] row_mask:0xf bank_mask:0xf
    v_mov_b32_dpp v43, v35 quad_perm:[1,1,1,1] row_mask:0xf bank_mask:0xf
    v_mul_f32 v40, {f2u(1.0/640):#x}, v40
    v_mul_f32 v41, {f2u(1.0/640):#x}, v41
    v_mul_f32 v42, {f2u(1.0/640):#x}, v42
    v_mul_f32 v43, {f2u(1.0/640):#x}, v43
    v_fma_f32 v41, -v40, v40, v41
    v_fma_f32 v43, -v42, v42, v43
    v_max_f32 v41, 0, v41
    v_max_f32 v43, 0, v43
    v_add_f32 v41, {f2u(1e-5):#x}, v41
    v_add_f32 v43, {f2u(1e-5):#x}, v43
    v_rsq_f32 v41, v41
    v_rsq_f32 v43, v43
    v_fma_f32 v32, -v40, v34, v32
    v_fma_f32 v33, -v42, v34, v33
    v_fma_f32 v36, -v40, v38, v36
    v_fma_f32 v37, -v42, v38, v37
    v_mul_f32 v32, v32, v41
    v_mul_f32 v33, v33, v43
    v_mul_f32 v36, v36, v41
    v_mul_f32 v37, v37, v43
    v_cvt_pk_bf16_f32 v8, v32, v33
    v_cvt_pk_bf16_f32 v9, v36, v37
    v_lshlrev_b32 v32, 16, v8
    v_and_b32 v33, 0xffff0000, v8
    v_lshlrev_b32 v34, 16, v9
    v_and_b32 v35, 0xffff0000, v9
    v_mul_f32 v36, {f2u(-1.4426950408889634):#x}, v32
    v_mul_f32 v37, {f2u(-1.4426950408889634):#x}, v33
    v_exp_f32 v36, v36
    v_exp_f32 v37, v37
    s_nop 0
    v_add_f32 v36, 1.0, v36
    v_add_f32 v37, 1.0, v37
    v_rcp_f32 v36, v36
    v_rcp_f32 v37, v37
    s_nop 0
    v_mul_f32 v32, v32, v36
    v_mul_f32 v33, v33, v37
    v_cvt_pk_bf16_f32 v8, v32, v33
    v_lshlrev_b32 v32, 16, v8
    v_and_b32 v33, 0xffff0000, v8
    v_mul_f32 v32, v32, v34
    v_mul_f32 v33, v33, v35
    v_cmp_eq_u32 vcc, 1, v2
    s_nop 0
    v_mov_b32_dpp v34, v32 row_ror:15 row_mask:0xf bank_mask:0xf
    v_mov_b32_dpp v35, v33 row_ror:15 row_mask:0xf bank_mask:0xf
    v_cvt_pk_bf16_f32 v8, v32, v34
    v_cvt_pk_bf16_f32 v9, v33, v35
    v_cndmask_b32 v8, v8, v9, vcc
    buffer_store_dword v8, v16, {S_WS}, s13 offen sc1
    """)
    g.stamp(14)
    I("s_branch L_fin")
    g.label("L_down")
    w2_dma(0, P["w2e"], "a")
    g.label("L_dn_ld")
    if P["otouch"]:
        I(f"buffer_load_dword v190, {VZ}, {S_OUT}, 0 offen")
    I(f"""
    v_bfe_u32 v4, v1, 2, 2
    v_lshl_add_u32 v4, v2, 3, v4
    v_lshlrev_b32 v16, 6, v4
    v_lshl_add_u32 v16, v6, 3, v16
    s_lshl_b32 s12, {sWV}, 11
    s_add_u32 s12, s12, {L_W2}
    v_add_u32 v16, s12, v16
    v_add_u32 v17, 0x10000, v16
    v_and_b32 v18, 1, v3
    v_lshlrev_b32 v18, 5, v18
    v_and_b32 v4, 1, v2
    v_lshl_add_u32 v18, v4, 4, v18
    v_lshrrev_b32 v4, 1, v2
    v_lshl_add_u32 v18, v4, 7, v18
    v_add_u32 v23, 4096, v18
    v_add_u32 v24, 8192, v18
    s_lshl_b32 s93, {sWV}, 8
    s_add_u32 s93, s93, {XE}
    s_cmp_lt_u32 {sWV}, 6
    s_cselect_b32 s94, {2048*6}, 0
    s_add_u32 s94, s94, s93
    s_lshl_b32 s14, {sWV}, 8
    v_lshl_add_u32 v19, v1, 4, s14
    """)
    for r in range(8, 16):
        I(f"v_mov_b32 v{r}, 0")
    I(f"""
    s_cmp_lg_u32 {sWV}, 1
    s_cbranch_scc1 L_dn_nx
    v_lshrrev_b32 v6, 3, v3
    v_mul_u32_u24 v7, 2560, v6
    v_lshl_add_u32 v7, v31, 4, v7
    v_mul_u32_u24 v20, 1280, v6
    v_lshl_add_u32 v20, v31, 3, v20
    v_lshlrev_b32 v22, 3, v3
    s_lshl_b32 s12, {sFC}, 6
    buffer_load_dwordx2 v[194:195], v20, {S_X}, s12 offen
    L_dn_nx:
    """)
    g.bar("vmcnt(0) lgkmcnt(0)")
    g.stamp(19)
    for i in range(7):
        for nu in range(2):
            for tt in range(2):
                r = 96 + (i * 2 + nu) * 4 + 2 * tt
                off = 16384 * i + 256 * tt + 32 * nu
                va = "v16" if off < 65536 else "v17"
                I(f"ds_read_b64_tr_b16 v[{r}:{r+1}], {va} offset:{off & 65535}")
    I(f"s_cmp_lg_u32 {sWV}, 1\ns_cbranch_scc1 L_dn_e")
    I(f"s_lshl_b32 s13, {sFC}, 7\ns_add_u32 s13, s13, {XD2}")
    lds = [f"s_add_u32 s14, s13, {i*5120}\nbuffer_load_dwordx4 v[{32+4*i}:{35+4*i}], v7, {S_WS}, s14 offen sc1"
           for i in range(8)]
    g.poll(lds, range(32, 64), delay=P["d_d2"], tmp="v4", backoff=P["bo_d2"])
    g.stamp(13)
    g.tree_add(32, 8, 4, 4)
    h_from_sum(194)
    I(f"ds_write_b64 v22, v[8:9] offset:{L_HB}\nv_mov_b32 v8, 0\nv_mov_b32 v9, 0")
    g.signal(C_H)
    g.label("L_dn_e")
    g.waitc(C_H, 1)
    if P["t_e"]:
        I(f"ds_read_b32 v4, {VZ} offset:{L_CTRL}\ns_waitcnt lgkmcnt(0)")
        until(P["t_e"], "v4")
    el = lambda b: [f"buffer_load_dwordx4 v[{b+4*i}:{b+3+4*i}], {('v18','v23','v24')[i>>1]}, {S_WS}, s93 offen offset:{2048*(i&1)} sc1" for i in range(6)] + \
                   [f"buffer_load_dwordx4 v[{b+24}:{b+27}], v18, {S_WS}, s94 offen sc1"]
    if P["pipe"] > 1:
        g.poll_pipe(el, 28, [32, 64, 160][:min(3, P["pipe"])], tmp="v6", gap=P["gap"])
    else:
        g.poll(el(32), range(32, 60), delay=P["d_e"], tmp="v6", backoff=P["bo_e"])
    g.stamp(14)
    for i in range(7):
        if i == 6:
            I(f"s_cmp_ge_u32 {sWV}, 6\ns_cbranch_scc1 L_dn6")
        for nu in range(2):
            r = 96 + (i * 2 + nu) * 4
            I(f"v_mfma_f32_16x16x32_bf16 v[{8+4*nu}:{11+4*nu}], v[{32+4*i}:{35+4*i}], v[{r}:{r+3}], v[{8+4*nu}:{11+4*nu}]")
    g.label("L_dn6")
    I(f"""
    s_mov_b64 exec, 0xffff
    s_nop 6
    v_mov_b32 v10, v12
    v_mov_b32 v11, v13
    ds_write_b128 v19, v[8:11] offset:{L_UR}
    s_mov_b64 exec, -1
    """)
    g.bar()
    I(f"s_cmp_lg_u32 {sWV}, 0\ns_cbranch_scc1 L_fin")
    I(f"""
    v_lshlrev_b32 v16, 4, v3
    v_lshl_add_u32 v16, v2, 2, v16
    v_and_b32 v4, 1, v2
    v_lshrrev_b32 v6, 1, v2
    v_lshlrev_b32 v7, 6, v4
    v_lshl_add_u32 v7, v6, 5, v7
    v_lshl_add_u32 v7, v3, 1, v7
    ds_read_u16 v191, v7 offset:{L_HB}
    """)
    for v in range(8):
        I(f"ds_read_b32 v{32+v}, v16 offset:{L_UR+256*v}")
    I(f"""
    v_mul_u32_u24 v17, 1280, v4
    v_lshl_add_u32 v17, v6, 5, v17
    v_lshl_add_u32 v17, v3, 1, v17
    v_and_b32 v5, 1, v1
    v_mov_b32 v6, {OOB}
    v_cmp_eq_u32 vcc, 0, v5
    s_lshl_b32 s12, {sFC}, 6
    s_waitcnt lgkmcnt(0)
    v_cndmask_b32 v17, v6, v17, vcc
    v_lshlrev_b32 v191, 16, v191
    """)
    g.tree_add(32, 8, 1, 1)
    I(f"""
    v_cvt_pk_bf16_f32 v8, v32, v32
    v_lshlrev_b32 v32, 16, v8
    v_add_f32 v32, v32, v191
    s_nop 1
    v_mov_b32_dpp v34, v32 row_ror:15 row_mask:0xf bank_mask:0xf
    v_cvt_pk_bf16_f32 v8, v32, v34
    buffer_store_dword v8, v17, {S_OUT}, s12 offen
    """)
    g.stamp(15)
    g.label("L_fin")
    if diag and P.get("dbgout"):
        I(f"""
        s_cmp_lg_u32 {sWV}, 0
        s_cbranch_scc1 L_end
        buffer_load_dword v4, {VZ}, {S_DBG}, 0 offen sc1
        s_waitcnt vmcnt(0)
        v_readfirstlane_b32 s96, v4
        s_mov_b64 exec, 1
        """)
        for k, idx in enumerate([0, 2, 4, 6, 5, 23, 9, 10, 11, 12, 13, 14, 15, 18]):
            lab = g.newlab("Lz")
            I(f"""
            s_cmp_eq_u32 s{64+idx}, 0
            s_cbranch_scc1 {lab}
            s_sub_u32 s97, s{64+idx}, s96
            v_mov_b32 v5, s97
            buffer_atomic_smax v5, {VZ}, {S_DBG}, 0 offen offset:{8+4*k}
            {lab}:
            """)
    elif diag:
        I(f"""
        s_mul_i32 s96, s2, 10
        s_add_u32 s96, s96, {sWV}
        s_lshl_b32 s96, s96, 7
        s_add_u32 s96, s96, {TS}
        s_mov_b64 exec, 1
        """)
        for i in range(0, 28, 4):
            I(f"v_mov_b32 v4, s{64+i}\nv_mov_b32 v5, s{65+i}\nv_mov_b32 v6, s{66+i}\nv_mov_b32 v7, s{67+i}")
            I(f"buffer_store_dwordx4 v[4:7], {VZ}, {S_WS}, s96 offen offset:{4*i}\ns_nop 2")
    g.label("L_end")
    I("s_endpgm")

    tail = f"""
.section .rodata,"a"
.p2align 6
.amdhsa_kernel {KNAME}
  .amdhsa_next_free_vgpr {NVGPR}
  .amdhsa_next_free_sgpr 102
  .amdhsa_accum_offset {NVGPR}
  .amdhsa_group_segment_fixed_size 0
  .amdhsa_kernarg_size 104
  .amdhsa_user_sgpr_count 2
  .amdhsa_user_sgpr_kernarg_segment_ptr 1
  .amdhsa_system_sgpr_workgroup_id_x 1
.end_amdhsa_kernel
"""
    return "\n".join(hdr) + "\n" + "\n".join(g.L) + "\n" + tail


if __name__ == "__main__":
    diag = "--diag" in sys.argv
    out = [a for a in sys.argv[1:] if not a.startswith("--")]
    P = {}
    for a in sys.argv[1:]:
        if a.startswith("--P:"):
            k, v = a[4:].split("=")
            P[k] = int(v) if v.lstrip("-").isdigit() else v
    txt = build(diag=diag, P=P)
    if out:
        open(out[0], "w").write(txt)
    else:
        sys.stdout.write(txt)
```
